```python
import torch

def _softmax(x, axis=-1):
    return torch.softmax(x, dim=axis)
def _gelu(x):
    return torch.nn.functional.gelu(x, approximate="tanh")
def _silu(x):
    return torch.nn.functional.silu(x)
def _sigmoid(x):
    return torch.sigmoid(x)
def _layernorm(x, axis=-1, eps=1e-5):
    m = x.mean(dim=axis, keepdim=True)
    v = x.var(dim=axis, keepdim=True, unbiased=False)
    return (x - m) / torch.sqrt(v + eps)
def _scatter_add(tgt, idx, src, axis=0):
    return tgt.clone().index_add_(axis, idx, src)
def _segment_sum(src, seg, n):
    out = torch.zeros((n,) + src.shape[1:], dtype=src.dtype)
    return out.index_add_(0, seg, src)
def _pad(x, pw):
    flat = tuple(v for pair in reversed(pw) for v in pair)
    return torch.nn.functional.pad(x, flat)

kernel_name = 'concat_heads__linear_attn_block__ssm_conv_h3__prompt'

def setup_inputs():

    _w = (lambda a: (lambda t: t.to(torch.bfloat16) if t.is_floating_point() else t)(torch.as_tensor(a)))
    def _A_setup():
        B, S, D = 1, 2048, 576
        return {
            "x": _w((lambda *s: torch.randn(*s, dtype=torch.bfloat16) * 0.05)(B, S, D)),
            "wqkv": _w((lambda *s: torch.randn(*s, dtype=torch.bfloat16) * 0.8)(D, 3 * D)),
            "wo": _w((lambda *s: torch.randn(*s, dtype=torch.bfloat16) * 0.05)(D, D)),
        }
    _A_in = _A_setup()

    def _B_setup():
        B, S, D = 1, 2048, 576
        ks = 4
        return {
            "q": _w((lambda *s: torch.randn(*s, dtype=torch.bfloat16) * 0.05)(B, S, D)),
            "k": _w((lambda *s: torch.randn(*s, dtype=torch.bfloat16) * 0.4)(B, S, D)),
            "v": _w((lambda *s: torch.randn(*s, dtype=torch.bfloat16) * 0.4)(B, S, D)),
            "shift_k": _w((lambda *s: torch.randn(*s, dtype=torch.bfloat16) * 0.4)(D, ks) * 0.5),
            "ssm_k": _w((lambda *s: torch.randn(*s, dtype=torch.bfloat16) * 1.6)(D, S) * (1.0 / S ** 0.5)),
            "ssm_D": _w((lambda *s: torch.randn(*s, dtype=torch.bfloat16) * 0.4)(D)),
        }
    _B_in = _B_setup()

    return {
        "A_x": _A_in["x"],
        "A_wqkv": _A_in["wqkv"],
        "A_wo": _A_in["wo"],
        "B_q": _B_in["q"],
        "B_k": _B_in["k"],
        "B_v": _B_in["v"],
        "B_shift_k": _B_in["shift_k"],
        "B_ssm_k": _B_in["ssm_k"],
        "B_ssm_D": _B_in["ssm_D"],
    }

def reference(A_x, A_wqkv, A_wo, B_q, B_k, B_v, B_shift_k, B_ssm_k, B_ssm_D):
    def _A_ref(x, wqkv, wo):
        B, S, D = x.shape
        H = 32; Dh = D // H
        qkv = (lambda x, *d: x.permute(*d))((x @ wqkv).reshape(B, S, 3, H, Dh), 2, 0, 3, 1, 4)
        q, k, v = qkv[0], qkv[1], qkv[2]
        phi = lambda t: torch.where(t > 0, t + 1, torch.exp(t)) + 1e-6
        pq, pk = phi(q), phi(k)
        kv = torch.einsum("bhsd,bhse->bhde", pk, v)
        z = torch.einsum("bhsd->bhd", pk)
        num = torch.einsum("bhqd,bhde->bhqe", pq, kv)
        den = torch.einsum("bhqd,bhd->bhq", pq, z)[..., None] + 1e-6
        o = num / den
        return (lambda x, *d: x.permute(*d))(o, 0, 2, 1, 3).reshape(B, S, D) @ wo

    def _B_ref(q, k, v, shift_k, ssm_k, ssm_D):
        B, S, D = q.shape
        ks = shift_k.shape[-1]
        k_pad = _pad(k, ((0, 0), (ks - 1, 0), (0, 0)))
        k_shift = torch.zeros_like(k)
        for t in range(ks):
            k_shift = k_shift + k_pad[:, t:t + S, :] * shift_k[:, ks - 1 - t][None, None, :]
        kv = k_shift * v
        L = 2 * S
        kv_pad = _pad(kv, ((0, 0), (0, S), (0, 0)))
        kf_pad = _pad(ssm_k, ((0, 0), (0, S)))
        kv_f = (lambda x, axes=(-2,-1): torch.fft.rfft2(x.float(), dim=axes))(kv_pad[:, None, :, :], axes=(1, 2))
        kf_f = (lambda x, axes=(-2,-1): torch.fft.rfft2(x.float(), dim=axes))(kf_pad[:, None, :], axes=(1, 2))
        kf_f = (lambda x, *d: x.permute(*d))(kf_f, 1, 2, 0)
        y_f = kv_f * kf_f[None, :, :, :]
        y = (lambda x, s, axes=(-2,-1): torch.fft.irfft2(x, s=s, dim=axes).to(torch.bfloat16))(y_f, (1, L), axes=(1, 2))[:, 0, :S, :]
        y = y + kv * ssm_D[None, None, :]
        return q * y

    a = _A_ref(A_x, A_wqkv, A_wo)
    b = _B_ref(B_q, B_k, B_v, B_shift_k, B_ssm_k, B_ssm_D)
    return torch.concatenate([a, b], axis=-1)
```

```python
import re

def vr(a, n=1):
    return 'v%d' % a if n == 1 else 'v[%d:%d]' % (a, a + n - 1)
def sr(a, n=1):
    return 's%d' % a if n == 1 else 's[%d:%d]' % (a, a + n - 1)

class Asm:
    UID = 0
    def __init__(self):
        self.lines = []
        self.uid = 0
    def __call__(self, s):
        for l in s.split('\n'):
            l = l.strip()
            if l: self.lines.append(l)
    def label(self, name): self.lines.append(name + ':')
    def newlabel(self, base='L'):
        Asm.UID += 1
        return '%s_%d' % (base, Asm.UID)
    def text(self): return '\n'.join(self.lines) + '\n'

_REG = re.compile(r'^(-|abs\()?([vsa])(?:(\d+)|\[(\d+):(\d+)\])\)?$')
def regs_of(tok):
    tok = tok.strip()
    if tok in ('vcc',): return {('s', 106), ('s', 107)}
    if tok == 'vcc_lo': return {('s', 106)}
    if tok == 'vcc_hi': return {('s', 107)}
    if tok == 'exec': return {('s', 126), ('s', 127)}
    if tok == 'm0': return {('s', 124)}
    m = _REG.match(tok)
    if not m: return set()
    f = m.group(2)
    if m.group(3) is not None: return {(f, int(m.group(3)))}
    return {(f, i) for i in range(int(m.group(4)), int(m.group(5)) + 1)}

TRANS = ('v_exp_f32', 'v_log_f32', 'v_rcp_f32', 'v_rsq_f32', 'v_sqrt_f32', 'v_sin_f32', 'v_cos_f32', 'v_rcp_iflag_f32')
class I:
    __slots__ = ('text', 'mn', 'kind', 'dst', 'src', 'mods', 'ws', 'srcc', 'srcab', 'passes', 'target', 'dpp', 'sdata')
def parse(line):
    i = I(); i.text = line
    s = line.split(';')[0].strip()
    i.dst = set(); i.src = set(); i.srcc = set(); i.srcab = set(); i.passes = 0; i.target = None; i.dpp = False; i.sdata = set(); i.ws = 1
    if s.endswith(':') or s.startswith('.') or not s:
        i.kind = 'label' if s.endswith(':') else 'dir'; i.mn = s; i.ws = 0; return i
    parts = s.split(None, 1)
    mn = parts[0]; i.mn = mn
    rest = parts[1] if len(parts) > 1 else ''
    ops = [o.strip() for o in rest.split(',')] if rest else []
    mods = []
    if ops:
        last = ops[-1].split()
        if last:
            ops[-1] = last[0]; mods = last[1:]
    i.mods = mods
    base = re.sub(r'_(e32|e64|dpp|sdwa)$', '', mn)
    if mn == 's_nop':
        i.kind = 'nop'; i.ws = int(ops[0], 0) + 1
    elif mn.startswith('v_mfma'):
        i.kind = 'mfma'; i.dst = regs_of(ops[0]); i.srcab = regs_of(ops[1]) | regs_of(ops[2]); i.srcc = regs_of(ops[3]); i.src = i.srcab | i.srcc
        i.passes = 8 if '32x32' in mn else 4
    elif mn.startswith('v_'):
        i.kind = 'valu'
        i.dpp = any(m.startswith(('quad_perm', 'row_', 'wave_', 'bank_mask')) for m in mods) or mn.endswith('_dpp')
        if base.startswith('v_cmp'):
            i.dst = regs_of(ops[0])
            for o in ops[1:]: i.src |= regs_of(o)
        elif base in ('v_add_co_u32', 'v_sub_co_u32', 'v_addc_co_u32', 'v_subb_co_u32', 'v_mad_u64_u32'):
            i.dst = regs_of(ops[0]) | regs_of(ops[1])
            for o in ops[2:]: i.src |= regs_of(o)
        elif base.startswith('v_permlane') and 'swap' in base:
            i.dst = regs_of(ops[0]) | regs_of(ops[1]); i.src = set(i.dst)
        else:
            i.dst = regs_of(ops[0])
            for o in ops[1:]: i.src |= regs_of(o)
            if base in ('v_fmac_f32', 'v_pk_fmac_f16', 'v_dot2c_f32_bf16', 'v_writelane_b32') or i.dpp: i.src |= i.dst
            if base == 'v_cndmask_b32' and len(ops) == 3: i.src |= regs_of('vcc')
            if base == 'v_accvgpr_write_b32' or base == 'v_accvgpr_read_b32': pass
    elif mn.startswith('ds_'):
        i.kind = 'ds'
        if 'read' in mn or 'bpermute' in mn or 'permute' in mn or 'swizzle' in mn or '_rtn' in mn:
            i.dst = regs_of(ops[0])
            for o in ops[1:]: i.src |= regs_of(o)
        else:
            for o in ops: i.src |= regs_of(o)
    elif mn.startswith(('buffer_', 'global_')):
        i.kind = 'vmem'
        islds = 'lds' in mods or '_load_lds' in mn
        if mn.startswith(('buffer_wbl2', 'buffer_inv')):
            pass
        elif 'store' in mn or ('atomic' in mn and 'sc0' not in mods):
            for o in ops: i.src |= regs_of(o)
            if mn.startswith('buffer_'): i.sdata = regs_of(ops[0])
            else: i.sdata = regs_of(ops[1])
            if not (mn.endswith('x4') or mn.endswith('x3')): i.sdata = set()
        elif islds:
            for o in ops: i.src |= regs_of(o)
            i.src |= regs_of('m0')
            i.kind = 'dma'
        else:
            i.dst = regs_of(ops[0])
            for o in ops[1:]: i.src |= regs_of(o)
            if 'atomic' in mn: i.src |= i.dst
    elif mn.startswith('s_'):
        i.kind = 'salu'
        if mn.startswith(('s_branch', 's_cbranch')):
            i.kind = 'branch'; i.target = ops[0]
        elif mn.startswith(('s_cmp', 's_waitcnt', 's_barrier', 's_endpgm', 's_setprio', 's_sleep', 's_bitcmp')):
            for o in ops: i.src |= regs_of(o)
        else:
            if ops: i.dst = regs_of(ops[0])
            for o in ops[1:]: i.src |= regs_of(o)
            if 'saveexec' in mn: i.dst |= regs_of('exec')
    else:
        raise ValueError('unknown instr: ' + line)
    return i

def need(p, c):
    n = 0
    pv = {r for r in p.dst if r[0] in 'va'}; ps = {r for r in p.dst if r[0] == 's'}
    cv_src = {r for r in c.src if r[0] in 'va'}; cs_src = {r for r in c.src if r[0] == 's'}
    if p.kind == 'valu':
        if c.kind == 'mfma' and pv & c.src: n = max(n, 2)
        if c.kind in ('vmem', 'dma') and ps & cs_src: n = max(n, 5)
        if c.kind == 'valu' and ps & cs_src: n = max(n, 2)
        if c.kind == 'valu' and c.mn.startswith(('v_readlane', 'v_readfirstlane')) and pv & cv_src: n = max(n, 1)
        if c.kind == 'valu' and c.mn.startswith(('v_readlane', 'v_writelane')) and ps & cs_src: n = max(n, 4)
        if c.kind == 'valu' and c.dpp and pv & cv_src: n = max(n, 2)
        if c.kind == 'valu' and c.mn.startswith('v_permlane') and pv & cv_src: n = max(n, 2)
        if p.mn.startswith(TRANS) and c.kind in ('valu', 'mfma', 'ds', 'vmem') and pv & c.src: n = max(n, 1)
        if ('sdwa' in p.mn or any(m.startswith(('op_sel', 'dst_sel')) for m in p.mods)) and c.kind == 'valu' and pv & (c.src | c.dst): n = max(n, 1)
        if c.kind == 'salu' and ps & cs_src: n = max(n, 1)
    if p.kind == 'mfma':
        P = p.passes
        if c.kind == 'mfma':
            if p.dst & c.srcab: n = max(n, {4: 8, 8: 12}[P])
            if p.dst & c.srcc and not (p.dst == c.srcc and p.passes == c.passes): n = max(n, {4: 6, 8: 10}[P])
            if p.dst & c.dst and not (p.dst & c.srcc): n = max(n, {4: 6, 8: 10}[P])
        elif c.kind in ('valu', 'vmem', 'ds', 'dma'):
            if p.dst & (c.src | c.dst): n = max(n, {4: 8, 8: 12}[P])
        if c.kind == 'valu' and p.srcc & c.dst: n = max(n, {4: 3, 8: 7}[P])
    if p.kind == 'salu' and ('s', 124) in p.dst and c.kind == 'dma': n = max(n, 1)
    if p.kind == 'vmem' and p.sdata:
        if c.kind == 'valu' and p.sdata & c.dst: n = max(n, 2)
        elif c.kind in ('ds', 'vmem', 'mfma') and p.sdata & c.dst: n = max(n, 1)
    return n

WINDOW = 24
def fix_hazards(lines, verbose=False):
    ins = [parse(l) for l in lines]
    added = 0
    def check_from(hist, start, ins, labels, depth=0):
        dist_base = 0
        seq = []
        pos = start
        slots = 0
        while pos < len(ins) and slots < WINDOW:
            c = ins[pos]
            if c.kind in ('label', 'dir'): pos += 1; continue
            d = slots
            for p in reversed(hist):
                if p.kind in ('label', 'dir'): continue
                n = need(p, c)
                if n > d: return pos, n - d
                d += p.ws
                if d > WINDOW: break
            slots += c.ws
            if c.kind == 'branch' and c.mn == 's_branch': break
            if c.mn == 's_endpgm': break
            pos += 1
        return None
    changed = True
    while changed:
        changed = False
        out = []
        hist = []
        for c in ins:
            if c.kind in ('label', 'dir'):
                out.append(c); continue
            d = 0; req = 0
            for p in reversed(hist):
                n = need(p, c)
                if n > d: req = max(req, n - d)
                d += p.ws
                if d > WINDOW: break
            if req:
                while req > 0:
                    k = min(req, 16)
                    nop = parse('s_nop %d' % (k - 1)); out.append(nop); hist.append(nop); req -= k; added += 1
            out.append(c); hist.append(c)
            if c.mn in ('s_branch', 's_endpgm'): hist = []
            if len(hist) > 64: hist = hist[-40:]
        ins = out
        labels = {c.mn[:-1]: k for k, c in enumerate(ins) if c.kind == 'label'}
        for k, c in enumerate(ins):
            if c.kind == 'branch':
                if c.target not in labels: raise ValueError('unknown label ' + c.target)
                h = [p for p in ins[max(0, k - 40):k + 1] if p.kind not in ('label', 'dir')]
                for q in range(len(h) - 2, -1, -1):
                    if h[q].mn in ('s_branch', 's_endpgm'): h = h[q + 1:]; break
                r = check_from(h, labels[c.target], ins, labels)
                if r:
                    pos, n = r
                    t = labels[c.target] + 1
                    ins.insert(t, parse('s_nop %d' % (n - 1))); added += 1
                    changed = True
                    break
    if verbose: print('hazard fixer: inserted %d s_nop' % added)
    return [c.text for c in ins]
```

```python
from common import *
S_T0, S_T1, S_T2 = 41, 42, 43

LDS_B1 = 8 * 8192
def b1_tile(a, st_flags='', hook_after_issue=None):
    srd(a, 32, P_K, S * D * 2); srd(a, 36, P_V, S * D * 2); srd(a, 40 + 8, P_WS, WS_END); srd(a, 52, P_SK, D * 8)
    KR, VR, SK = 64, 108, 140
    a('v_and_b32 v2, 7, v0'); a('v_lshrrev_b32 v3, 3, v0')
    a('s_lshl_b32 s%d, s29, 6' % S_T0); a('v_lshlrev_b32 v4, 3, v3'); a('v_add_u32 v4, s%d, v4' % S_T0)
    a('v_mul_u32_u24 v4, 1152, v4'); a('v_lshlrev_b32 v5, 4, v2'); a('v_add_u32 v4, v4, v5')
    a('s_lshl_b32 s%d, s30, 7' % S_T0); a('v_add_u32 v4, s%d, v4' % S_T0)
    a('v_subrev_u32 v6, %d, v4' % (3 * 1152))
    a('s_lshl_b32 s%d, s30, 9' % S_T0); a('v_lshlrev_b32 v7, 6, v2'); a('v_add_u32 v7, s%d, v7' % S_T0)
    for k in range(4): a('buffer_load_dwordx4 %s, v7, s[52:55], 0 offen offset:%d' % (vr(SK + 4 * k, 4), 16 * k))
    for j in range(11):
        if j < 3:
            a('v_add_u32 v8, %d, v6' % (j * 1152))
            a('buffer_load_dwordx4 %s, v8, s[32:35], 0 offen' % vr(KR + 4 * j, 4))
        else:
            a('s_mov_b32 s%d, %d' % (S_T0, (j - 3) * 1152))
            a('buffer_load_dwordx4 %s, v4, s[32:35], s%d offen' % (vr(KR + 4 * j, 4), S_T0))
    for j in range(8):
        a('s_mov_b32 s%d, %d' % (S_T0, j * 1152))
        a('buffer_load_dwordx4 %s, v4, s[36:39], s%d offen' % (vr(VR + 4 * j, 4), S_T0))
    if hook_after_issue: hook_after_issue(a)
    a('s_mov_b32 s44, 0xffff0000')
    a('v_xor_b32 v9, v2, v3'); a('v_lshlrev_b32 v9, 4, v9'); a('v_lshl_add_u32 v9, v3, 7, v9')
    a('s_lshl_b32 s45, s%d, 13' % S_WAVE); a('v_add_u32 v9, s45, v9')
    a('s_waitcnt vmcnt(0)')
    T = 160
    for e in range(8):
        d = e >> 1; hi = e & 1
        a('v_lshlrev_b32 v%d, 16, v%d' % (T + 0, SK + 2 * e)); a('v_and_b32 v%d, s44, v%d' % (T + 1, SK + 2 * e))
        a('v_lshlrev_b32 v%d, 16, v%d' % (T + 2, SK + 2 * e + 1)); a('v_and_b32 v%d, s44, v%d' % (T + 3, SK + 2 * e + 1))
        for j in range(11):
            if hi: a('v_and_b32 v%d, s44, v%d' % (T + 4 + j, KR + 4 * j + d))
            else: a('v_lshlrev_b32 v%d, 16, v%d' % (T + 4 + j, KR + 4 * j + d))
        for i in range(8): a('v_mul_f32 v%d, v%d, v%d' % (T + 16 + i, T + 4 + i, T + 3))
        for i in range(8): a('v_fmac_f32 v%d, v%d, v%d' % (T + 16 + i, T + 5 + i, T + 2))
        for i in range(8): a('v_fmac_f32 v%d, v%d, v%d' % (T + 16 + i, T + 6 + i, T + 1))
        for i in range(8): a('v_fmac_f32 v%d, v%d, v%d' % (T + 16 + i, T + 7 + i, T + 0))
        for i in range(8):
            if hi: a('v_and_b32 v%d, s44, v%d' % (T + 4 + i, VR + 4 * i + d))
            else: a('v_lshlrev_b32 v%d, 16, v%d' % (T + 4 + i, VR + 4 * i + d))
        for i in range(8): a('v_mul_f32 v%d, v%d, v%d' % (T + 16 + i, T + 16 + i, T + 4 + i))
        U = T + 24 + 4 * (e & 1)
        for i in range(4): a('v_cvt_pk_bf16_f32 v%d, v%d, v%d' % (U + i, T + 16 + 2 * i, T + 17 + 2 * i))
        a('ds_write_b128 v9, %s offset:%d' % (vr(U, 4), e * 1024))
    a('v_lshlrev_b32 v10, 10, v3'); a('v_lshl_add_u32 v10, v2, 7, v10'); a('v_add_u32 v10, s45, v10')
    a('v_lshlrev_b32 v11, 12, v3'); a('v_lshl_add_u32 v11, v2, 4, v11')
    a('s_lshl_b32 s%d, s30, 18' % S_T0); a('s_lshl_b32 s%d, s29, 7' % S_T1); a('s_add_u32 s%d, s%d, s%d' % (S_T0, S_T0, S_T1)); a('s_add_u32 s%d, s%d, %d' % (S_T0, S_T0, WS_UT))
    a('s_waitcnt lgkmcnt(0)')
    for cc in range(8):
        a('v_xor_b32 v12, %d, v2' % cc); a('v_lshl_add_u32 v12, v12, 4, v10')
        a('ds_read_b128 %s, v12' % vr(64 + 4 * cc, 4))
    for cc in range(8):
        a('s_waitcnt lgkmcnt(%d)' % (7 - cc))
        a('s_add_u32 s%d, s%d, %d' % (S_T1, S_T0, cc * 8 * 4096))
        a('buffer_store_dwordx4 %s, v11, s[48:51], s%d offen %s' % (vr(64 + 4 * cc, 4), S_T1, st_flags))

HP = 4160
CH_H = 4 * HP
CH_U = 4576
CH_SZ = CH_H + CH_U
LDS_CONV = 4 * CH_SZ
def conv_round(a, st_flags='', ld_flags='', wait_u=None):
    S_CH, S_P, S_LB = 30, 31, 44
    a('s_lshr_b32 s%d, s%d, 1' % (S_T0, S_WAVE)); a('s_and_b32 s%d, s%d, 1' % (S_P, S_WAVE))
    a('s_lshl_b32 s%d, s29, 2' % S_CH); a('s_add_u32 s%d, s%d, s%d' % (S_CH, S_CH, S_T0))
    a('s_mul_i32 s%d, s%d, %d' % (S_LB, S_T0, CH_SZ))
    a('s_lshl_b32 s%d, s%d, 12' % (S_T1, S_CH))
    srd(a, 32, P_H, 4096, 's%d' % S_T1)
    srd(a, 48, P_WS, WS_END)
    a('v_lshlrev_b32 v2, 4, v0')
    a('s_lshl_b32 s%d, s%d, 11' % (S_T0, S_P)); a('v_add_u32 v3, s%d, v2' % S_T0)
    H = 64
    for k in range(2):
        a('v_add_u32 v4, %d, v3' % (k * 1024))
        a('buffer_load_dwordx4 %s, v4, s[32:35], 0 offen' % vr(H + 8 * k + 4, 4))
        a('v_subrev_u32 v4, 8, v4')
        a('buffer_load_dwordx2 %s, v4, s[32:35], 0 offen' % vr(H + 8 * k, 2))
    srd(a, 36, P_D, D * 2)
    a('s_lshl_b32 s%d, s%d, 1' % (S_T0, S_CH)); a('v_mov_b32 v5, s%d' % S_T0)
    a('buffer_load_ushort v20, v5, s[36:39], 0 offen')
    for k in range(4): a('v_mov_b32 v%d, 0' % (84 + k))
    a('s_mov_b64 s[52:53], exec')
    zl = a.newlabel('Lcz'); ze = a.newlabel('Lce')
    a('s_cmp_eq_u32 s%d, 0' % S_P); a('s_cbranch_scc0 %s' % zl)
    a('v_lshrrev_b32 v6, 2, v0'); a('v_mul_u32_u24 v6, %d, v6' % HP); a('v_and_b32 v7, 3, v0'); a('v_lshl_add_u32 v6, v7, 4, v6'); a('v_add_u32 v6, s%d, v6' % S_LB)
    a('s_mov_b64 exec, 0xffff')
    a('ds_write_b128 v6, v[84:87]')
    a('s_branch %s' % ze)
    a.label(zl)
    a('s_add_u32 s%d, s%d, %d' % (S_T0, S_LB, CH_H)); a('v_add_u32 v6, s%d, v2' % S_T0)
    a('s_mov_b64 exec, 0x3fffffff')
    a('ds_write_b128 v6, v[84:87]')
    a.label(ze)
    a('s_mov_b64 exec, s[52:53]')
    if wait_u: wait_u(a)
    a('s_lshl_b32 s%d, s%d, 12' % (S_T0, S_CH)); a('s_lshl_b32 s%d, s%d, 11' % (S_T1, S_P)); a('s_add_u32 s%d, s%d, s%d' % (S_T0, S_T0, S_T1)); a('s_add_u32 s%d, s%d, %d' % (S_T0, S_T0, WS_UT))
    a('s_add_u32 s%d, s%d, s%d' % (S_T1, S_T1, S_LB))
    for k in range(2):
        a('s_add_u32 m0, s%d, %d' % (S_T1, CH_H + 480 + k * 1024))
        a('s_add_u32 s%d, s%d, %d' % (S_T2, S_T0, k * 1024))
        a('buffer_load_dwordx4 v2, s[48:51], s%d offen %s lds' % (S_T2, ld_flags))
    a('s_lshl_b32 s%d, s%d, 11' % (S_T0, S_P)); a('s_add_u32 s%d, s%d, s%d' % (S_T0, S_T0, S_LB)); a('v_add_u32 v6, s%d, v2' % S_T0)
    a('s_waitcnt vmcnt(3)')
    for k in range(2):
        pm2, pm1 = H + 8 * k, H + 8 * k + 1
        h = H + 8 * k + 4
        o = 64 + k * 1024
        a('ds_write_b128 v6, %s offset:%d' % (vr(h, 4), o))
        c = 88
        a('v_mov_b32 v%d, v%d' % (c, pm1)); a('v_mov_b32 v%d, v%d' % (c + 1, h)); a('v_mov_b32 v%d, v%d' % (c + 2, h + 1)); a('v_mov_b32 v%d, v%d' % (c + 3, h + 2))
        a('ds_write_b128 v6, %s offset:%d' % (vr(c, 4), o + 2 * HP))
        c = 92
        a('v_alignbit_b32 v%d, v%d, v%d, 16' % (c, pm1, pm2))
        a('v_alignbit_b32 v%d, v%d, v%d, 16' % (c + 1, h, pm1))
        a('v_alignbit_b32 v%d, v%d, v%d, 16' % (c + 2, h + 1, h))
        a('v_alignbit_b32 v%d, v%d, v%d, 16' % (c + 3, h + 2, h + 1))
        a('ds_write_b128 v6, %s offset:%d' % (vr(c, 4), o + 3 * HP))
        c2 = 96
        a('v_mov_b32 v%d, v%d' % (c2, c + 1)); a('v_mov_b32 v%d, v%d' % (c2 + 1, c + 2)); a('v_mov_b32 v%d, v%d' % (c2 + 2, c + 3))
        a('v_alignbit_b32 v%d, v%d, v%d, 16' % (c2 + 3, h + 3, h + 2))
        a('ds_write_b128 v6, %s offset:%d' % (vr(c2, 4), o + HP))
    a('v_lshrrev_b32 v7, 4, v0'); a('v_bfe_u32 v8, v0, 2, 2'); a('v_and_b32 v9, 3, v0')
    a('v_mul_u32_u24 v10, %d, v8' % HP); a('v_lshl_add_u32 v10, v9, 3, v10'); a('v_lshlrev_b32 v11, 4, v7'); a('v_sub_u32 v10, v10, v11')
    a('s_lshl_b32 s%d, s%d, 8' % (S_T0, S_P)); a('s_add_u32 s%d, s%d, s%d' % (S_T0, S_T0, S_LB)); a('s_add_u32 s%d, s%d, %d' % (S_T0, S_T0, 64 + 32 - 8))
    a('v_add_u32 v10, s%d, v10' % S_T0)
    a('v_and_b32 v11, 15, v0'); a('v_lshlrev_b32 v11, 5, v11'); a('v_lshl_add_u32 v11, v7, 4, v11')
    a('s_lshl_b32 s%d, s%d, 8' % (S_T0, S_P)); a('s_sub_u32 s%d, s%d, s%d' % (S_T0, S_LB, S_T0)); a('s_add_u32 s%d, s%d, %d' % (S_T0, S_T0, CH_H))
    a('v_add_u32 v11, s%d, v11' % S_T0)
    ACC = 64
    a('s_waitcnt vmcnt(0) lgkmcnt(0)')
    a('s_barrier')
    for r in range(32): a('v_mov_b32 v%d, 0' % (ACC + r))
    AF, BF = 96, 160
    lg = LG(a)
    def rdlist(cc):
        s_ = cc & 1
        L = []
        for pp in range(8):
            L.append(('B', pp)); L.append(('A', pp))
        out = []
        for kind, pp in L:
            if kind == 'A':
                for q in range(2):
                    out.append(('ds_read_b64_tr_b16 %s, v10 offset:%d' % (vr(AF + 32 * s_ + 4 * pp + 2 * q, 2), 64 * cc + 512 * pp + (8 if q == 0 else 0)), [('A', cc, pp, q)]))
            else:
                out.append(('ds_read_b128 %s, v11 offset:%d' % (vr(BF + 32 * s_ + 4 * pp, 4), 448 + 512 * pp - 64 * cc), [('B', cc, pp)]))
        return out
    for txt, tg in rdlist(0): lg.issue(txt, tg)
    for cc in range(4):
        s_ = cc & 1
        pend = rdlist(cc + 1) if cc < 3 else []
        pairs = sorted([(p, m_) for p in range(8) for m_ in range(8) if p + m_ <= 7], key=lambda x: (max(x), x[0]))
        n = 0
        for (p, m_) in pairs:
            lg.wait([('A', cc, p, 0), ('A', cc, p, 1), ('B', cc, m_)])
            T = p + m_
            a('v_mfma_f32_16x16x32_bf16 %s, %s, %s, %s' % (vr(ACC + 4 * T, 4), vr(AF + 32 * s_ + 4 * p, 4), vr(BF + 32 * s_ + 4 * m_, 4), vr(ACC + 4 * T, 4)))
            n += 1
            if n >= 8 and pend:
                txt, tg = pend.pop(0); lg.issue(txt, tg)
        while pend:
            txt, tg = pend.pop(0); lg.issue(txt, tg)
    a('s_barrier')
    a('s_lshl_b32 s%d, s%d, 12' % (S_T0, S_P)); a('s_add_u32 s%d, s%d, s%d' % (S_T0, S_T0, S_LB)); a('v_add_u32 v6, s%d, v2' % S_T0)
    a('s_xor_b32 s%d, s%d, 1' % (S_T1, S_P)); a('s_lshl_b32 s%d, s%d, 12' % (S_T1, S_T1)); a('s_add_u32 s%d, s%d, s%d' % (S_T1, S_T1, S_LB)); a('v_add_u32 v7, s%d, v2' % S_T1)
    l1 = a.newlabel('Lcx'); l2 = a.newlabel('Lcy')
    a('s_cmp_eq_u32 s%d, 0' % S_P); a('s_cbranch_scc0 %s' % l1)
    for t in range(4): a('ds_write_b128 v6, %s offset:%d' % (vr(ACC + 16 + 4 * t, 4), t * 1024))
    a('s_branch %s' % l2)
    a.label(l1)
    for t in range(4): a('ds_write_b128 v6, %s offset:%d' % (vr(ACC + 4 * t, 4), t * 1024))
    for r in range(16): a('v_mov_b32 v%d, v%d' % (ACC + r, ACC + 16 + r))
    a.label(l2)
    a('s_waitcnt lgkmcnt(0)')
    a('s_barrier')
    for t in range(4): a('ds_read_b128 %s, v7 offset:%d' % (vr(96 + 4 * t, 4), t * 1024))
    a('v_and_b32 v8, 15, v0'); a('v_lshlrev_b32 v8, 5, v8'); a('v_lshrrev_b32 v9, 4, v0'); a('v_lshl_add_u32 v8, v9, 3, v8')
    a('s_lshl_b32 s%d, s%d, 11' % (S_T0, S_P)); a('s_add_u32 s%d, s%d, s%d' % (S_T0, S_T0, S_LB)); a('s_add_u32 s%d, s%d, %d' % (S_T0, S_T0, CH_H + 480))
    a('v_add_u32 v8, s%d, v8' % S_T0)
    for t in range(4): a('ds_read_b64 %s, v8 offset:%d' % (vr(112 + 2 * t, 2), t * 512))
    a('v_lshlrev_b32 v20, 16, v20')
    a('s_mov_b32 s45, 0xffff0000')
    a('s_waitcnt lgkmcnt(0)')
    for t in range(4):
        for r in range(4): a('v_add_f32 v%d, v%d, v%d' % (ACC + 4 * t + r, ACC + 4 * t + r, 96 + 4 * t + r))
    for t in range(4):
        a('v_lshlrev_b32 v120, 16, v%d' % (112 + 2 * t)); a('v_and_b32 v121, s45, v%d' % (112 + 2 * t))
        a('v_lshlrev_b32 v122, 16, v%d' % (113 + 2 * t)); a('v_and_b32 v123, s45, v%d' % (113 + 2 * t))
        for r in range(4): a('v_fmac_f32 v%d, v%d, v20' % (ACC + 4 * t + r, 120 + r))
        a('v_cvt_pk_bf16_f32 v%d, v%d, v%d' % (124 + 2 * t, ACC + 4 * t, ACC + 4 * t + 1))
        a('v_cvt_pk_bf16_f32 v%d, v%d, v%d' % (125 + 2 * t, ACC + 4 * t + 2, ACC + 4 * t + 3))
    for t in range(4): a('ds_write_b64 v8, %s offset:%d' % (vr(124 + 2 * t, 2), t * 512))
    a('v_add_u32 v9, s%d, v2' % S_T0)
    a('s_waitcnt lgkmcnt(0)')
    for k in range(2): a('ds_read_b128 %s, v9 offset:%d' % (vr(132 + 4 * k, 4), k * 1024))
    a('s_lshl_b32 s%d, s%d, 12' % (S_T0, S_CH)); a('s_lshl_b32 s%d, s%d, 11' % (S_T1, S_P)); a('s_add_u32 s%d, s%d, s%d' % (S_T0, S_T0, S_T1)); a('s_add_u32 s%d, s%d, %d' % (S_T0, S_T0, WS_YT))
    for k in range(2):
        a('s_waitcnt lgkmcnt(%d)' % (1 - k))
        a('s_add_u32 s%d, s%d, %d' % (S_T1, S_T0, k * 1024))
        a('buffer_store_dwordx4 %s, v2, s[48:51], s%d offen %s' % (vr(132 + 4 * k, 4), S_T1, st_flags))

LDS_B3 = 8 * 17408
def b3_tile(a, ld_flags='', st_flags='', wait_y=None):
    S_LB = 44
    srd(a, 32, P_Q, S * D * 2); srd(a, 48, P_WS, WS_END); srd(a, 52, P_OUT, S * 1152 * 2)
    a('s_mul_i32 s%d, s%d, 17408' % (S_LB, S_WAVE))
    a('v_and_b32 v2, 7, v0'); a('v_lshrrev_b32 v3, 3, v0')
    a('s_lshl_b32 s%d, s29, 6' % S_T0); a('v_add_u32 v4, s%d, v3' % S_T0); a('v_mul_u32_u24 v4, 1152, v4'); a('v_lshl_add_u32 v4, v2, 4, v4')
    a('s_lshl_b32 s%d, s30, 7' % S_T0); a('v_add_u32 v4, s%d, v4' % S_T0)
    Q = 64
    for j in range(8):
        a('s_mov_b32 s%d, %d' % (S_T0, j * 8 * 1152))
        a('buffer_load_dwordx4 %s, v4, s[32:35], s%d offen' % (vr(Q + 4 * j, 4), S_T0))
    if wait_y: wait_y(a)
    a('v_lshrrev_b32 v5, 1, v2'); a('v_and_b32 v6, 3, v3'); a('v_xor_b32 v5, v5, v6'); a('v_lshlrev_b32 v5, 1, v5'); a('v_and_b32 v6, 1, v2'); a('v_or_b32 v5, v5, v6')
    a('v_lshlrev_b32 v6, 12, v3'); a('v_lshl_add_u32 v6, v5, 4, v6')
    a('s_lshl_b32 s%d, s30, 18' % S_T0); a('s_lshl_b32 s%d, s29, 7' % S_T1); a('s_add_u32 s%d, s%d, s%d' % (S_T0, S_T0, S_T1)); a('s_add_u32 s%d, s%d, %d' % (S_T0, S_T0, WS_YT))
    for j in range(8):
        a('s_add_u32 m0, s%d, %d' % (S_LB, j * 1024))
        a('s_add_u32 s%d, s%d, %d' % (S_T1, S_T0, j * 8 * 4096))
        a('buffer_load_dwordx4 v6, s[48:51], s%d offen %s lds' % (S_T1, ld_flags))
    a('v_lshrrev_b32 v7, 4, v0'); a('v_bfe_u32 v8, v0, 2, 2'); a('v_and_b32 v9, 3, v0')
    a('v_xor_b32 v10, v7, v8'); a('v_lshlrev_b32 v10, 5, v10'); a('v_lshl_add_u32 v10, v8, 7, v10'); a('v_lshl_add_u32 v10, v9, 3, v10'); a('v_add_u32 v10, s%d, v10' % S_LB)
    a('v_mul_u32_u24 v11, 144, v0'); a('s_add_u32 s%d, s%d, 8192' % (S_T0, S_LB)); a('v_add_u32 v11, s%d, v11' % S_T0)
    a('s_waitcnt vmcnt(0)')
    Y = 96
    for chq in range(16): a('ds_read_b64_tr_b16 %s, v10 offset:%d' % (vr(Y + 2 * chq, 2), chq * 512))
    for chq in range(16):
        a('s_waitcnt lgkmcnt(%d)' % min(15, 15 - chq) if chq else 's_waitcnt lgkmcnt(15)')
        a('ds_write_b64 v11, %s offset:%d' % (vr(Y + 2 * chq, 2), chq * 8))
    a('v_mul_u32_u24 v12, 144, v3'); a('v_lshl_add_u32 v12, v2, 4, v12'); a('v_add_u32 v12, s%d, v12' % S_T0)
    a('s_waitcnt lgkmcnt(0)')
    for j in range(8): a('ds_read_b128 %s, v12 offset:%d' % (vr(Y + 4 * j, 4), j * 8 * 144))
    a('s_mov_b32 s45, 0xffff0000')
    a('s_lshl_b32 s%d, s29, 6' % S_T0); a('v_add_u32 v4, s%d, v3' % S_T0); a('v_mul_u32_u24 v4, 2304, v4'); a('v_lshl_add_u32 v4, v2, 4, v4')
    a('s_lshl_b32 s%d, s30, 7' % S_T0); a('s_add_u32 s%d, s%d, 1152' % (S_T0, S_T0)); a('v_add_u32 v4, s%d, v4' % S_T0)
    for j in range(8):
        a('s_waitcnt lgkmcnt(%d)' % (7 - j))
        for d in range(4):
            q_, y_ = Q + 4 * j + d, Y + 4 * j + d
            a('v_lshlrev_b32 v140, 16, v%d' % q_); a('v_and_b32 v141, s45, v%d' % q_)
            a('v_lshlrev_b32 v142, 16, v%d' % y_); a('v_and_b32 v143, s45, v%d' % y_)
            a('v_mul_f32 v140, v140, v142'); a('v_mul_f32 v141, v141, v143')
            a('v_cvt_pk_bf16_f32 v%d, v140, v141' % q_)
        a('s_mov_b32 s%d, %d' % (S_T0, j * 8 * 2304))
        a('buffer_store_dwordx4 %s, v4, s[52:55], s%d offen %s' % (vr(Q + 4 * j, 4), S_T0, st_flags))
```

```python
import sys
from common import *
import gemm1, w2out, bpart

def k_kv(name):
    a = Asm()
    a('s_cmp_ge_u32 s2, 128'); a('s_cbranch_scc1 %s_end' % name)
    prologue(a)
    a('s_and_b32 s41, s2, 7'); a('s_lshr_b32 s42, s2, 3')
    a('s_and_b32 s43, s41, 3'); a('s_lshl_b32 s43, s43, 2'); a('s_and_b32 s29, s42, 3'); a('s_add_u32 s29, s29, s43')
    a('s_lshr_b32 s43, s41, 2'); a('s_lshl_b32 s43, s43, 2'); a('s_lshr_b32 s30, s42, 2'); a('s_add_u32 s30, s30, s43')
    gemm1.gemm1_setup(a, False); gemm1.gemm1_main(a, False); gemm1.kv_epilogue(a)
    a.label(name + '_end'); a('s_endpgm')
    return a
def k_q(name):
    a = Asm()
    a('s_cmp_ge_u32 s2, 64'); a('s_cbranch_scc1 %s_end' % name)
    prologue(a)
    a('s_and_b32 s41, s2, 7'); a('s_lshr_b32 s42, s2, 3')
    a('s_and_b32 s43, s41, 3'); a('s_lshl_b32 s43, s43, 2'); a('s_and_b32 s29, s42, 3'); a('s_add_u32 s29, s29, s43')
    a('s_lshr_b32 s43, s41, 2'); a('s_lshl_b32 s43, s43, 1'); a('s_lshr_b32 s30, s42, 2'); a('s_add_u32 s30, s30, s43')
    gemm1.gemm1_setup(a, True); gemm1.gemm1_main(a, True); gemm1.q_epilogue(a)
    a.label(name + '_end'); a('s_endpgm')
    return a

def k_w2(name):
    a = Asm()
    a('s_cmp_ge_u32 s2, 36'); a('s_cbranch_scc1 %s_end' % name)
    prologue(a)
    a('s_mov_b32 s29, s2')
    w2out.w2_prefetch(a); w2out.w2_main(a)
    a.label(name + '_end'); a('s_endpgm')
    return a
def k_out(name):
    a = Asm()
    a('s_cmp_ge_u32 s2, 192'); a('s_cbranch_scc1 %s_end' % name)
    prologue(a)
    a('s_and_b32 s29, s2, 31'); a('s_lshr_b32 s30, s2, 5')
    w2out.out_setup(a); w2out.out_main(a); w2out.out_epilogue(a)
    a.label(name + '_end'); a('s_endpgm')
    return a

def wave_tile_ids(a, name):
    a('s_lshl_b32 s41, s2, 3'); a('s_add_u32 s41, s41, s28')
    a('s_cmp_ge_u32 s41, 288'); a('s_cbranch_scc1 %s_end' % name)
    a('s_mul_i32 s29, s41, 7282'); a('s_lshr_b32 s29, s29, 16'); a('s_mul_i32 s30, s29, 9'); a('s_sub_u32 s30, s41, s30')
def k_b1(name):
    a = Asm()
    a('s_cmp_ge_u32 s2, 36'); a('s_cbranch_scc1 %s_end' % name)
    prologue(a); wave_tile_ids(a, name)
    bpart.b1_tile(a)
    a.label(name + '_end'); a('s_endpgm')
    return a
def k_conv(name):
    a = Asm()
    a('s_cmp_ge_u32 s2, 144'); a('s_cbranch_scc1 %s_end' % name)
    prologue(a)
    a('s_mov_b32 s29, s2')
    bpart.conv_round(a)
    a.label(name + '_end'); a('s_endpgm')
    return a
def k_b3(name):
    a = Asm()
    a('s_cmp_ge_u32 s2, 36'); a('s_cbranch_scc1 %s_end' % name)
    prologue(a); wave_tile_ids(a, name)
    bpart.b3_tile(a)
    a.label(name + '_end'); a('s_endpgm')
    return a

def build(kernels):
    hdr = ''.join('; @launch kernel=%s grid=(%d,1,1) block=(%d,1,1) lds=%d\n' % (n, g, b, l) for n, f, g, b, l in kernels)
    out = hdr + '.amdgcn_target "amdgcn-amd-amdhsa--gfx950"\n.text\n'
    seen = set()
    for n, f, g, b, l in kernels:
        if n in seen: continue
        seen.add(n)
        a = f(n)
        lines = fix_hazards(a.lines)
        out += kernel_header(n) + '\n'.join(lines) + '\n' + kernel_desc(n)
    return out

if __name__ == '__main__':
    ks = [('kv_kernel', k_kv, 128, 512, gemm1.LDS_GEMM1), ('q_kernel', k_q, 64, 512, gemm1.LDS_GEMM1),
          ('w2_kernel', k_w2, 36, 512, w2out.LDS_W2), ('out_kernel', k_out, 192, 512, w2out.LDS_OUT),
          ('b1_kernel', k_b1, 36, 512, bpart.LDS_B1), ('conv_kernel', k_conv, 144, 512, bpart.LDS_CONV), ('b3_kernel', k_b3, 36, 512, bpart.LDS_B3)]
    open(sys.argv[1], 'w').write(build(ks))
```

```python
from asmlib import *

S, D = 2048, 576
WS_UT   = 0
WS_YT   = WS_UT + D * S * 2
WS_KVP  = WS_YT + D * S * 2
WS_PN   = WS_KVP + 128 * 14 * 1024
WS_W2T  = WS_PN + 128 * 18 * 1024
WS_FLAG = WS_W2T + 36 * 18 * 1024
WS_END  = WS_FLAG + 65536

S_KARG = 0
S_WG = 2
P_X, P_WQKV, P_WO, P_Q, P_K, P_V, P_SK, P_H = 4, 6, 8, 10, 12, 14, 16, 18
P_D, P_OUT, P_DBG, P_WS = 20, 22, 24, 26
S_WAVE = 28
KV_PAIRS = [(0,0),(1,0),(0,1),(1,1),(2,1),(1,2),(2,2),(3,2),(2,3),(3,3),(4,3),(3,4),(4,4)]

def prologue(a):
    a('s_load_dwordx16 s[4:19], s[0:1], 0')
    a('s_load_dwordx8 s[20:27], s[0:1], 64')
    a('v_lshrrev_b32 v1, 6, v0')
    a('v_and_b32 v0, 63, v0')
    a('v_readfirstlane_b32 s%d, v1' % S_WAVE)
    a('s_waitcnt lgkmcnt(0)')

def srd(a, dst, ptr, nbytes, off=None):
    if off is None:
        a('s_mov_b32 s%d, s%d' % (dst, ptr)); a('s_mov_b32 s%d, s%d' % (dst + 1, ptr + 1))
    else:
        a('s_add_u32 s%d, s%d, %s' % (dst, ptr, off)); a('s_addc_u32 s%d, s%d, 0' % (dst + 1, ptr + 1))
    a('s_mov_b32 s%d, %s' % (dst + 2, nbytes if isinstance(nbytes, str) else hex(nbytes)))
    a('s_mov_b32 s%d, 0x20000' % (dst + 3))

class LG:
    def __init__(self, a): self.a = a; self.n = 0; self.tag = {}; self.done = 0
    def issue(self, text, tags=()):
        self.a(text); self.n += 1
        for t in tags: self.tag[t] = self.n
    def wait(self, tags):
        need_ = max(self.tag[t] for t in tags)
        if need_ <= self.done: return
        k = self.n - need_
        if k > 15: k = 15; need_ = self.n - 15
        self.a('s_waitcnt lgkmcnt(%d)' % k); self.done = need_
    def waitall(self):
        if self.done < self.n: self.a('s_waitcnt lgkmcnt(0)'); self.done = self.n

def kernel_header(name):
    return '.globl %s\n.p2align 8\n.type %s,@function\n%s:\n' % (name, name, name)
def kernel_desc(name, vgpr=256, sgpr=102):
    return ('.section .rodata,"a"\n.p2align 6\n.amdhsa_kernel %s\n  .amdhsa_next_free_vgpr %d\n  .amdhsa_next_free_sgpr %d\n  .amdhsa_accum_offset %d\n'
            '  .amdhsa_group_segment_fixed_size 0\n  .amdhsa_kernarg_size 96\n  .amdhsa_user_sgpr_count 2\n  .amdhsa_user_sgpr_kernarg_segment_ptr 1\n'
            '  .amdhsa_system_sgpr_workgroup_id_x 1\n  .amdhsa_float_denorm_mode_32 3\n.end_amdhsa_kernel\n.text\n' % (name, vgpr, sgpr, (vgpr + 3) // 4 * 4))
```

```python
from common import *

SLOT = 36864
NSLOT = 4
XOFF, WOFF, DUMOFF = 0, 16384, 35840
LDS_GEMM1 = SLOT * NSLOT
V_ACC = 64
V_XF = 104
V_WF = 120
V_XA0, V_XA1, V_WA = 10, 11, 12
V_XT0, V_XT1, V_WT = 13, 14, 15
V_GX, V_GW0, V_GW1, V_GW2 = 16, 17, 18, 19
S_RT, S_CG = 29, 30
SRD_X, SRD_W = 32, 36
S_M3 = 40; S_T0, S_T1, S_T2 = 41, 42, 43
S_MX = 44
S_MW = 45

def acc(t, mt): return V_ACC + (t * 2 + mt) * 4

def gemm1_setup(a, isq):
    srd(a, SRD_X, P_X, S * D * 2)
    srd(a, SRD_W, P_WQKV, D * 3 * D * 2)
    a('v_lshrrev_b32 v2, 3, v0')
    a('v_and_b32 v3, 7, v0')
    a('v_xor_b32 v3, v3, v2')
    a('v_lshlrev_b32 v3, 4, v3')
    a('s_lshl_b32 s%d, s%d, 7' % (S_T0, S_RT))
    a('s_lshl_b32 s%d, s%d, 4' % (S_T1, S_WAVE))
    a('s_add_u32 s%d, s%d, s%d' % (S_T0, S_T0, S_T1))
    a('v_add_u32 v2, s%d, v2' % S_T0)
    a('v_mul_u32_u24 v2, 1152, v2')
    a('v_add_u32 v%d, v2, v3' % V_GX)
    if isq:
        a('s_mul_i32 s%d, s%d, 288' % (S_T1, S_CG))
    else:
        a('s_mul_i32 s%d, s%d, 144' % (S_T1, S_CG))
        a('s_add_u32 s%d, s%d, 1152' % (S_T1, S_T1))
    for k, vg in enumerate((V_GW0, V_GW1, V_GW2)):
        a('s_lshl_b32 s%d, s%d, 6' % (S_T0, S_WAVE))
        a('s_add_u32 s%d, s%d, %d' % (S_T0, S_T0, 512 * k))
        a('v_add_u32 v2, s%d, v0' % S_T0)
        a('v_mul_u32_u24 v3, 27595, v2')
        a('v_lshrrev_b32 v3, 22, v3')
        a('v_mul_u32_u24 v4, 152, v3')
        a('v_sub_u32 v4, v2, v4')
        a('v_min_u32 v4, 143, v4')
        a('v_mul_u32_u24 v5, 3641, v4')
        a('v_lshrrev_b32 v5, 16, v5')
        a('v_mul_u32_u24 v6, 18, v5')
        a('v_sub_u32 v6, v4, v6')
        a('v_lshl_add_u32 v5, v3, 3, v5')
        a('v_mul_u32_u24 v5, 3456, v5')
        a('v_lshlrev_b32 v7, 4, v6')
        if not isq:
            a('v_cmp_le_u32 vcc, 9, v6')
            a('v_mov_b32 v8, 0')
            a('v_mov_b32 v9, 1008')
            a('v_cndmask_b32 v8, v8, v9, vcc')
            a('v_add_u32 v7, v7, v8')
        a('v_add_u32 v5, v5, v7')
        a('v_add_u32 v%d, s%d, v5' % (vg, S_T1))
    a('s_cmp_lt_u32 s%d, 3' % S_WAVE)
    lab = a.newlabel('Lw3')
    a('s_cbranch_scc1 %s' % lab)
    a('v_mov_b32 v%d, 0' % V_GW2)
    a.label(lab)
    a('s_lshl_b32 s%d, s%d, 10' % (S_T0, S_WAVE))
    a('s_add_u32 s%d, s%d, %d' % (S_MW, S_T0, WOFF))
    a('s_add_u32 s%d, s%d, %d' % (S_T0, S_T0, WOFF + 16 * 1024))
    a('s_cmp_lt_u32 s%d, 3' % S_WAVE)
    a('s_cselect_b32 s%d, s%d, %d' % (S_M3, S_T0, DUMOFF))
    a('s_lshl_b32 s%d, s%d, 11' % (S_MX, S_WAVE))
    a('s_and_b32 s%d, s%d, 3' % (S_T0, S_WAVE))
    a('s_lshl_b32 s%d, s%d, 12' % (S_T0, S_T0))
    a('v_and_b32 v2, 15, v0')
    a('v_lshrrev_b32 v3, 4, v0')
    a('v_and_b32 v4, 7, v2')
    a('v_xor_b32 v4, v4, v3')
    a('v_lshlrev_b32 v4, 4, v4')
    a('v_lshl_add_u32 v4, v2, 7, v4')
    a('v_add_u32 v%d, s%d, v4' % (V_XA0, S_T0))
    a('v_xor_b32 v%d, 64, v%d' % (V_XA1, V_XA0))
    a('s_lshr_b32 s%d, s%d, 2' % (S_T0, S_WAVE))
    a('s_mul_i32 s%d, s%d, 144' % (S_T0, S_T0))
    a('s_add_u32 s%d, s%d, %d' % (S_T0, S_T0, WOFF))
    a('v_mul_u32_u24 v4, 2432, v3')
    a('v_bfe_u32 v5, v0, 2, 2')
    a('v_mul_u32_u24 v5, 288, v5')
    a('v_and_b32 v6, 3, v0')
    a('v_lshlrev_b32 v6, 3, v6')
    a('v_add3_u32 v4, v4, v5, v6')
    a('v_add_u32 v%d, s%d, v4' % (V_WA, S_T0))

def dma_stage(a, st):
    slot = (st % NSLOT) * SLOT
    a('s_add_u32 m0, s%d, %d' % (S_MX, slot + XOFF))
    a('s_mov_b32 s%d, %d' % (S_T2, st * 128))
    a('buffer_load_dwordx4 v%d, s[%d:%d], s%d offen lds' % (V_GX, SRD_X, SRD_X + 3, S_T2))
    a('s_add_u32 m0, s%d, %d' % (S_MX, slot + XOFF + 1024))
    a('s_mov_b32 s%d, %d' % (S_T2, st * 128 + 8 * 1152))
    a('buffer_load_dwordx4 v%d, s[%d:%d], s%d offen lds' % (V_GX, SRD_X, SRD_X + 3, S_T2))
    a('s_add_u32 m0, s%d, %d' % (S_MW, slot))
    a('s_mov_b32 s%d, %d' % (S_T2, st * 64 * 3456))
    a('buffer_load_dwordx4 v%d, s[%d:%d], s%d offen lds' % (V_GW0, SRD_W, SRD_W + 3, S_T2))
    a('s_add_u32 m0, s%d, %d' % (S_MW, slot + 8192))
    a('s_nop 0')
    a('buffer_load_dwordx4 v%d, s[%d:%d], s%d offen lds' % (V_GW1, SRD_W, SRD_W + 3, S_T2))
    a('s_add_u32 m0, s%d, %d' % (S_M3, slot))
    a('s_nop 0')
    a('buffer_load_dwordx4 v%d, s[%d:%d], s%d offen lds' % (V_GW2, SRD_W, SRD_W + 3, S_T2))

def gemm1_main(a, isq):
    NST = 9
    for r in range(40): a('v_mov_b32 v%d, 0' % (V_ACC + r))
    for st in range(3): dma_stage(a, st)
    lg = LG(a)
    def xf(s_, mt): return V_XF + (s_ * 2 + mt) * 4
    def wf(s_, t): return V_WF + (s_ * 5 + t) * 4
    def set_bases(st):
        slot = (st % NSLOT) * SLOT
        a('v_add_u32 v%d, %d, v%d' % (V_XT0, slot, V_XA0))
        a('v_add_u32 v%d, %d, v%d' % (V_XT1, slot, V_XA1))
        a('v_add_u32 v%d, %d, v%d' % (V_WT, slot, V_WA))
    def reads(st, ks):
        L = []
        xa = V_XT0 if ks == 0 else V_XT1
        for mt in range(2):
            L.append(('ds_read_b128 %s, v%d offset:%d' % (vr(xf(ks, mt), 4), xa, mt * 2048), [('x', st, ks, mt)]))
        for t in range(5):
            for q in range(2):
                L.append(('ds_read_b64_tr_b16 %s, v%d offset:%d' % (vr(wf(ks, t) + 2 * q, 2), V_WT, ks * 9728 + q * 1152 + 32 * t), [('w', st, ks, t, q)]))
        return L
    def mfmas(st, ks, pending, extra=None):
        pending = list(pending)
        for t in range(5):
            lg.wait([('x', st, ks, 0), ('x', st, ks, 1), ('w', st, ks, t, 0), ('w', st, ks, t, 1)])
            for mt in range(2):
                A, B = (xf(ks, mt), wf(ks, t)) if not isq else (wf(ks, t), xf(ks, mt))
                a('v_mfma_f32_16x16x32_bf16 %s, %s, %s, %s' % (vr(acc(t, mt), 4), vr(A, 4), vr(B, 4), vr(acc(t, mt), 4)))
                n = 2 if mt == 0 else 1
                if t == 4 and mt == 1: n = 99
                for _ in range(n):
                    if pending:
                        txt, tags = pending.pop(0); lg.issue(txt, tags)
            if extra and t < len(extra): extra[t]()
    a('s_waitcnt vmcnt(10)')
    a('s_barrier')
    set_bases(0)
    for txt, tags in reads(0, 0): lg.issue(txt, tags)
    for st in range(NST):
        mfmas(st, 0, reads(st, 1))
        if st + 1 < NST:
            rem = min(2, NST - 1 - (st + 1))
            inflight_after = 5 * (1 if st + 2 < NST else 0)
            a('s_waitcnt vmcnt(%d)' % inflight_after)
            a('s_barrier')
            set_bases(st + 1)
            nxt = reads(st + 1, 0)
            ex = None
            if st + 3 < NST:
                ex = [lambda s_=st: dma_stage(a, s_ + 3)]
            mfmas(st, 1, nxt, ex)
        else:
            mfmas(st, 1, [])
    lg.waitall()

LOG2E = 0x3fb8aa3b
EPS6 = 0x358637bd
def phi(a, regs, tmp, s_l2e, s_eps):
    for k0 in range(0, len(regs), 8):
        grp = regs[k0:k0 + 8]
        for j, r in enumerate(grp): a('v_mul_f32 v%d, s%d, v%d' % (tmp + j, s_l2e, r))
        for j, r in enumerate(grp): a('v_exp_f32 v%d, v%d clamp' % (tmp + j, tmp + j))
        for j, r in enumerate(grp): a('v_max_f32 v%d, 0, v%d' % (r, r))
        for j, r in enumerate(grp): a('v_add_f32 v%d, s%d, v%d' % (tmp + j, s_eps, tmp + j))
        for j, r in enumerate(grp): a('v_add_f32 v%d, v%d, v%d' % (r, r, tmp + j))

def kv_epilogue(a, st_flags=''):
    S_L2E, S_EPS = 46, 47
    a('s_mov_b32 s%d, 0x%x' % (S_L2E, LOG2E)); a('s_mov_b32 s%d, 0x%x' % (S_EPS, EPS6))
    lab = a.newlabel('Lvwave')
    a('s_cmp_ge_u32 s%d, 4' % S_WAVE)
    a('s_cbranch_scc1 %s' % lab)
    phi(a, [V_ACC + r for r in range(40)], 104, S_L2E, S_EPS)
    a.label(lab)
    for t in range(5):
        f = 120 + 4 * t
        a('v_cvt_pk_bf16_f32 v%d, v%d, v%d' % (f + 0, acc(t, 0) + 0, acc(t, 0) + 1))
        a('v_cvt_pk_bf16_f32 v%d, v%d, v%d' % (f + 1, acc(t, 0) + 2, acc(t, 0) + 3))
        a('v_cvt_pk_bf16_f32 v%d, v%d, v%d' % (f + 2, acc(t, 1) + 0, acc(t, 1) + 1))
        a('v_cvt_pk_bf16_f32 v%d, v%d, v%d' % (f + 3, acc(t, 1) + 2, acc(t, 1) + 3))
    a('s_barrier')
    a('s_and_b32 s%d, s%d, 3' % (S_T0, S_WAVE)); a('s_mul_i32 s%d, s%d, 10240' % (S_T0, S_T0))
    a('s_lshr_b32 s%d, s%d, 2' % (S_T1, S_WAVE)); a('s_mul_i32 s%d, s%d, 5120' % (S_T1, S_T1))
    a('s_add_u32 s%d, s%d, s%d' % (S_T0, S_T0, S_T1))
    a('v_lshlrev_b32 v2, 4, v0')
    a('v_add_u32 v3, s%d, v2' % S_T0)
    for t in range(5): a('ds_write_b128 v3, %s offset:%d' % (vr(120 + 4 * t, 4), t * 1024))
    a('s_waitcnt lgkmcnt(0)')
    a('s_barrier')
    srd(a, 48, P_WS, WS_END)
    a('s_lshl_b32 s%d, s%d, 4' % (S_T0, S_CG)); a('s_add_u32 s%d, s%d, s%d' % (S_T0, S_T0, S_RT))
    a('s_mul_i32 s%d, s%d, %d' % (S_T0, S_T0, 14 * 1024)); a('s_add_u32 s%d, s%d, %d' % (S_T0, S_T0, WS_KVP))
    a('v_mov_b32 v8, 0x3f803f80')
    ones = 150
    for k in range(4): a('v_mov_b32 v%d, 0x3f803f80' % (ones + k))
    end = a.newlabel('Lkvend')
    for w in range(8):
        nxt = a.newlabel('Lkvw')
        a('s_cmp_eq_u32 s%d, %d' % (S_WAVE, w)); a('s_cbranch_scc0 %s' % nxt)
        tiles = [p for p in (w, w + 8, w + 16) if p < 18]
        lg = LG(a)
        reg = 64
        plan = []
        for p in tiles:
            fa = []; fb = []
            for mw in range(4):
                if p < 13:
                    b_, a_ = KV_PAIRS[p]
                    lg.issue('ds_read_b128 %s, v2 offset:%d' % (vr(reg, 4), mw * 10240 + 5120 + b_ * 1024), [('A', p, mw)]); fa.append(reg); reg += 4
                else:
                    a_ = p - 13; fa.append(ones)
                lg.issue('ds_read_b128 %s, v2 offset:%d' % (vr(reg, 4), mw * 10240 + a_ * 1024), [('B', p, mw)]); fb.append(reg); reg += 4
            plan.append((p, fa, fb))
        assert reg <= 150
        dreg = 160
        for n_, (p, fa, fb) in enumerate(plan):
            d = dreg + 4 * n_
            for k in range(4): a('v_mov_b32 v%d, 0' % (d + k))
            for mw in range(4):
                tg = [('B', p, mw)] + ([('A', p, mw)] if p < 13 else [])
                lg.wait(tg)
                a('v_mfma_f32_16x16x32_bf16 %s, %s, %s, %s' % (vr(d, 4), vr(fa[mw], 4), vr(fb[mw], 4), vr(d, 4)))
        for n_, (p, fa, fb) in enumerate(plan):
            d = dreg + 4 * n_
            if p < 13:
                a('s_add_u32 s%d, s%d, %d' % (S_T1, S_T0, p * 1024))
                a('buffer_store_dwordx4 %s, v2, s[48:51], s%d offen %s' % (vr(d, 4), S_T1, st_flags))
            else:
                a('s_add_u32 s%d, s%d, %d' % (S_T1, S_T0, 13 * 1024 + (p - 13) * 64))
                a('v_lshlrev_b32 v3, 2, v0')
                a('s_mov_b64 s[52:53], exec')
                a('s_mov_b64 exec, 0xffff')
                a('buffer_store_dword v%d, v3, s[48:51], s%d offen %s' % (d, S_T1, st_flags))
                a('s_mov_b64 exec, s[52:53]')
        a('s_branch %s' % end)
        a.label(nxt)
    a.label(end)


def q_epilogue(a, st_flags='', ld_flags='', wait_z=None):
    S_L2E, S_EPS = 46, 47
    a('s_mov_b32 s%d, 0x%x' % (S_L2E, LOG2E)); a('s_mov_b32 s%d, 0x%x' % (S_EPS, EPS6))
    srd(a, 48, P_WS, WS_END)
    phi(a, [V_ACC + r for r in range(40)], 104, S_L2E, S_EPS)
    PB = 120
    def pb(mt, j): return PB + (mt * 3 + j) * 4
    for mt in range(2):
        for t in range(5):
            d = pb(mt, t // 2) + 2 * (t % 2)
            a('v_cvt_pk_bf16_f32 v%d, v%d, v%d' % (d, acc(t, mt), acc(t, mt) + 1))
            a('v_cvt_pk_bf16_f32 v%d, v%d, v%d' % (d + 1, acc(t, mt) + 2, acc(t, mt) + 3))
        a('v_mov_b32 v%d, 0' % (pb(mt, 2) + 2)); a('v_mov_b32 v%d, 0' % (pb(mt, 2) + 3))
    if wait_z: wait_z(a)
    Z = 144
    a('s_lshr_b32 s%d, s%d, 2' % (S_T0, S_WAVE))
    a('s_lshl_b32 s%d, s%d, 1' % (S_T1, S_CG))
    a('s_add_u32 s%d, s%d, s%d' % (S_T1, S_T1, S_T0))
    a('s_mul_i32 s%d, s%d, %d' % (S_T1, S_T1, 16 * 14 * 1024))
    a('s_add_u32 s%d, s%d, %d' % (S_T1, S_T1, WS_KVP + 13 * 1024))
    a('v_and_b32 v2, 15, v0')
    a('v_lshrrev_b32 v3, 4, v0')
    a('v_mul_u32_u24 v4, %d, v2' % (14 * 1024))
    a('v_lshl_add_u32 v4, v3, 4, v4')
    for t in range(5):
        a('buffer_load_dwordx4 %s, v4, s[48:51], s%d offen offset:%d %s' % (vr(Z + 4 * t, 4), S_T1, 64 * t, ld_flags))
    a('v_and_b32 v5, 3, v2')
    a('v_mul_u32_u24 v5, 18, v5')
    a('v_lshlrev_b32 v6, 2, v3')
    a('v_sub_u32 v5, v6, v5')
    a('s_waitcnt vmcnt(0)')
    for sh in (8, 4, 2, 1):
        for k in range(20):
            a('v_add_f32_dpp v%d, v%d, v%d row_ror:%d row_mask:0xf bank_mask:0xf' % (Z + k, Z + k, Z + k, sh))
    for t in range(5):
        for r in range(4):
            a('v_add_u32 v6, %d, v5' % (16 * t + r))
            a('v_cmp_gt_u32 vcc, 18, v6')
            a('v_cndmask_b32 v%d, 0, v%d, vcc' % (Z + 4 * t + r, Z + 4 * t + r))
    ZA = 164
    for t in range(5):
        d = ZA + 4 * (t // 2) + 2 * (t % 2)
        a('v_cvt_pk_bf16_f32 v%d, v%d, v%d' % (d, Z + 4 * t, Z + 4 * t + 1))
        a('v_cvt_pk_bf16_f32 v%d, v%d, v%d' % (d + 1, Z + 4 * t + 2, Z + 4 * t + 3))
    a('v_mov_b32 v%d, 0' % (ZA + 10)); a('v_mov_b32 v%d, 0' % (ZA + 11))
    DEN = 176
    for mt in range(2):
        for k in range(4): a('v_mov_b32 v%d, 0' % (DEN + 4 * mt + k))
    for j in range(3):
        for mt in range(2):
            a('v_mfma_f32_16x16x32_bf16 %s, %s, %s, %s' % (vr(DEN + 4 * mt, 4), vr(ZA + 4 * j, 4), vr(pb(mt, j), 4), vr(DEN + 4 * mt, 4)))
    a('s_mov_b64 s[54:55], 0xffff')
    a('s_mov_b32 s56, -1'); a('s_mov_b32 s57, 0')
    for mt in range(2):
        for k in range(4): a('v_add_f32 v%d, s%d, v%d' % (DEN + 4 * mt + k, S_EPS, DEN + 4 * mt + k))
    for mt in range(2):
        for k in range(4): a('v_rcp_f32 v%d, v%d' % (DEN + 4 * mt + k, DEN + 4 * mt + k))
    SEL = 184
    for mt in range(2):
        rd = DEN + 4 * mt; s_ = SEL + 4 * mt
        a('v_cndmask_b32 v%d, v%d, v%d, s[54:55]' % (s_ + 0, rd + 1, rd + 0))
        a('v_cndmask_b32 v%d, v%d, v%d, s[54:55]' % (s_ + 1, rd + 2, rd + 1))
        a('v_cndmask_b32 v%d, v%d, v%d, s[56:57]' % (s_ + 2, rd + 3, rd + 2))
        a('v_cndmask_b32 v%d, v%d, v%d, s[54:55]' % (s_ + 3, rd + 3, rd + 2))
    for mt in range(2):
        rd = DEN + 4 * mt; s_ = SEL + 4 * mt
        for t in range(5):
            for r in range(4):
                if t == 0: m = rd + 0
                elif t == 1: m = s_ + 0 if r < 2 else rd + 1
                elif t == 2: m = s_ + 1
                elif t == 3: m = s_ + 2 if r < 2 else s_ + 3
                else: m = rd + 3
                a('v_mul_f32 v%d, v%d, v%d' % (acc(t, mt) + r, acc(t, mt) + r, m))
    for mt in range(2):
        for t in range(5):
            d = pb(mt, t // 2) + 2 * (t % 2)
            a('v_cvt_pk_bf16_f32 v%d, v%d, v%d' % (d, acc(t, mt), acc(t, mt) + 1))
            a('v_cvt_pk_bf16_f32 v%d, v%d, v%d' % (d + 1, acc(t, mt) + 2, acc(t, mt) + 3))
    a('s_and_b32 s%d, s%d, 3' % (S_T0, S_WAVE)); a('s_lshl_b32 s%d, s%d, 1' % (S_T0, S_T0))
    a('s_lshl_b32 s%d, s%d, 3' % (S_T1, S_RT)); a('s_add_u32 s%d, s%d, s%d' % (S_T0, S_T0, S_T1))
    a('s_mul_i32 s%d, s%d, %d' % (S_T0, S_T0, 18 * 1024)); a('s_add_u32 s%d, s%d, %d' % (S_T0, S_T0, WS_PN))
    a('s_lshr_b32 s%d, s%d, 2' % (S_T1, S_WAVE))
    a('s_lshl_b32 s58, s%d, 2' % S_CG); a('s_lshl_b32 s59, s%d, 1' % S_T1); a('s_add_u32 s58, s58, s59')
    a('s_lshl_b32 s58, s58, 10'); a('s_add_u32 s58, s58, s%d' % S_T0)
    a('s_lshr_b32 s59, s%d, 1' % S_CG); a('s_add_u32 s59, s59, 16'); a('s_lshl_b32 s59, s59, 10'); a('s_add_u32 s59, s59, s%d' % S_T0)
    a('s_and_b32 s60, s%d, 1' % S_CG); a('s_lshl_b32 s60, s60, 3'); a('s_add_u32 s59, s59, s60')
    a('s_lshl_b32 s60, s%d, 9' % S_T1); a('s_add_u32 s59, s59, s60')
    a('v_lshlrev_b32 v2, 4, v0')
    for mt in range(2):
        for j in range(2):
            a('s_add_u32 s60, s58, %d' % (mt * 18 * 1024 + j * 1024))
            a('buffer_store_dwordx4 %s, v2, s[48:51], s60 offen %s' % (vr(pb(mt, j), 4), st_flags))
    a('s_mov_b64 s[52:53], exec')
    a('s_mov_b64 exec, s[56:57]')
    for mt in range(2):
        a('s_add_u32 s60, s59, %d' % (mt * 18 * 1024))
        a('buffer_store_dwordx2 %s, v2, s[48:51], s60 offen %s' % (vr(pb(mt, 2), 2), st_flags))
    a('s_mov_b64 exec, s[52:53]')
```

```python
from common import *
S_T0, S_T1, S_T2 = 41, 42, 43
S_TASK = 29

W2_PITCH = 1184
LDS_W2_RED = 0
LDS_W2_AF = 32768
LDS_W2_WO = 34816
LDS_W2 = LDS_W2_WO + 81920
PIDX = {pr: p for p, pr in enumerate(KV_PAIRS)}

def w2_prefetch(a):
    srd(a, 32, P_WO, D * D * 2)
    a('s_cmp_lt_u32 s%d, 32' % S_TASK)
    lm = a.newlabel('Lw2m'); le = a.newlabel('Lw2e')
    a('s_cbranch_scc0 %s' % lm)
    a('s_lshr_b32 s30, s%d, 2' % S_TASK); a('s_and_b32 s31, s%d, 3' % S_TASK)
    a('s_max_u32 s%d, s31, 1' % S_T0); a('s_sub_u32 s%d, s%d, 1' % (S_T0, S_T0)); a('s_lshl_b32 s%d, s%d, 4' % (S_T0, S_T0))
    a('s_mul_i32 s%d, s30, 72' % S_T1); a('s_add_u32 s%d, s%d, s%d' % (S_T0, S_T0, S_T1))
    a('s_mov_b32 s%d, 0' % S_T1)
    a('s_branch %s' % le)
    a.label(lm)
    a('s_sub_u32 s30, s%d, 32' % S_TASK); a('s_lshl_b32 s30, s30, 1'); a('s_mov_b32 s31, 4')
    a('s_mul_i32 s%d, s30, 72' % S_T0); a('s_add_u32 s%d, s%d, 48' % (S_T0, S_T0))
    a('s_mov_b32 s%d, 40' % S_T1)
    a.label(le)
    a('s_lshl_b32 s%d, s%d, 6' % (S_T2, S_WAVE))
    a('s_lshl_b32 s44, s%d, 10' % S_WAVE)
    for k in range(10):
        a('v_add_u32 v2, s%d, v0' % S_T2)
        if k: a('v_add_u32 v2, %d, v2' % (512 * k))
        a('v_mul_u32_u24 v3, 3543, v2')
        a('v_lshrrev_b32 v3, 18, v3')
        a('v_mul_u32_u24 v4, 74, v3')
        a('v_sub_u32 v4, v2, v4')
        a('v_min_u32 v4, 71, v4')
        a('v_cmp_le_u32 vcc, 32, v3')
        a('v_mov_b32 v5, s%d' % S_T1)
        a('v_cndmask_b32 v5, 0, v5, vcc')
        a('v_add3_u32 v3, v3, v5, s%d' % S_T0)
        a('v_mul_u32_u24 v3, 1152, v3')
        a('v_lshl_add_u32 v3, v4, 4, v3')
        a('s_add_u32 m0, s44, %d' % (LDS_W2_WO + k * 8192))
        a('s_nop 0')
        a('buffer_load_dwordx4 v3, s[32:35], 0 offen lds')
for q in range(5120): assert (q * 3543) >> 18 == q // 74, q

def w2_main(a, st_flags='', ld_flags='', wait_kv=None):
    srd(a, 48, P_WS, WS_END)
    if wait_kv: wait_kv(a)
    end = a.newlabel('Lw2end')
    a('v_lshlrev_b32 v2, 4, v0')
    a('v_and_b32 v6, 15, v0'); a('v_lshrrev_b32 v7, 4, v0')
    for var in range(5):
        nxt = a.newlabel('Lw2v')
        a('s_cmp_eq_u32 s31, %d' % var); a('s_cbranch_scc0 %s' % nxt)
        if var == 0: tiles = [(0, 0, 0), (0, 1, 0)]
        elif var == 1: tiles = [(0, 0, 1), (0, 1, 1), (0, 2, 1)]
        elif var == 2: tiles = [(0, 1, 2), (0, 2, 2), (0, 3, 2)]
        elif var == 3: tiles = [(0, 2, 3), (0, 3, 3), (0, 4, 3)]
        else: tiles = [(0, 3, 4), (0, 4, 4), (1, 3, 4), (1, 4, 4)]
        a('s_lshl_b32 s%d, s30, 4' % S_T0); a('s_lshl_b32 s%d, s%d, 1' % (S_T1, S_WAVE)); a('s_add_u32 s%d, s%d, s%d' % (S_T0, S_T0, S_T1))
        a('s_mul_i32 s%d, s%d, %d' % (S_T0, S_T0, 14 * 1024)); a('s_add_u32 s%d, s%d, %d' % (S_T0, S_T0, WS_KVP))
        if var == 4:
            a('v_cmp_le_u32 vcc, 8, v6')
            a('v_subrev_u32 v8, 128, v2')
            a('v_cndmask_b32 v8, v2, v8, vcc')
        for q, (dh, b, a_) in enumerate(tiles):
            for rr in range(2):
                off = dh * 16 * 14 * 1024 + rr * 14 * 1024 + PIDX[(b, a_)] * 1024
                a('s_add_u32 s%d, s%d, %d' % (S_T1, S_T0, off))
                va = 8 if (var == 4 and dh == 1) else 2
                a('buffer_load_dwordx4 %s, v%d, s[48:51], s%d offen %s' % (vr(64 + 8 * q + 4 * rr, 4), va, S_T1, ld_flags))
        a('s_lshl_b32 s%d, s%d, 12' % (S_T0, S_WAVE))
        a('v_add_u32 v9, s%d, v2' % S_T0)
        for q in range(len(tiles)):
            a('s_waitcnt vmcnt(%d)' % (2 * (len(tiles) - 1 - q)))
            for k in range(4): a('v_add_f32 v%d, v%d, v%d' % (64 + 8 * q + k, 64 + 8 * q + k, 64 + 8 * q + 4 + k))
            a('ds_write_b128 v9, %s offset:%d' % (vr(64 + 8 * q, 4), LDS_W2_RED + q * 1024))
        a('s_waitcnt lgkmcnt(0)')
        a('s_barrier')
        skip = a.newlabel('Lw2skip')
        a('s_cmp_ge_u32 s%d, 4' % S_WAVE); a('s_cbranch_scc1 %s' % skip)
        zl = a.newlabel('Lw2z'); dn = a.newlabel('Lw2d')
        a('s_cmp_ge_u32 s%d, %d' % (S_WAVE, len(tiles))); a('s_cbranch_scc1 %s' % zl)
        a('s_lshl_b32 s%d, s%d, 10' % (S_T0, S_WAVE))
        a('v_add_u32 v9, s%d, v2' % S_T0)
        for w in range(8): a('ds_read_b128 %s, v9 offset:%d' % (vr(64 + 4 * w, 4), LDS_W2_RED + w * 4096))
        a_ = tiles[0][2]
        if var == 4:
            a('s_cmp_ge_u32 s%d, 2' % S_WAVE); a('s_cselect_b32 s%d, 8, 0' % S_T1)
            a('v_subrev_u32 v10, s%d, v6' % S_T1)
            a('v_cmp_gt_u32 vcc, 8, v10')
            a('v_mov_b32 v11, 54'); a('v_mov_b32 v12, 0x10000')
            a('v_cndmask_b32 v11, v12, v11, vcc')
        else:
            a('v_add_u32 v10, %d, v6' % (16 * a_))
            a('v_mul_u32_u24 v11, 3641, v10'); a('v_lshrrev_b32 v11, 16, v11'); a('v_mul_u32_u24 v11, 18, v11')
        bl = [t_[1] for t_ in tiles] + [0] * (4 - len(tiles))
        a('s_mov_b32 s%d, 0x%x' % (S_T1, sum(b << (8 * k) for k, b in enumerate(bl))))
        a('s_lshl_b32 s%d, s%d, 3' % (S_T2, S_WAVE)); a('s_lshr_b32 s%d, s%d, s%d' % (S_T1, S_T1, S_T2)); a('s_and_b32 s%d, s%d, 0xff' % (S_T1, S_T1))
        a('s_lshl_b32 s%d, s%d, 4' % (S_T1, S_T1))
        a('v_lshlrev_b32 v12, 2, v7'); a('v_add_u32 v12, s%d, v12' % S_T1); a('v_sub_u32 v12, v12, v11')
        a('s_waitcnt lgkmcnt(0)')
        for k in range(4):
            for w in range(1, 8): a('v_add_f32 v%d, v%d, v%d' % (64 + k, 64 + k, 64 + 4 * w + k))
        for r in range(4):
            a('v_add_u32 v13, %d, v12' % r)
            a('v_cmp_gt_u32 vcc, 18, v13')
            a('v_cndmask_b32 v%d, 0, v%d, vcc' % (64 + r, 64 + r))
        a('v_cvt_pk_bf16_f32 v68, v64, v65'); a('v_cvt_pk_bf16_f32 v69, v66, v67')
        a('s_branch %s' % dn)
        a.label(zl)
        a('v_mov_b32 v68, 0'); a('v_mov_b32 v69, 0')
        a.label(dn)
        a('s_lshr_b32 s%d, s%d, 1' % (S_T0, S_WAVE)); a('s_lshl_b32 s%d, s%d, 10' % (S_T0, S_T0))
        a('s_and_b32 s%d, s%d, 1' % (S_T1, S_WAVE)); a('s_lshl_b32 s%d, s%d, 3' % (S_T1, S_T1)); a('s_add_u32 s%d, s%d, s%d' % (S_T0, S_T0, S_T1))
        a('v_add_u32 v9, s%d, v2' % S_T0)
        a('ds_write_b64 v9, v[68:69] offset:%d' % LDS_W2_AF)
        a.label(skip)
        a('s_branch %s' % end)
        a.label(nxt)
    a.label(end)
    a('s_waitcnt vmcnt(0) lgkmcnt(0)')
    a('s_barrier')
    a('ds_read_b128 v[64:67], v2 offset:%d' % LDS_W2_AF)
    a('ds_read_b128 v[68:71], v2 offset:%d' % (LDS_W2_AF + 1024))
    a('v_bfe_u32 v8, v0, 2, 2'); a('v_lshl_add_u32 v8, v7, 2, v8'); a('v_mul_u32_u24 v8, %d, v8' % W2_PITCH)
    a('v_and_b32 v9, 3, v0'); a('v_lshl_add_u32 v8, v9, 3, v8')
    a('s_lshl_b32 s%d, s%d, 5' % (S_T0, S_WAVE)); a('s_add_u32 s%d, s%d, %d' % (S_T0, S_T0, LDS_W2_WO)); a('v_add_u32 v8, s%d, v8' % S_T0)
    lm = a.newlabel('Lw2j'); le = a.newlabel('Lw2k')
    a('s_cmp_lt_u32 s31, 4'); a('s_cbranch_scc0 %s' % lm)
    a('s_lshl_b32 s%d, s30, 1' % S_T0); a('s_lshr_b32 s%d, s31, 1' % S_T1); a('s_add_u32 s%d, s%d, s%d' % (S_T0, S_T0, S_T1)); a('s_and_b32 s%d, s31, 1' % S_T1)
    a('s_branch %s' % le)
    a.label(lm)
    a('s_lshr_b32 s%d, s30, 2' % S_T0); a('s_add_u32 s%d, s%d, 16' % (S_T0, S_T0)); a('s_lshr_b32 s%d, s30, 1' % S_T1); a('s_and_b32 s%d, s%d, 1' % (S_T1, S_T1))
    a.label(le)
    a('s_lshl_b32 s%d, s%d, 10' % (S_T0, S_T0)); a('s_lshl_b32 s%d, s%d, 3' % (S_T1, S_T1)); a('s_add_u32 s%d, s%d, s%d' % (S_T0, S_T0, S_T1))
    a('s_mul_i32 s%d, s%d, %d' % (S_T1, S_WAVE, 18 * 1024)); a('s_add_u32 s%d, s%d, s%d' % (S_T0, S_T0, S_T1)); a('s_add_u32 s%d, s%d, %d' % (S_T0, S_T0, WS_W2T))
    lg = LG(a)
    a('s_waitcnt lgkmcnt(0)')
    for k in range(5):
        if k == 4:
            skip = a.newlabel('Lw2t'); a('s_cmp_ge_u32 s%d, 4' % S_WAVE); a('s_cbranch_scc1 %s' % skip)
        for u in range(2):
            for h in range(2):
                a('ds_read_b64_tr_b16 %s, v8 offset:%d' % (vr(72 + 4 * u + 2 * h, 2), (u * 32 + h * 16) * W2_PITCH + 256 * k))
        for r in range(4): a('v_mov_b32 v%d, 0' % (80 + r))
        a('s_waitcnt lgkmcnt(2)')
        a('v_mfma_f32_16x16x32_bf16 v[80:83], v[64:67], v[72:75], v[80:83]')
        a('s_waitcnt lgkmcnt(0)')
        a('v_mfma_f32_16x16x32_bf16 v[80:83], v[68:71], v[76:79], v[80:83]')
        a('v_cvt_pk_bf16_f32 v84, v80, v81'); a('v_cvt_pk_bf16_f32 v85, v82, v83')
        a('s_add_u32 s%d, s%d, %d' % (S_T1, S_T0, k * 8 * 18 * 1024))
        a('buffer_store_dwordx2 v[84:85], v2, s[48:51], s%d offen %s' % (S_T1, st_flags))
        if k == 4: a.label(skip)

OUT_STG = 32768
OUT_NSLOT = 4
LDS_OUT = OUT_STG * OUT_NSLOT
def out_setup(a):
    srd(a, 48, P_WS, WS_END)
    for k in range(4):
        a('s_add_u32 s%d, s%d, %d' % (S_T0, S_WAVE, 8 * k))
        a('s_min_u32 s%d, s%d, 29' % (S_T0, S_T0))
        a('s_mul_i32 s%d, s%d, 6554' % (S_T1, S_T0)); a('s_lshr_b32 s%d, s%d, 16' % (S_T1, S_T1))
        a('s_mul_i32 s%d, s%d, 10' % (S_T2, S_T1)); a('s_sub_u32 s%d, s%d, s%d' % (S_T2, S_T0, S_T2))
        a('s_lshl_b32 s44, s29, 2'); a('s_add_u32 s44, s44, s%d' % S_T2); a('s_mul_i32 s44, s44, 18432'); a('s_add_u32 s44, s44, %d' % WS_PN)
        a('s_mul_i32 s45, s30, 6'); a('s_add_u32 s45, s45, s%d' % S_T2); a('s_mul_i32 s45, s45, 18432'); a('s_add_u32 s45, s45, %d' % (WS_W2T - 4 * 18432))
        a('s_cmp_lt_u32 s%d, 4' % S_T2); a('s_cselect_b32 s44, s44, s45')
        a('s_lshl_b32 s%d, s%d, 10' % (S_T1, S_T1)); a('s_add_u32 s%d, s44, s%d' % (60 + k, S_T1))
    a('v_lshlrev_b32 v2, 4, v0')
    a('s_lshl_b32 s44, s%d, 10' % S_WAVE)
    a('s_and_b32 s%d, s%d, 3' % (S_T0, S_WAVE)); a('s_lshl_b32 s%d, s%d, 10' % (S_T0, S_T0)); a('v_add_u32 v10, s%d, v2' % S_T0)
    a('s_lshr_b32 s%d, s%d, 2' % (S_T0, S_WAVE)); a('s_mul_i32 s%d, s%d, 3072' % (S_T0, S_T0)); a('s_add_u32 s%d, s%d, 4096' % (S_T0, S_T0)); a('v_add_u32 v11, s%d, v2' % S_T0)

def out_dma(a, st, ld_flags):
    slot = (st % OUT_NSLOT) * OUT_STG
    for k in range(4):
        a('s_add_u32 m0, s44, %d' % (slot + k * 8192))
        a('s_add_u32 s%d, s%d, %d' % (S_T0, 60 + k, st * 3072))
        a('buffer_load_dwordx4 v2, s[48:51], s%d offen %s lds' % (S_T0, ld_flags))

def out_main(a, ld_flags='', wait_in=None):
    NST = 6
    ACC = 64
    for r in range(12): a('v_mov_b32 v%d, 0' % (ACC + r))
    if wait_in: wait_in(a)
    for st in range(3): out_dma(a, st, ld_flags)
    lg = LG(a)
    F = 80
    for st in range(NST):
        a('s_waitcnt vmcnt(%d)' % (4 * min(2, NST - 1 - st)))
        a('s_barrier')
        if st + 3 < NST: out_dma(a, st + 3, ld_flags)
        slot = (st % OUT_NSLOT) * OUT_STG
        a('v_add_u32 v12, %d, v10' % slot); a('v_add_u32 v13, %d, v11' % slot)
        def rd(kk):
            s_ = F + 16 * (kk % 2)
            lg.issue('ds_read_b128 %s, v12 offset:%d' % (vr(s_, 4), kk * 10240), [('b', st, kk)])
            for t in range(3): lg.issue('ds_read_b128 %s, v13 offset:%d' % (vr(s_ + 4 + 4 * t, 4), kk * 10240 + t * 1024), [('a', st, kk, t)])
        rd(0); rd(1)
        for kk in range(3):
            s_ = F + 16 * (kk % 2)
            for t in range(3):
                lg.wait([('b', st, kk), ('a', st, kk, t)])
                a('v_mfma_f32_16x16x32_bf16 %s, %s, %s, %s' % (vr(ACC + 4 * t, 4), vr(s_ + 4 + 4 * t, 4), vr(s_, 4), vr(ACC + 4 * t, 4)))
            if kk == 0: rd(2)
        lg.waitall()

OUT_PITCH = 208
def out_epilogue(a, st_flags=''):
    ACC = 64
    srd(a, 52, P_OUT, S * 1152 * 2)
    a('s_barrier')
    for t in range(3):
        a('v_cvt_pk_bf16_f32 v%d, v%d, v%d' % (80 + 2 * t, ACC + 4 * t, ACC + 4 * t + 1))
        a('v_cvt_pk_bf16_f32 v%d, v%d, v%d' % (81 + 2 * t, ACC + 4 * t + 2, ACC + 4 * t + 3))
    a('v_and_b32 v3, 15, v0'); a('v_lshrrev_b32 v4, 4, v0')
    a('s_and_b32 s%d, s%d, 3' % (S_T0, S_WAVE)); a('s_lshl_b32 s%d, s%d, 4' % (S_T0, S_T0)); a('v_add_u32 v3, s%d, v3' % S_T0)
    a('v_mul_u32_u24 v3, %d, v3' % OUT_PITCH); a('v_lshl_add_u32 v3, v4, 3, v3')
    a('s_lshr_b32 s%d, s%d, 2' % (S_T0, S_WAVE)); a('s_mul_i32 s%d, s%d, 96' % (S_T0, S_T0)); a('v_add_u32 v3, s%d, v3' % S_T0)
    for t in range(3): a('ds_write_b64 v3, %s offset:%d' % (vr(80 + 2 * t, 2), 32 * t))
    a('s_waitcnt lgkmcnt(0)')
    a('s_barrier')
    for k in range(2):
        skip = None
        if k == 1:
            skip = a.newlabel('Lout'); a('s_cmp_ge_u32 s%d, 4' % S_WAVE); a('s_cbranch_scc1 %s' % skip)
        a('s_lshl_b32 s%d, s%d, 6' % (S_T0, S_WAVE)); a('s_add_u32 s%d, s%d, %d' % (S_T0, S_T0, 512 * k))
        a('v_add_u32 v5, s%d, v0' % S_T0)
        a('v_mul_u32_u24 v6, 5462, v5'); a('v_lshrrev_b32 v6, 16, v6')
        a('v_mul_u32_u24 v7, 12, v6'); a('v_sub_u32 v7, v5, v7')
        a('v_mul_u32_u24 v8, %d, v6' % OUT_PITCH); a('v_lshl_add_u32 v8, v7, 4, v8')
        a('ds_read_b128 v[88:91], v8')
        a('s_lshl_b32 s%d, s29, 6' % S_T0); a('v_add_u32 v6, s%d, v6' % S_T0)
        a('v_mul_u32_u24 v6, 2304, v6'); a('v_lshl_add_u32 v6, v7, 4, v6')
        a('s_mul_i32 s%d, s30, 192' % S_T0)
        a('s_waitcnt lgkmcnt(0)')
        a('buffer_store_dwordx4 v[88:91], v6, s[52:55], s%d offen %s' % (S_T0, st_flags))
        if skip: a.label(skip)
for q in range(768): assert (q * 5462) >> 16 == q // 12
for f in range(30): assert (f * 6554) >> 16 == f // 10
```

```python
import sys
from build_multi import *
order = sys.argv[2].split(',')
K = {'kv': ('kv_kernel', k_kv, 128, 512, gemm1.LDS_GEMM1), 'q': ('q_kernel', k_q, 64, 512, gemm1.LDS_GEMM1),
     'w2': ('w2_kernel', k_w2, 36, 512, w2out.LDS_W2), 'out': ('out_kernel', k_out, 192, 512, w2out.LDS_OUT),
     'b1': ('b1_kernel', k_b1, 36, 512, bpart.LDS_B1), 'conv': ('conv_kernel', k_conv, 144, 512, bpart.LDS_CONV), 'b3': ('b3_kernel', k_b3, 36, 512, bpart.LDS_B3)}
def k_nop(name):
    a = Asm(); a('s_endpgm'); return a
K['nop'] = ('nop_kernel', k_nop, 1, 64, 0)
open(sys.argv[1], 'w').write(build([K[k] for k in order]))
```

```python
from asmlib import *

S, D = 2048, 576
WS_UT   = 0
WS_YT   = WS_UT + D * S * 2
WS_KVP  = WS_YT + D * S * 2
WS_PN   = WS_KVP + 128 * 14 * 1024
WS_W2T  = WS_PN + 128 * 18 * 1024
WS_FLAG = WS_W2T + 36 * 18 * 1024
WS_END  = WS_FLAG + 65536

S_KARG = 0
S_WG = 2
P_X, P_WQKV, P_WO, P_Q, P_K, P_V, P_SK, P_H = 4, 6, 8, 10, 12, 14, 16, 18
P_D, P_OUT, P_DBG, P_WS = 20, 22, 24, 26
S_WAVE = 28
KV_PAIRS = [(0,0),(1,0),(0,1),(1,1),(2,1),(1,2),(2,2),(3,2),(2,3),(3,3),(4,3),(3,4),(4,4)]

def prologue(a):
    a('s_load_dwordx16 s[4:19], s[0:1], 0')
    a('s_load_dwordx8 s[20:27], s[0:1], 64')
    a('v_lshrrev_b32 v1, 6, v0')
    a('v_and_b32 v0, 63, v0')
    a('v_readfirstlane_b32 s%d, v1' % S_WAVE)
    a('s_waitcnt lgkmcnt(0)')

def srd(a, dst, ptr, nbytes, off=None):
    if off is None:
        a('s_mov_b32 s%d, s%d' % (dst, ptr)); a('s_mov_b32 s%d, s%d' % (dst + 1, ptr + 1))
    else:
        a('s_add_u32 s%d, s%d, %s' % (dst, ptr, off)); a('s_addc_u32 s%d, s%d, 0' % (dst + 1, ptr + 1))
    a('s_mov_b32 s%d, %s' % (dst + 2, nbytes if isinstance(nbytes, str) else hex(nbytes)))
    a('s_mov_b32 s%d, 0x20000' % (dst + 3))

class LG:
    def __init__(self, a): self.a = a; self.n = 0; self.tag = {}; self.done = 0
    def issue(self, text, tags=()):
        self.a(text); self.n += 1
        for t in tags: self.tag[t] = self.n
    def wait(self, tags):
        need_ = max(self.tag[t] for t in tags)
        if need_ <= self.done: return
        k = self.n - need_
        if k > 15: k = 15; need_ = self.n - 15
        self.a('s_waitcnt lgkmcnt(%d)' % k); self.done = need_
    def waitall(self):
        if self.done < self.n: self.a('s_waitcnt lgkmcnt(0)'); self.done = self.n

def kernel_header(name):
    return '.globl %s\n.p2align 8\n.type %s,@function\n%s:\n' % (name, name, name)
def kernel_desc(name, vgpr=256, sgpr=102):
    return ('.section .rodata,"a"\n.p2align 6\n.amdhsa_kernel %s\n  .amdhsa_next_free_vgpr %d\n  .amdhsa_next_free_sgpr %d\n  .amdhsa_accum_offset %d\n'
            '  .amdhsa_group_segment_fixed_size 0\n  .amdhsa_kernarg_size 96\n  .amdhsa_user_sgpr_count 2\n  .amdhsa_user_sgpr_kernarg_segment_ptr 1\n'
            '  .amdhsa_system_sgpr_workgroup_id_x 1\n  .amdhsa_float_denorm_mode_32 3\n.end_amdhsa_kernel\n.text\n' % (name, vgpr, sgpr, (vgpr + 3) // 4 * 4))

STAMPS = False
STAMP_OP = 's_memrealtime'
NSTAMP = 12
S_STAMP = 76
def stamp(a, i):
    if not STAMPS: return
    a('%s s[98:99]' % STAMP_OP); a('s_waitcnt lgkmcnt(0)'); a('s_mov_b32 s%d, s98' % (S_STAMP + i))
def stamp_init(a):
    if not STAMPS: return
    for i in range(NSTAMP): a('s_mov_b32 s%d, 0' % (S_STAMP + i))
def stamp_flush(a, slot_base):
    if not STAMPS: return
    l = a.newlabel('Lst')
    a('s_cmp_eq_u32 s%d, 0' % S_WAVE); a('s_cbranch_scc0 %s' % l)
    srd(a, 92, P_DBG, 49152)
    a('s_add_u32 s98, s2, %d' % slot_base); a('s_lshl_b32 s98, s98, 6')
    for i in range(NSTAMP):
        a('v_mov_b32 v250, s%d' % (S_STAMP + i)); a('v_mov_b32 v251, %d' % (4 * i))
        a('s_mov_b64 s[90:91], exec'); a('s_mov_b64 exec, 1')
        a('buffer_store_dword v250, v251, s[92:95], s98 offen')
        a('s_mov_b64 exec, s[90:91]')
    a.label(l)
```

```python
from common import *
import common

SLOT = 36864
NSLOT = 4
XOFF, WOFF, DUMOFF = 0, 16384, 35840
LDS_GEMM1 = SLOT * NSLOT
V_ACC = 64
V_XF = 104
V_WF = 120
V_XA0, V_XA1, V_WA = 10, 11, 12
V_XT0, V_XT1, V_WT = 13, 14, 15
V_GX, V_GW0, V_GW1, V_GW2 = 16, 17, 18, 19
S_RT, S_CG = 29, 30
SRD_X, SRD_W = 32, 36
S_M3 = 40; S_T0, S_T1, S_T2 = 41, 42, 43
S_MX = 44
S_MW = 45

def acc(t, mt): return V_ACC + (t * 2 + mt) * 4

def gemm1_setup(a, isq):
    srd(a, SRD_X, P_X, S * D * 2)
    srd(a, SRD_W, P_WQKV, D * 3 * D * 2)
    a('v_lshrrev_b32 v2, 3, v0')
    a('v_and_b32 v3, 7, v0')
    a('v_xor_b32 v3, v3, v2')
    a('v_lshlrev_b32 v3, 4, v3')
    a('s_lshl_b32 s%d, s%d, 7' % (S_T0, S_RT))
    a('s_lshl_b32 s%d, s%d, 4' % (S_T1, S_WAVE))
    a('s_add_u32 s%d, s%d, s%d' % (S_T0, S_T0, S_T1))
    a('v_add_u32 v2, s%d, v2' % S_T0)
    a('v_mul_u32_u24 v2, 1152, v2')
    a('v_add_u32 v%d, v2, v3' % V_GX)
    if isq:
        a('s_mul_i32 s%d, s%d, 288' % (S_T1, S_CG))
    else:
        a('s_mul_i32 s%d, s%d, 144' % (S_T1, S_CG))
        a('s_add_u32 s%d, s%d, 1152' % (S_T1, S_T1))
    for k, vg in enumerate((V_GW0, V_GW1, V_GW2)):
        a('s_lshl_b32 s%d, s%d, 6' % (S_T0, S_WAVE))
        a('s_add_u32 s%d, s%d, %d' % (S_T0, S_T0, 512 * k))
        a('v_add_u32 v2, s%d, v0' % S_T0)
        a('v_mul_u32_u24 v3, 27595, v2')
        a('v_lshrrev_b32 v3, 22, v3')
        a('v_mul_u32_u24 v4, 152, v3')
        a('v_sub_u32 v4, v2, v4')
        a('v_min_u32 v4, 143, v4')
        a('v_mul_u32_u24 v5, 3641, v4')
        a('v_lshrrev_b32 v5, 16, v5')
        a('v_mul_u32_u24 v6, 18, v5')
        a('v_sub_u32 v6, v4, v6')
        a('v_lshl_add_u32 v5, v3, 3, v5')
        a('v_mul_u32_u24 v5, 3456, v5')
        a('v_lshlrev_b32 v7, 4, v6')
        if not isq:
            a('v_cmp_le_u32 vcc, 9, v6')
            a('v_mov_b32 v8, 0')
            a('v_mov_b32 v9, 1008')
            a('v_cndmask_b32 v8, v8, v9, vcc')
            a('v_add_u32 v7, v7, v8')
        a('v_add_u32 v5, v5, v7')
        a('v_add_u32 v%d, s%d, v5' % (vg, S_T1))
    a('s_cmp_lt_u32 s%d, 3' % S_WAVE)
    lab = a.newlabel('Lw3')
    a('s_cbranch_scc1 %s' % lab)
    a('v_mov_b32 v%d, 0' % V_GW2)
    a.label(lab)
    a('s_lshl_b32 s%d, s%d, 10' % (S_T0, S_WAVE))
    a('s_add_u32 s%d, s%d, %d' % (S_MW, S_T0, WOFF))
    a('s_add_u32 s%d, s%d, %d' % (S_T0, S_T0, WOFF + 16 * 1024))
    a('s_cmp_lt_u32 s%d, 3' % S_WAVE)
    a('s_cselect_b32 s%d, s%d, %d' % (S_M3, S_T0, DUMOFF))
    a('s_lshl_b32 s%d, s%d, 11' % (S_MX, S_WAVE))
    a('s_and_b32 s%d, s%d, 3' % (S_T0, S_WAVE))
    a('s_lshl_b32 s%d, s%d, 12' % (S_T0, S_T0))
    a('v_and_b32 v2, 15, v0')
    a('v_lshrrev_b32 v3, 4, v0')
    a('v_and_b32 v4, 7, v2')
    a('v_xor_b32 v4, v4, v3')
    a('v_lshlrev_b32 v4, 4, v4')
    a('v_lshl_add_u32 v4, v2, 7, v4')
    a('v_add_u32 v%d, s%d, v4' % (V_XA0, S_T0))
    a('v_xor_b32 v%d, 64, v%d' % (V_XA1, V_XA0))
    a('s_lshr_b32 s%d, s%d, 2' % (S_T0, S_WAVE))
    a('s_mul_i32 s%d, s%d, 144' % (S_T0, S_T0))
    a('s_add_u32 s%d, s%d, %d' % (S_T0, S_T0, WOFF))
    a('v_mul_u32_u24 v4, 2432, v3')
    a('v_bfe_u32 v5, v0, 2, 2')
    a('v_mul_u32_u24 v5, 288, v5')
    a('v_and_b32 v6, 3, v0')
    a('v_lshlrev_b32 v6, 3, v6')
    a('v_add3_u32 v4, v4, v5, v6')
    a('v_add_u32 v%d, s%d, v4' % (V_WA, S_T0))

def dma_stage(a, st):
    slot = (st % NSLOT) * SLOT
    a('s_add_u32 m0, s%d, %d' % (S_MX, slot + XOFF))
    a('s_mov_b32 s%d, %d' % (S_T2, st * 128))
    a('buffer_load_dwordx4 v%d, s[%d:%d], s%d offen lds' % (V_GX, SRD_X, SRD_X + 3, S_T2))
    a('s_add_u32 m0, s%d, %d' % (S_MX, slot + XOFF + 1024))
    a('s_mov_b32 s%d, %d' % (S_T2, st * 128 + 8 * 1152))
    a('buffer_load_dwordx4 v%d, s[%d:%d], s%d offen lds' % (V_GX, SRD_X, SRD_X + 3, S_T2))
    a('s_add_u32 m0, s%d, %d' % (S_MW, slot))
    a('s_mov_b32 s%d, %d' % (S_T2, st * 64 * 3456))
    a('buffer_load_dwordx4 v%d, s[%d:%d], s%d offen lds' % (V_GW0, SRD_W, SRD_W + 3, S_T2))
    a('s_add_u32 m0, s%d, %d' % (S_MW, slot + 8192))
    a('s_nop 0')
    a('buffer_load_dwordx4 v%d, s[%d:%d], s%d offen lds' % (V_GW1, SRD_W, SRD_W + 3, S_T2))
    a('s_add_u32 m0, s%d, %d' % (S_M3, slot))
    a('s_nop 0')
    a('buffer_load_dwordx4 v%d, s[%d:%d], s%d offen lds' % (V_GW2, SRD_W, SRD_W + 3, S_T2))

def gemm1_main(a, isq, hook_after_issue=None):
    NST = 9
    for r in range(40): a('v_mov_b32 v%d, 0' % (V_ACC + r))
    for st in range(3): dma_stage(a, st)
    if hook_after_issue:
        hook_after_issue(a)
    lg = LG(a)
    def xf(s_, mt): return V_XF + (s_ * 2 + mt) * 4
    def wf(s_, t): return V_WF + (s_ * 5 + t) * 4
    def set_bases(st):
        slot = (st % NSLOT) * SLOT
        a('v_add_u32 v%d, %d, v%d' % (V_XT0, slot, V_XA0))
        a('v_add_u32 v%d, %d, v%d' % (V_XT1, slot, V_XA1))
        a('v_add_u32 v%d, %d, v%d' % (V_WT, slot, V_WA))
    def reads(st, ks):
        L = []
        xa = V_XT0 if ks == 0 else V_XT1
        for mt in range(2):
            L.append(('ds_read_b128 %s, v%d offset:%d' % (vr(xf(ks, mt), 4), xa, mt * 2048), [('x', st, ks, mt)]))
        for t in range(5):
            for q in range(2):
                L.append(('ds_read_b64_tr_b16 %s, v%d offset:%d' % (vr(wf(ks, t) + 2 * q, 2), V_WT, ks * 9728 + q * 1152 + 32 * t), [('w', st, ks, t, q)]))
        return L
    def mfmas(st, ks, pending, extra=None):
        pending = list(pending)
        for t in range(5):
            lg.wait([('x', st, ks, 0), ('x', st, ks, 1), ('w', st, ks, t, 0), ('w', st, ks, t, 1)])
            for mt in range(2):
                A, B = (xf(ks, mt), wf(ks, t)) if not isq else (wf(ks, t), xf(ks, mt))
                a('v_mfma_f32_16x16x32_bf16 %s, %s, %s, %s' % (vr(acc(t, mt), 4), vr(A, 4), vr(B, 4), vr(acc(t, mt), 4)))
                n = 2 if mt == 0 else 1
                if t == 4 and mt == 1: n = 99
                for _ in range(n):
                    if pending:
                        txt, tags = pending.pop(0); lg.issue(txt, tags)
            if extra and t < len(extra): extra[t]()
    a('s_waitcnt vmcnt(10)')
    a('s_barrier')
    set_bases(0)
    for txt, tags in reads(0, 0): lg.issue(txt, tags)
    for st in range(NST):
        mfmas(st, 0, reads(st, 1))
        if st + 1 < NST:
            rem = min(2, NST - 1 - (st + 1))
            inflight_after = 5 * (1 if st + 2 < NST else 0)
            a('s_waitcnt vmcnt(%d)' % inflight_after)
            a('s_barrier')
            set_bases(st + 1)
            nxt = reads(st + 1, 0)
            ex = None
            if st + 3 < NST:
                ex = [lambda s_=st: dma_stage(a, s_ + 3)]
            mfmas(st, 1, nxt, ex)
        else:
            mfmas(st, 1, [])
    lg.waitall()

LOG2E = 0x3fb8aa3b
EPS6 = 0x358637bd
def phi(a, regs, tmp, s_l2e, s_eps):
    for k0 in range(0, len(regs), 8):
        grp = regs[k0:k0 + 8]
        for j, r in enumerate(grp): a('v_mul_f32 v%d, s%d, v%d' % (tmp + j, s_l2e, r))
        for j, r in enumerate(grp): a('v_exp_f32 v%d, v%d clamp' % (tmp + j, tmp + j))
        for j, r in enumerate(grp): a('v_max_f32 v%d, 0, v%d' % (r, r))
        for j, r in enumerate(grp): a('v_add_f32 v%d, s%d, v%d' % (tmp + j, s_eps, tmp + j))
        for j, r in enumerate(grp): a('v_add_f32 v%d, v%d, v%d' % (r, r, tmp + j))

def kv_epilogue(a, st_flags=''):
    S_L2E, S_EPS = 46, 47
    a('s_mov_b32 s%d, 0x%x' % (S_L2E, LOG2E)); a('s_mov_b32 s%d, 0x%x' % (S_EPS, EPS6))
    lab = a.newlabel('Lvwave')
    a('s_cmp_ge_u32 s%d, 4' % S_WAVE)
    a('s_cbranch_scc1 %s' % lab)
    phi(a, [V_ACC + r for r in range(40)], 104, S_L2E, S_EPS)
    a.label(lab)
    for t in range(5):
        f = 120 + 4 * t
        a('v_cvt_pk_bf16_f32 v%d, v%d, v%d' % (f + 0, acc(t, 0) + 0, acc(t, 0) + 1))
        a('v_cvt_pk_bf16_f32 v%d, v%d, v%d' % (f + 1, acc(t, 0) + 2, acc(t, 0) + 3))
        a('v_cvt_pk_bf16_f32 v%d, v%d, v%d' % (f + 2, acc(t, 1) + 0, acc(t, 1) + 1))
        a('v_cvt_pk_bf16_f32 v%d, v%d, v%d' % (f + 3, acc(t, 1) + 2, acc(t, 1) + 3))
    a('s_barrier')
    a('s_and_b32 s%d, s%d, 3' % (S_T0, S_WAVE)); a('s_mul_i32 s%d, s%d, 10240' % (S_T0, S_T0))
    a('s_lshr_b32 s%d, s%d, 2' % (S_T1, S_WAVE)); a('s_mul_i32 s%d, s%d, 5120' % (S_T1, S_T1))
    a('s_add_u32 s%d, s%d, s%d' % (S_T0, S_T0, S_T1))
    a('v_lshlrev_b32 v2, 4, v0')
    a('v_add_u32 v3, s%d, v2' % S_T0)
    for t in range(5): a('ds_write_b128 v3, %s offset:%d' % (vr(120 + 4 * t, 4), t * 1024))
    a('s_waitcnt lgkmcnt(0)')
    a('s_barrier')
    srd(a, 48, P_WS, WS_END)
    a('s_lshl_b32 s%d, s%d, 4' % (S_T0, S_CG)); a('s_add_u32 s%d, s%d, s%d' % (S_T0, S_T0, S_RT))
    a('s_mul_i32 s%d, s%d, %d' % (S_T0, S_T0, 14 * 1024)); a('s_add_u32 s%d, s%d, %d' % (S_T0, S_T0, WS_KVP))
    a('v_mov_b32 v8, 0x3f803f80')
    ones = 150
    for k in range(4): a('v_mov_b32 v%d, 0x3f803f80' % (ones + k))
    end = a.newlabel('Lkvend')
    for w in range(8):
        nxt = a.newlabel('Lkvw')
        a('s_cmp_eq_u32 s%d, %d' % (S_WAVE, w)); a('s_cbranch_scc0 %s' % nxt)
        tiles = [p for p in (w, w + 8, w + 16) if p < 18]
        lg = LG(a)
        reg = 64
        plan = []
        for p in tiles:
            fa = []; fb = []
            for mw in range(4):
                if p < 13:
                    b_, a_ = KV_PAIRS[p]
                    lg.issue('ds_read_b128 %s, v2 offset:%d' % (vr(reg, 4), mw * 10240 + 5120 + b_ * 1024), [('A', p, mw)]); fa.append(reg); reg += 4
                else:
                    a_ = p - 13; fa.append(ones)
                lg.issue('ds_read_b128 %s, v2 offset:%d' % (vr(reg, 4), mw * 10240 + a_ * 1024), [('B', p, mw)]); fb.append(reg); reg += 4
            plan.append((p, fa, fb))
        assert reg <= 150
        dreg = 160
        for n_, (p, fa, fb) in enumerate(plan):
            d = dreg + 4 * n_
            for k in range(4): a('v_mov_b32 v%d, 0' % (d + k))
            for mw in range(4):
                tg = [('B', p, mw)] + ([('A', p, mw)] if p < 13 else [])
                lg.wait(tg)
                a('v_mfma_f32_16x16x32_bf16 %s, %s, %s, %s' % (vr(d, 4), vr(fa[mw], 4), vr(fb[mw], 4), vr(d, 4)))
        for n_, (p, fa, fb) in enumerate(plan):
            d = dreg + 4 * n_
            if p < 13:
                a('s_add_u32 s%d, s%d, %d' % (S_T1, S_T0, p * 1024))
                a('buffer_store_dwordx4 %s, v2, s[48:51], s%d offen %s' % (vr(d, 4), S_T1, st_flags))
            else:
                a('s_add_u32 s%d, s%d, %d' % (S_T1, S_T0, 13 * 1024 + (p - 13) * 64))
                a('v_lshlrev_b32 v3, 2, v0')
                a('s_mov_b64 s[52:53], exec')
                a('s_mov_b64 exec, 0xffff')
                a('buffer_store_dword v%d, v3, s[48:51], s%d offen %s' % (d, S_T1, st_flags))
                a('s_mov_b64 exec, s[52:53]')
        a('s_branch %s' % end)
        a.label(nxt)
    a.label(end)


def q_epilogue(a, st_flags='', ld_flags='', wait_z=None):
    S_L2E, S_EPS = 46, 47
    a('s_mov_b32 s%d, 0x%x' % (S_L2E, LOG2E)); a('s_mov_b32 s%d, 0x%x' % (S_EPS, EPS6))
    srd(a, 48, P_WS, WS_END)
    phi(a, [V_ACC + r for r in range(40)], 104, S_L2E, S_EPS)
    PB = 120
    def pb(mt, j): return PB + (mt * 3 + j) * 4
    for mt in range(2):
        for t in range(5):
            d = pb(mt, t // 2) + 2 * (t % 2)
            a('v_cvt_pk_bf16_f32 v%d, v%d, v%d' % (d, acc(t, mt), acc(t, mt) + 1))
            a('v_cvt_pk_bf16_f32 v%d, v%d, v%d' % (d + 1, acc(t, mt) + 2, acc(t, mt) + 3))
        a('v_mov_b32 v%d, 0' % (pb(mt, 2) + 2)); a('v_mov_b32 v%d, 0' % (pb(mt, 2) + 3))
    if wait_z: wait_z(a)
    Z = 144
    a('s_lshr_b32 s%d, s%d, 2' % (S_T0, S_WAVE))
    a('s_lshl_b32 s%d, s%d, 1' % (S_T1, S_CG))
    a('s_add_u32 s%d, s%d, s%d' % (S_T1, S_T1, S_T0))
    a('s_mul_i32 s%d, s%d, %d' % (S_T1, S_T1, 16 * 14 * 1024))
    a('s_add_u32 s%d, s%d, %d' % (S_T1, S_T1, WS_KVP + 13 * 1024))
    a('v_and_b32 v2, 15, v0')
    a('v_lshrrev_b32 v3, 4, v0')
    a('v_mul_u32_u24 v4, %d, v2' % (14 * 1024))
    a('v_lshl_add_u32 v4, v3, 4, v4')
    for t in range(5):
        a('buffer_load_dwordx4 %s, v4, s[48:51], s%d offen offset:%d %s' % (vr(Z + 4 * t, 4), S_T1, 64 * t, ld_flags))
    a('v_and_b32 v5, 3, v2')
    a('v_mul_u32_u24 v5, 18, v5')
    a('v_lshlrev_b32 v6, 2, v3')
    a('v_sub_u32 v5, v6, v5')
    a('s_waitcnt vmcnt(0)')
    for sh in (8, 4, 2, 1):
        for k in range(20):
            a('v_add_f32_dpp v%d, v%d, v%d row_ror:%d row_mask:0xf bank_mask:0xf' % (Z + k, Z + k, Z + k, sh))
    for t in range(5):
        for r in range(4):
            a('v_add_u32 v6, %d, v5' % (16 * t + r))
            a('v_cmp_gt_u32 vcc, 18, v6')
            a('v_cndmask_b32 v%d, 0, v%d, vcc' % (Z + 4 * t + r, Z + 4 * t + r))
    ZA = 164
    for t in range(5):
        d = ZA + 4 * (t // 2) + 2 * (t % 2)
        a('v_cvt_pk_bf16_f32 v%d, v%d, v%d' % (d, Z + 4 * t, Z + 4 * t + 1))
        a('v_cvt_pk_bf16_f32 v%d, v%d, v%d' % (d + 1, Z + 4 * t + 2, Z + 4 * t + 3))
    a('v_mov_b32 v%d, 0' % (ZA + 10)); a('v_mov_b32 v%d, 0' % (ZA + 11))
    DEN = 176
    for mt in range(2):
        for k in range(4): a('v_mov_b32 v%d, 0' % (DEN + 4 * mt + k))
    for j in range(3):
        for mt in range(2):
            a('v_mfma_f32_16x16x32_bf16 %s, %s, %s, %s' % (vr(DEN + 4 * mt, 4), vr(ZA + 4 * j, 4), vr(pb(mt, j), 4), vr(DEN + 4 * mt, 4)))
    a('s_mov_b64 s[54:55], 0xffff')
    a('s_mov_b32 s56, -1'); a('s_mov_b32 s57, 0')
    for mt in range(2):
        for k in range(4): a('v_add_f32 v%d, s%d, v%d' % (DEN + 4 * mt + k, S_EPS, DEN + 4 * mt + k))
    for mt in range(2):
        for k in range(4): a('v_rcp_f32 v%d, v%d' % (DEN + 4 * mt + k, DEN + 4 * mt + k))
    SEL = 184
    for mt in range(2):
        rd = DEN + 4 * mt; s_ = SEL + 4 * mt
        a('v_cndmask_b32 v%d, v%d, v%d, s[54:55]' % (s_ + 0, rd + 1, rd + 0))
        a('v_cndmask_b32 v%d, v%d, v%d, s[54:55]' % (s_ + 1, rd + 2, rd + 1))
        a('v_cndmask_b32 v%d, v%d, v%d, s[56:57]' % (s_ + 2, rd + 3, rd + 2))
        a('v_cndmask_b32 v%d, v%d, v%d, s[54:55]' % (s_ + 3, rd + 3, rd + 2))
    for mt in range(2):
        rd = DEN + 4 * mt; s_ = SEL + 4 * mt
        for t in range(5):
            for r in range(4):
                if t == 0: m = rd + 0
                elif t == 1: m = s_ + 0 if r < 2 else rd + 1
                elif t == 2: m = s_ + 1
                elif t == 3: m = s_ + 2 if r < 2 else s_ + 3
                else: m = rd + 3
                a('v_mul_f32 v%d, v%d, v%d' % (acc(t, mt) + r, acc(t, mt) + r, m))
    for mt in range(2):
        for t in range(5):
            d = pb(mt, t // 2) + 2 * (t % 2)
            a('v_cvt_pk_bf16_f32 v%d, v%d, v%d' % (d, acc(t, mt), acc(t, mt) + 1))
            a('v_cvt_pk_bf16_f32 v%d, v%d, v%d' % (d + 1, acc(t, mt) + 2, acc(t, mt) + 3))
    a('s_and_b32 s%d, s%d, 3' % (S_T0, S_WAVE)); a('s_lshl_b32 s%d, s%d, 1' % (S_T0, S_T0))
    a('s_lshl_b32 s%d, s%d, 3' % (S_T1, S_RT)); a('s_add_u32 s%d, s%d, s%d' % (S_T0, S_T0, S_T1))
    a('s_mul_i32 s%d, s%d, %d' % (S_T0, S_T0, 18 * 1024)); a('s_add_u32 s%d, s%d, %d' % (S_T0, S_T0, WS_PN))
    a('s_lshr_b32 s%d, s%d, 2' % (S_T1, S_WAVE))
    a('s_lshl_b32 s58, s%d, 2' % S_CG); a('s_lshl_b32 s59, s%d, 1' % S_T1); a('s_add_u32 s58, s58, s59')
    a('s_lshl_b32 s58, s58, 10'); a('s_add_u32 s58, s58, s%d' % S_T0)
    a('s_lshr_b32 s59, s%d, 1' % S_CG); a('s_add_u32 s59, s59, 16'); a('s_lshl_b32 s59, s59, 10'); a('s_add_u32 s59, s59, s%d' % S_T0)
    a('s_and_b32 s60, s%d, 1' % S_CG); a('s_lshl_b32 s60, s60, 3'); a('s_add_u32 s59, s59, s60')
    a('s_lshl_b32 s60, s%d, 9' % S_T1); a('s_add_u32 s59, s59, s60')
    a('v_lshlrev_b32 v2, 4, v0')
    for mt in range(2):
        for j in range(2):
            a('s_add_u32 s60, s58, %d' % (mt * 18 * 1024 + j * 1024))
            a('buffer_store_dwordx4 %s, v2, s[48:51], s60 offen %s' % (vr(pb(mt, j), 4), st_flags))
    a('s_mov_b64 s[52:53], exec')
    a('s_mov_b64 exec, s[56:57]')
    for mt in range(2):
        a('s_add_u32 s60, s59, %d' % (mt * 18 * 1024))
        a('buffer_store_dwordx2 %s, v2, s[48:51], s60 offen %s' % (vr(pb(mt, 2), 2), st_flags))
    a('s_mov_b64 exec, s[52:53]')
```

```python
import sys
from common import *
import common, gemm1, w2out, bpart

S_NONCE = 70
S_X, S_SLOT = 71, 72
F_U, F_KV, F_PN, F_W2, F_Y = 0, 64, 192, 256, 320
ST = 'sc1'; LD = 'sc1'
SPIN_MAX = 100000
SRD_F = 64

def get_nonce(a):
    l_end = a.newlabel('Lnon')
    a('s_cmp_eq_u32 s%d, 0' % S_WAVE); a('s_cbranch_scc0 %s' % l_end)
    srd(a, 60, P_DBG, 256)
    a('v_mov_b32 v240, 0')
    l_poll = a.newlabel('Lnp')
    a('s_cmp_eq_u32 s2, 0'); a('s_cbranch_scc0 %s' % l_poll)
    a('s_memrealtime s[68:69]'); a('s_waitcnt lgkmcnt(0)')
    a('s_or_b32 s68, s68, 1')
    a('v_mov_b32 v241, s68')
    a('s_mov_b64 s[68:69], exec'); a('s_mov_b64 exec, 1')
    a('buffer_store_dword v241, v240, s[60:63], 0 offen sc1')
    a('s_mov_b64 exec, s[68:69]')
    a.label(l_poll)
    a('s_mov_b32 s69, 0')
    l_p2 = a.newlabel('Lnq')
    a.label(l_p2)
    a('buffer_load_dword v241, v240, s[60:63], 0 offen sc1')
    a('s_add_u32 s69, s69, 1')
    a('s_waitcnt vmcnt(0)')
    a('v_readfirstlane_b32 s%d, v241' % S_NONCE)
    a('s_cmp_ge_u32 s69, %d' % SPIN_MAX); a('s_cbranch_scc1 %s' % l_end)
    a('s_cmp_eq_u32 s%d, 0' % S_NONCE)
    a('s_cbranch_scc1 %s' % l_p2)
    a.label(l_end)

def publish(a, idx_sgpr_expr):
    a('s_waitcnt vmcnt(0)')
    a('s_barrier')
    l = a.newlabel('Lpub')
    a('s_cmp_eq_u32 s%d, 0' % S_WAVE); a('s_cbranch_scc0 %s' % l)
    idx_sgpr_expr(a)
    a('s_lshl_b32 s68, s68, 7'); a('s_add_u32 s68, s68, %d' % WS_FLAG)
    a('v_mov_b32 v240, 0'); a('v_mov_b32 v241, s%d' % S_NONCE)
    a('s_mov_b64 s[74:75], exec'); a('s_mov_b64 exec, 1')
    a('buffer_store_dword v241, v240, s[%d:%d], s68 offen sc1' % (SRD_F, SRD_F + 3))
    a('s_mov_b64 exec, s[74:75]')
    a.label(l)

def wait_flags(a, lane_idx):
    l = a.newlabel('Lwf'); p = a.newlabel('Lwp')
    a('s_cmp_eq_u32 s%d, 0' % S_WAVE); a('s_cbranch_scc0 %s' % l)
    lane_idx(a)
    a('v_lshlrev_b32 v242, 7, v242'); a('v_add_u32 v242, %d, v242' % WS_FLAG)
    a('s_mov_b32 s69, 0')
    a.label(p)
    a('buffer_load_dword v243, v242, s[%d:%d], 0 offen sc1' % (SRD_F, SRD_F + 3))
    a('s_add_u32 s69, s69, 1')
    a('s_waitcnt vmcnt(0)')
    a('v_cmp_ne_u32 vcc, s%d, v243' % S_NONCE)
    a('s_cmp_ge_u32 s69, %d' % SPIN_MAX); a('s_cbranch_scc1 %s' % l)
    a('s_cmp_lg_u64 vcc, 0')
    a('s_cbranch_scc1 %s' % p)
    a.label(l)
    a('s_barrier')

def k_persist(name):
    a = Asm()
    a('s_cmp_ge_u32 s2, 256'); a('s_cbranch_scc1 %s_end' % name)
    prologue(a)
    stamp_init(a); stamp(a, 0)
    srd(a, SRD_F, P_WS, WS_END)
    a('s_and_b32 s%d, s2, 7' % S_X); a('s_lshr_b32 s%d, s2, 3' % S_SLOT)
    L_Q, L_B, L_OUT, L_B3, L_END = [name + s_ for s_ in ('_q', '_b', '_out', '_b3', '_fin')]
    a('s_cmp_ge_u32 s%d, 24' % S_SLOT); a('s_cbranch_scc1 %s' % L_B)
    a('s_cmp_ge_u32 s%d, 16' % S_SLOT); a('s_cbranch_scc1 %s' % L_Q)
    a('s_and_b32 s41, s%d, 3' % S_X); a('s_lshl_b32 s41, s41, 2'); a('s_and_b32 s29, s%d, 3' % S_SLOT); a('s_add_u32 s29, s29, s41')
    a('s_lshr_b32 s41, s%d, 2' % S_X); a('s_lshl_b32 s41, s41, 2'); a('s_lshr_b32 s30, s%d, 2' % S_SLOT); a('s_add_u32 s30, s30, s41')
    gemm1.gemm1_setup(a, False); gemm1.gemm1_main(a, False, hook_after_issue=get_nonce)
    stamp(a, 1)
    gemm1.kv_epilogue(a, st_flags=ST)
    def idx_kv(a): a('s_lshl_b32 s68, s30, 4'); a('s_add_u32 s68, s68, s29'); a('s_add_u32 s68, s68, %d' % F_KV)
    publish(a, idx_kv)
    stamp(a, 2)
    L_CONV2 = name + '_kvconv'; L_KVNEXT = name + '_kvnext'
    a('s_lshl_b32 s73, s%d, 3' % S_SLOT); a('s_add_u32 s73, s73, s%d' % S_X)
    a('s_cmp_ge_u32 s73, 36'); a('s_cbranch_scc1 %s' % L_CONV2)
    a('s_mov_b32 s29, s73')
    w2out.w2_prefetch(a)
    def wkv(a):
        def li(a):
            a('v_and_b32 v242, 15, v0'); a('v_bfe_u32 v241, v0, 4, 1')
            a('s_cmp_eq_u32 s31, 4'); a('s_cselect_b32 s68, 16, 0')
            a('v_mul_u32_u24 v241, s68, v241'); a('v_add_u32 v242, v242, v241')
            a('s_lshl_b32 s68, s30, 4'); a('s_add_u32 s68, s68, %d' % F_KV); a('v_add_u32 v242, s68, v242')
        wait_flags(a, li)
    w2out.w2_main(a, st_flags=ST, ld_flags=LD, wait_kv=wkv)
    def idx_w2(a): a('s_add_u32 s68, s73, %d' % F_W2)
    publish(a, idx_w2)
    stamp(a, 3)
    a('s_branch %s' % L_KVNEXT)
    a.label(L_CONV2)
    a('s_cmp_ge_u32 s73, 116'); a('s_cbranch_scc1 %s' % L_KVNEXT)
    a('s_add_u32 s29, s73, 28')
    a('s_branch %s_conv' % name)
    a.label(L_KVNEXT)
    a('s_cmp_ge_u32 s73, 64'); a('s_cbranch_scc1 %s' % L_B3)
    a('s_mov_b32 s59, s%d' % S_SLOT)
    a('s_branch %s' % L_OUT)
    a.label(L_Q)
    a('s_and_b32 s41, s%d, 3' % S_X); a('s_lshl_b32 s41, s41, 2'); a('s_and_b32 s29, s%d, 3' % S_SLOT); a('s_add_u32 s29, s29, s41')
    a('s_lshr_b32 s41, s%d, 2' % S_X); a('s_lshl_b32 s41, s41, 1'); a('s_bfe_u32 s30, s%d, 0x10002' % S_SLOT); a('s_add_u32 s30, s30, s41')
    gemm1.gemm1_setup(a, True); gemm1.gemm1_main(a, True, hook_after_issue=get_nonce)
    stamp(a, 1)
    def wz(a):
        def li(a):
            a('v_and_b32 v242, 31, v0'); a('s_lshl_b32 s68, s30, 5'); a('s_add_u32 s68, s68, %d' % F_KV); a('v_add_u32 v242, s68, v242')
        stamp(a, 2)
        wait_flags(a, li)
        stamp(a, 3)
    gemm1.q_epilogue(a, st_flags=ST, ld_flags=LD, wait_z=wz)
    def idx_pn(a): a('s_lshl_b32 s68, s29, 2'); a('s_add_u32 s68, s68, s30'); a('s_add_u32 s68, s68, %d' % F_PN)
    publish(a, idx_pn)
    stamp(a, 4)
    a('s_sub_u32 s59, s%d, 8' % S_SLOT)
    a('s_branch %s' % L_OUT)
    a.label(L_B)
    a('s_sub_u32 s73, s%d, 24' % S_SLOT); a('s_lshl_b32 s73, s73, 3'); a('s_add_u32 s73, s73, s%d' % S_X)
    L_NOB1 = name + '_nob1'; L_B1D = name + '_b1d'
    a('s_cmp_ge_u32 s73, 36'); a('s_cbranch_scc1 %s' % L_NOB1)
    a('s_mul_i32 s29, s73, 7282'); a('s_lshr_b32 s29, s29, 16'); a('s_mul_i32 s30, s29, 9'); a('s_sub_u32 s30, s73, s30')
    a('s_mov_b32 s58, s29')
    a('s_lshl_b32 s29, s29, 3'); a('s_add_u32 s29, s29, s%d' % S_WAVE)
    bpart.b1_tile(a, st_flags=ST, hook_after_issue=get_nonce)
    def idx_u(a): a('s_lshl_b32 s68, s30, 2'); a('s_add_u32 s68, s68, s58'); a('s_add_u32 s68, s68, %d' % F_U)
    publish(a, idx_u)
    stamp(a, 1)
    a('s_branch %s' % L_B1D)
    a.label(L_NOB1)
    get_nonce(a)
    a.label(L_B1D)
    a('s_mov_b32 s29, s73')
    a.label(name + '_conv')
    a('s_mov_b32 s59, s29')
    def wu(a):
        def li(a):
            a('v_and_b32 v242, 3, v0'); a('s_lshr_b32 s68, s59, 4'); a('s_lshl_b32 s68, s68, 2'); a('s_add_u32 s68, s68, %d' % F_U); a('v_add_u32 v242, s68, v242')
        stamp(a, 4)
        wait_flags(a, li)
        stamp(a, 5)
    bpart.conv_round(a, st_flags=ST, ld_flags=LD, wait_u=wu)
    def idx_y(a): a('s_add_u32 s68, s59, %d' % F_Y)
    publish(a, idx_y)
    stamp(a, 6)
    L_KVAFTER = name + '_kvafter'
    a('s_cmp_lt_u32 s%d, 16' % S_SLOT); a('s_cbranch_scc1 %s' % L_KVNEXT)
    a('s_sub_u32 s59, s%d, 8' % S_SLOT)
    a.label(L_OUT)
    a('s_lshl_b32 s29, s%d, 2' % S_X); a('s_and_b32 s41, s59, 3'); a('s_add_u32 s29, s29, s41'); a('s_lshr_b32 s30, s59, 2')
    a('s_barrier')
    w2out.out_setup(a)
    def wo_(a):
        def li(a):
            a('s_lshr_b32 s68, s29, 1'); a('s_lshl_b32 s68, s68, 2'); a('s_add_u32 s68, s68, %d' % F_PN)
            a('v_add_u32 v242, s68, v0')
            a('v_add_u32 v241, %d, v0' % (F_W2 - 4))
            a('v_cmp_le_u32 vcc, 4, v0'); a('v_cndmask_b32 v242, v242, v241, vcc')
            a('v_mov_b32 v241, s68')
            a('v_cmp_le_u32 vcc, 40, v0'); a('v_cndmask_b32 v242, v242, v241, vcc')
        stamp(a, 7)
        wait_flags(a, li)
        stamp(a, 8)
    w2out.out_main(a, ld_flags=LD, wait_in=wo_)
    stamp(a, 9)
    w2out.out_epilogue(a)
    a('s_branch %s' % L_END)
    a.label(L_B3)
    a('s_sub_u32 s58, s73, 64'); a('s_cmp_ge_u32 s58, 36'); a('s_cbranch_scc1 %s' % L_END)
    a('s_mul_i32 s29, s58, 7282'); a('s_lshr_b32 s29, s29, 16'); a('s_mul_i32 s30, s29, 9'); a('s_sub_u32 s30, s58, s30')
    a('s_lshl_b32 s29, s29, 3'); a('s_add_u32 s29, s29, s%d' % S_WAVE)
    a('s_barrier')
    def wy(a):
        def li(a):
            a('v_and_b32 v242, 15, v0'); a('s_lshl_b32 s68, s30, 4'); a('s_add_u32 s68, s68, %d' % F_Y); a('v_add_u32 v242, s68, v242')
        stamp(a, 7)
        wait_flags(a, li)
        stamp(a, 8)
    bpart.b3_tile(a, ld_flags=LD, wait_y=wy)
    a.label(L_END)
    if common.STAMPS:
        a('s_waitcnt vmcnt(0)'); stamp(a, 10); stamp_flush(a, 0)
    a.label(name + '_end'); a('s_endpgm')
    return a

NAME = 'concat_heads__linear_attn_block__ssm_conv_h3__prompt_kernel'
def build():
    lds = max(gemm1.LDS_GEMM1, w2out.LDS_W2, w2out.LDS_OUT, bpart.LDS_CONV, bpart.LDS_B3, bpart.LDS_B1)
    a = k_persist(NAME)
    lines = fix_hazards(a.lines, verbose=True)
    hdr = '; concat_heads / linear attention block + H3 ssm conv : single persistent kernel (generated by gen/persist.py)\n'
    hdr += '; @launch grid=(256,1,1) block=(512,1,1) lds=%d\n' % lds
    return hdr + '.amdgcn_target "amdgcn-amd-amdhsa--gfx950"\n.text\n' + kernel_header(NAME) + '\n'.join(lines) + '\n' + kernel_desc(NAME)
if __name__ == '__main__':
    if len(sys.argv) > 2:
        common.STAMPS = True
        if sys.argv[2] == 'cyc': common.STAMP_OP = 's_memtime'
    open(sys.argv[1], 'w').write(build())
```

```python
from common import *
S_T0, S_T1, S_T2 = 41, 42, 43

LDS_B1 = 8 * 8192
def b1_tile(a, st_flags='', hook_after_issue=None):
    srd(a, 32, P_K, S * D * 2); srd(a, 36, P_V, S * D * 2); srd(a, 52, P_SK, D * 8)
    KR, VR, SK = 64, 108, 140
    a('v_and_b32 v2, 7, v0'); a('v_lshrrev_b32 v3, 3, v0')
    a('s_lshl_b32 s%d, s29, 6' % S_T0); a('v_lshlrev_b32 v4, 3, v3'); a('v_add_u32 v4, s%d, v4' % S_T0)
    a('v_mul_u32_u24 v4, 1152, v4'); a('v_lshlrev_b32 v5, 4, v2'); a('v_add_u32 v4, v4, v5')
    a('s_lshl_b32 s%d, s30, 7' % S_T0); a('v_add_u32 v4, s%d, v4' % S_T0)
    a('v_subrev_u32 v6, %d, v4' % (3 * 1152))
    a('s_lshl_b32 s%d, s30, 9' % S_T0); a('v_lshlrev_b32 v7, 6, v2'); a('v_add_u32 v7, s%d, v7' % S_T0)
    for k in range(4): a('buffer_load_dwordx4 %s, v7, s[52:55], 0 offen offset:%d' % (vr(SK + 4 * k, 4), 16 * k))
    for j in range(11):
        if j < 3:
            a('v_add_u32 v8, %d, v6' % (j * 1152))
            a('buffer_load_dwordx4 %s, v8, s[32:35], 0 offen' % vr(KR + 4 * j, 4))
        else:
            a('s_mov_b32 s%d, %d' % (S_T0, (j - 3) * 1152))
            a('buffer_load_dwordx4 %s, v4, s[32:35], s%d offen' % (vr(KR + 4 * j, 4), S_T0))
    for j in range(8):
        a('s_mov_b32 s%d, %d' % (S_T0, j * 1152))
        a('buffer_load_dwordx4 %s, v4, s[36:39], s%d offen' % (vr(VR + 4 * j, 4), S_T0))
    if hook_after_issue: hook_after_issue(a)
    a('s_mov_b32 s44, 0xffff0000')
    a('v_xor_b32 v9, v2, v3'); a('v_lshlrev_b32 v9, 4, v9'); a('v_lshl_add_u32 v9, v3, 7, v9')
    a('s_lshl_b32 s45, s%d, 13' % S_WAVE); a('v_add_u32 v9, s45, v9')
    a('s_waitcnt vmcnt(0)')
    T = 160
    for e in range(8):
        d = e >> 1; hi = e & 1
        a('v_lshlrev_b32 v%d, 16, v%d' % (T + 0, SK + 2 * e)); a('v_and_b32 v%d, s44, v%d' % (T + 1, SK + 2 * e))
        a('v_lshlrev_b32 v%d, 16, v%d' % (T + 2, SK + 2 * e + 1)); a('v_and_b32 v%d, s44, v%d' % (T + 3, SK + 2 * e + 1))
        for j in range(11):
            if hi: a('v_and_b32 v%d, s44, v%d' % (T + 4 + j, KR + 4 * j + d))
            else: a('v_lshlrev_b32 v%d, 16, v%d' % (T + 4 + j, KR + 4 * j + d))
        for i in range(8): a('v_mul_f32 v%d, v%d, v%d' % (T + 16 + i, T + 4 + i, T + 3))
        for i in range(8): a('v_fmac_f32 v%d, v%d, v%d' % (T + 16 + i, T + 5 + i, T + 2))
        for i in range(8): a('v_fmac_f32 v%d, v%d, v%d' % (T + 16 + i, T + 6 + i, T + 1))
        for i in range(8): a('v_fmac_f32 v%d, v%d, v%d' % (T + 16 + i, T + 7 + i, T + 0))
        for i in range(8):
            if hi: a('v_and_b32 v%d, s44, v%d' % (T + 4 + i, VR + 4 * i + d))
            else: a('v_lshlrev_b32 v%d, 16, v%d' % (T + 4 + i, VR + 4 * i + d))
        for i in range(8): a('v_mul_f32 v%d, v%d, v%d' % (T + 16 + i, T + 16 + i, T + 4 + i))
        U = T + 24 + 4 * (e & 1)
        for i in range(4): a('v_cvt_pk_bf16_f32 v%d, v%d, v%d' % (U + i, T + 16 + 2 * i, T + 17 + 2 * i))
        a('ds_write_b128 v9, %s offset:%d' % (vr(U, 4), e * 1024))
    a('v_lshlrev_b32 v10, 10, v3'); a('v_lshl_add_u32 v10, v2, 7, v10'); a('v_add_u32 v10, s45, v10')
    a('v_lshlrev_b32 v11, 12, v3'); a('v_lshl_add_u32 v11, v2, 4, v11')
    a('s_lshl_b32 s%d, s30, 18' % S_T0); a('s_lshl_b32 s%d, s29, 7' % S_T1); a('s_add_u32 s%d, s%d, s%d' % (S_T0, S_T0, S_T1)); a('s_add_u32 s%d, s%d, %d' % (S_T0, S_T0, WS_UT))
    a('s_waitcnt lgkmcnt(0)')
    for cc in range(8):
        a('v_xor_b32 v12, %d, v2' % cc); a('v_lshl_add_u32 v12, v12, 4, v10')
        a('ds_read_b128 %s, v12' % vr(64 + 4 * cc, 4))
    for cc in range(8):
        a('s_waitcnt lgkmcnt(%d)' % (7 - cc))
        a('s_add_u32 s%d, s%d, %d' % (S_T1, S_T0, cc * 8 * 4096))
        a('buffer_store_dwordx4 %s, v11, s[64:67], s%d offen %s' % (vr(64 + 4 * cc, 4), S_T1, st_flags))

HP = 4160
CH_H = 4 * HP
CH_U = 4576
CH_SZ = CH_H + CH_U
CONV_BASE = 36864
LDS_CONV = CONV_BASE + 4 * CH_SZ
S_CH, S_P, S_LB = 88, 89, 90
V_H = 24
V_D = 40
def conv_issue(a):
    a('s_lshr_b32 s%d, s%d, 1' % (S_T0, S_WAVE)); a('s_and_b32 s%d, s%d, 1' % (S_P, S_WAVE))
    a('s_lshl_b32 s%d, s29, 2' % S_CH); a('s_add_u32 s%d, s%d, s%d' % (S_CH, S_CH, S_T0))
    a('s_mul_i32 s%d, s%d, %d' % (S_LB, S_T0, CH_SZ)); a('s_add_u32 s%d, s%d, %d' % (S_LB, S_LB, CONV_BASE))
    a('s_lshl_b32 s%d, s%d, 12' % (S_T1, S_CH))
    srd(a, 32, P_H, 4096, 's%d' % S_T1)
    srd(a, 36, P_D, D * 2)
    a('v_lshlrev_b32 v41, 4, v0')
    a('s_lshl_b32 s%d, s%d, 11' % (S_T0, S_P)); a('v_add_u32 v42, s%d, v41' % S_T0)
    for k in range(2):
        if k: a('v_add_u32 v42, 1024, v42')
        a('buffer_load_dwordx4 %s, v42, s[32:35], 0 offen' % vr(V_H + 8 * k + 4, 4))
        a('v_subrev_u32 v43, 8, v42')
        a('buffer_load_dwordx2 %s, v43, s[32:35], 0 offen' % vr(V_H + 8 * k, 2))
    a('s_lshl_b32 s%d, s%d, 1' % (S_T0, S_CH)); a('v_mov_b32 v43, s%d' % S_T0)
    a('buffer_load_ushort v%d, v43, s[36:39], 0 offen' % V_D)

def conv_u_dma(a, ld_flags):
    a('v_lshlrev_b32 v41, 4, v0')
    a('s_lshl_b32 s%d, s%d, 12' % (S_T0, S_CH)); a('s_lshl_b32 s%d, s%d, 11' % (S_T1, S_P)); a('s_add_u32 s%d, s%d, s%d' % (S_T0, S_T0, S_T1)); a('s_add_u32 s%d, s%d, %d' % (S_T0, S_T0, WS_UT))
    a('s_add_u32 s%d, s%d, s%d' % (S_T1, S_T1, S_LB))
    for k in range(2):
        a('s_add_u32 m0, s%d, %d' % (S_T1, CH_H + 480 + k * 1024))
        a('s_add_u32 s%d, s%d, %d' % (S_T2, S_T0, k * 1024))
        a('buffer_load_dwordx4 v41, s[64:67], s%d offen %s lds' % (S_T2, ld_flags))

def conv_copies(a, nyounger, waited=False):
    for k in range(4): a('v_mov_b32 v%d, 0' % (44 + k))
    a('v_lshlrev_b32 v41, 4, v0')
    a('s_mov_b64 s[52:53], exec')
    zl = a.newlabel('Lcz'); ze = a.newlabel('Lce')
    a('s_cmp_eq_u32 s%d, 0' % S_P); a('s_cbranch_scc0 %s' % zl)
    a('v_lshrrev_b32 v42, 2, v0'); a('v_mul_u32_u24 v42, %d, v42' % HP); a('v_and_b32 v43, 3, v0'); a('v_lshl_add_u32 v42, v43, 4, v42'); a('v_add_u32 v42, s%d, v42' % S_LB)
    a('s_mov_b64 exec, 0xffff')
    a('ds_write_b128 v42, v[44:47]')
    a('s_branch %s' % ze)
    a.label(zl)
    a('s_add_u32 s%d, s%d, %d' % (S_T0, S_LB, CH_H)); a('v_add_u32 v42, s%d, v41' % S_T0)
    a('s_mov_b64 exec, 0x3fffffff')
    a('ds_write_b128 v42, v[44:47]')
    a.label(ze)
    a('s_mov_b64 exec, s[52:53]')
    a('s_lshl_b32 s%d, s%d, 11' % (S_T0, S_P)); a('s_add_u32 s%d, s%d, s%d' % (S_T0, S_T0, S_LB)); a('v_add_u32 v42, s%d, v41' % S_T0)
    if not waited: a('s_waitcnt vmcnt(%d)' % (1 + nyounger))
    for k in range(2):
        pm2, pm1 = V_H + 8 * k, V_H + 8 * k + 1
        h = V_H + 8 * k + 4
        o = 64 + k * 1024
        c1, c2, c3 = 44 + 0, 48, 52
        a('ds_write_b128 v42, %s offset:%d' % (vr(h, 4), o))
        a('v_mov_b32 v48, v%d' % pm1); a('v_mov_b32 v49, v%d' % h); a('v_mov_b32 v50, v%d' % (h + 1)); a('v_mov_b32 v51, v%d' % (h + 2))
        a('ds_write_b128 v42, v[48:51] offset:%d' % (o + 2 * HP))
        a('v_alignbit_b32 v52, v%d, v%d, 16' % (pm1, pm2))
        a('v_alignbit_b32 v53, v%d, v%d, 16' % (h, pm1))
        a('v_alignbit_b32 v54, v%d, v%d, 16' % (h + 1, h))
        a('v_alignbit_b32 v55, v%d, v%d, 16' % (h + 2, h + 1))
        a('ds_write_b128 v42, v[52:55] offset:%d' % (o + 3 * HP))
        a('v_mov_b32 v56, v53'); a('v_mov_b32 v57, v54'); a('v_mov_b32 v58, v55')
        a('v_alignbit_b32 v59, v%d, v%d, 16' % (h + 3, h + 2))
        a('ds_write_b128 v42, v[56:59] offset:%d' % (o + HP))
    a('v_lshrrev_b32 v7, 4, v0'); a('v_bfe_u32 v8, v0, 2, 2'); a('v_and_b32 v9, 3, v0')
    a('v_mul_u32_u24 v10, %d, v8' % HP); a('v_lshl_add_u32 v10, v9, 3, v10'); a('v_lshlrev_b32 v11, 4, v7'); a('v_sub_u32 v10, v10, v11')
    a('s_lshl_b32 s%d, s%d, 8' % (S_T0, S_P)); a('s_add_u32 s%d, s%d, s%d' % (S_T0, S_T0, S_LB)); a('s_add_u32 s%d, s%d, %d' % (S_T0, S_T0, 64 + 32 - 8))
    a('v_add_u32 v10, s%d, v10' % S_T0)
    a('v_and_b32 v11, 15, v0'); a('v_lshlrev_b32 v11, 5, v11'); a('v_lshl_add_u32 v11, v7, 4, v11')
    a('s_lshl_b32 s%d, s%d, 8' % (S_T0, S_P)); a('s_sub_u32 s%d, s%d, s%d' % (S_T0, S_LB, S_T0)); a('s_add_u32 s%d, s%d, %d' % (S_T0, S_T0, CH_H))
    a('v_add_u32 v11, s%d, v11' % S_T0)

def conv_main(a, st_flags=''):
    ACC = 64
    AF, BF = 96, 160
    lg = LG(a)
    def rdlist(cc):
        s_ = cc & 1
        out = []
        for pp in range(8):
            out.append(('ds_read_b128 %s, v11 offset:%d' % (vr(BF + 32 * s_ + 4 * pp, 4), 448 + 512 * pp - 64 * cc), [('B', cc, pp)]))
            for q in range(2):
                out.append(('ds_read_b64_tr_b16 %s, v10 offset:%d' % (vr(AF + 32 * s_ + 4 * pp + 2 * q, 2), 64 * cc + 512 * pp + (8 if q == 0 else 0)), [('A', cc, pp, q)]))
        return out
    for txt, tg in rdlist(0): lg.issue(txt, tg)
    first = set()
    for cc in range(4):
        s_ = cc & 1
        pend = rdlist(cc + 1) if cc < 3 else []
        pairs = sorted([(p, m_) for p in range(8) for m_ in range(8) if p + m_ <= 7], key=lambda x: (max(x), x[0]))
        n = 0
        for (p, m_) in pairs:
            lg.wait([('A', cc, p, 0), ('A', cc, p, 1), ('B', cc, m_)])
            T = p + m_
            a('v_mfma_f32_16x16x32_bf16 %s, %s, %s, %s' % (vr(ACC + 4 * T, 4), vr(AF + 32 * s_ + 4 * p, 4), vr(BF + 32 * s_ + 4 * m_, 4), vr(ACC + 4 * T, 4) if T in first else '0'))
            first.add(T)
            n += 1
            if n >= 8 and pend:
                txt, tg = pend.pop(0); lg.issue(txt, tg)
        while pend:
            txt, tg = pend.pop(0); lg.issue(txt, tg)
    a('v_lshlrev_b32 v2, 4, v0')
    a('s_lshl_b32 s%d, s%d, 12' % (S_T0, S_P)); a('s_add_u32 s%d, s%d, s%d' % (S_T0, S_T0, S_LB)); a('v_add_u32 v6, s%d, v2' % S_T0)
    a('s_xor_b32 s%d, s%d, 1' % (S_T1, S_P)); a('s_lshl_b32 s%d, s%d, 12' % (S_T1, S_T1)); a('s_add_u32 s%d, s%d, s%d' % (S_T1, S_T1, S_LB)); a('v_add_u32 v7, s%d, v2' % S_T1)
    a('v_and_b32 v8, 15, v0'); a('v_lshlrev_b32 v8, 5, v8'); a('v_lshrrev_b32 v9, 4, v0'); a('v_lshl_add_u32 v8, v9, 3, v8')
    a('s_lshl_b32 s%d, s%d, 11' % (S_T0, S_P)); a('s_add_u32 s%d, s%d, s%d' % (S_T0, S_T0, S_LB)); a('s_add_u32 s%d, s%d, %d' % (S_T0, S_T0, CH_H + 480))
    a('v_add_u32 v8, s%d, v8' % S_T0); a('v_add_u32 v9, s%d, v2' % S_T0)
    for t in range(4): a('ds_read_b64 %s, v8 offset:%d' % (vr(112 + 2 * t, 2), t * 512))
    a('v_lshlrev_b32 v%d, 16, v%d' % (V_D, V_D))
    a('s_mov_b32 s45, 0xffff0000')
    a('s_barrier')
    l1 = a.newlabel('Lcx'); l2 = a.newlabel('Lcy')
    a('s_cmp_eq_u32 s%d, 0' % S_P); a('s_cbranch_scc0 %s' % l1)
    for t in range(4): a('ds_write_b128 v6, %s offset:%d' % (vr(ACC + 16 + 4 * t, 4), t * 1024))
    a('s_branch %s' % l2)
    a.label(l1)
    for t in range(4): a('ds_write_b128 v6, %s offset:%d' % (vr(ACC + 4 * t, 4), t * 1024))
    a('s_nop 1')
    for r in range(16): a('v_mov_b32 v%d, v%d' % (ACC + r, ACC + 16 + r))
    a.label(l2)
    a('s_waitcnt lgkmcnt(4)')
    for t in range(4):
        a('v_lshlrev_b32 v120, 16, v%d' % (112 + 2 * t)); a('v_and_b32 v121, s45, v%d' % (112 + 2 * t))
        a('v_lshlrev_b32 v122, 16, v%d' % (113 + 2 * t)); a('v_and_b32 v123, s45, v%d' % (113 + 2 * t))
        for r in range(4): a('v_fmac_f32 v%d, v%d, v%d' % (ACC + 4 * t + r, 120 + r, V_D))
    a('s_waitcnt lgkmcnt(0)')
    a('s_barrier')
    for t in range(4): a('ds_read_b128 %s, v7 offset:%d' % (vr(96 + 4 * t, 4), t * 1024))
    for t in range(4):
        a('s_waitcnt lgkmcnt(%d)' % (3 - t))
        for r in range(0, 4, 2): a('v_pk_add_f32 %s, %s, %s' % (vr(ACC + 4 * t + r, 2), vr(ACC + 4 * t + r, 2), vr(96 + 4 * t + r, 2)))
        a('v_cvt_pk_bf16_f32 v%d, v%d, v%d' % (124 + 2 * t, ACC + 4 * t, ACC + 4 * t + 1))
        a('v_cvt_pk_bf16_f32 v%d, v%d, v%d' % (125 + 2 * t, ACC + 4 * t + 2, ACC + 4 * t + 3))
        a('ds_write_b64 v8, %s offset:%d' % (vr(124 + 2 * t, 2), t * 512))
    a('s_lshl_b32 s%d, s%d, 12' % (S_T0, S_CH)); a('s_lshl_b32 s%d, s%d, 11' % (S_T1, S_P)); a('s_add_u32 s%d, s%d, s%d' % (S_T0, S_T0, S_T1)); a('s_add_u32 s%d, s%d, %d' % (S_T0, S_T0, WS_YT))
    a('s_waitcnt lgkmcnt(0)')
    for k in range(2): a('ds_read_b128 %s, v9 offset:%d' % (vr(132 + 4 * k, 4), k * 1024))
    for k in range(2):
        a('s_waitcnt lgkmcnt(%d)' % (1 - k))
        a('s_add_u32 s%d, s%d, %d' % (S_T1, S_T0, k * 1024))
        a('buffer_store_dwordx4 %s, v2, s[64:67], s%d offen %s' % (vr(132 + 4 * k, 4), S_T1, st_flags))

LDS_B3 = 8 * 17408
def b3_tile(a, ld_flags='', st_flags='', wait_y=None):
    S_LB = 44
    srd(a, 32, P_Q, S * D * 2); srd(a, 52, P_OUT, S * 1152 * 2)
    a('s_mul_i32 s%d, s%d, 17408' % (S_LB, S_WAVE))
    a('v_and_b32 v2, 7, v0'); a('v_lshrrev_b32 v3, 3, v0')
    a('s_lshl_b32 s%d, s29, 6' % S_T0); a('v_add_u32 v4, s%d, v3' % S_T0); a('v_mul_u32_u24 v4, 1152, v4'); a('v_lshl_add_u32 v4, v2, 4, v4')
    a('s_lshl_b32 s%d, s30, 7' % S_T0); a('v_add_u32 v4, s%d, v4' % S_T0)
    Q = 64
    for j in range(8):
        a('s_mov_b32 s%d, %d' % (S_T0, j * 8 * 1152))
        a('buffer_load_dwordx4 %s, v4, s[32:35], s%d offen' % (vr(Q + 4 * j, 4), S_T0))
    if wait_y: wait_y(a)
    a('v_lshrrev_b32 v5, 1, v2'); a('v_and_b32 v6, 3, v3'); a('v_xor_b32 v5, v5, v6'); a('v_lshlrev_b32 v5, 1, v5'); a('v_and_b32 v6, 1, v2'); a('v_or_b32 v5, v5, v6')
    a('v_lshlrev_b32 v6, 12, v3'); a('v_lshl_add_u32 v6, v5, 4, v6')
    a('s_lshl_b32 s%d, s30, 18' % S_T0); a('s_lshl_b32 s%d, s29, 7' % S_T1); a('s_add_u32 s%d, s%d, s%d' % (S_T0, S_T0, S_T1)); a('s_add_u32 s%d, s%d, %d' % (S_T0, S_T0, WS_YT))
    for j in range(8):
        a('s_add_u32 m0, s%d, %d' % (S_LB, j * 1024))
        a('s_add_u32 s%d, s%d, %d' % (S_T1, S_T0, j * 8 * 4096))
        a('buffer_load_dwordx4 v6, s[64:67], s%d offen %s lds' % (S_T1, ld_flags))
    a('v_lshrrev_b32 v7, 4, v0'); a('v_bfe_u32 v8, v0, 2, 2'); a('v_and_b32 v9, 3, v0')
    a('v_xor_b32 v10, v7, v8'); a('v_lshlrev_b32 v10, 5, v10'); a('v_lshl_add_u32 v10, v8, 7, v10'); a('v_lshl_add_u32 v10, v9, 3, v10'); a('v_add_u32 v10, s%d, v10' % S_LB)
    a('v_mul_u32_u24 v11, 144, v0'); a('s_add_u32 s%d, s%d, 8192' % (S_T0, S_LB)); a('v_add_u32 v11, s%d, v11' % S_T0)
    a('s_waitcnt vmcnt(0)')
    Y = 96
    for chq in range(16): a('ds_read_b64_tr_b16 %s, v10 offset:%d' % (vr(Y + 2 * chq, 2), chq * 512))
    for chq in range(16):
        a('s_waitcnt lgkmcnt(%d)' % min(15, 15 - chq) if chq else 's_waitcnt lgkmcnt(15)')
        a('ds_write_b64 v11, %s offset:%d' % (vr(Y + 2 * chq, 2), chq * 8))
    a('v_mul_u32_u24 v12, 144, v3'); a('v_lshl_add_u32 v12, v2, 4, v12'); a('v_add_u32 v12, s%d, v12' % S_T0)
    a('s_waitcnt lgkmcnt(0)')
    for j in range(8): a('ds_read_b128 %s, v12 offset:%d' % (vr(Y + 4 * j, 4), j * 8 * 144))
    a('s_mov_b32 s45, 0xffff0000')
    a('s_lshl_b32 s%d, s29, 6' % S_T0); a('v_add_u32 v4, s%d, v3' % S_T0); a('v_mul_u32_u24 v4, 2304, v4'); a('v_lshl_add_u32 v4, v2, 4, v4')
    a('s_lshl_b32 s%d, s30, 7' % S_T0); a('s_add_u32 s%d, s%d, 1152' % (S_T0, S_T0)); a('v_add_u32 v4, s%d, v4' % S_T0)
    for j in range(8):
        a('s_waitcnt lgkmcnt(%d)' % (7 - j))
        for d in range(4):
            q_, y_ = Q + 4 * j + d, Y + 4 * j + d
            a('v_lshlrev_b32 v140, 16, v%d' % q_); a('v_and_b32 v141, s45, v%d' % q_)
            a('v_lshlrev_b32 v142, 16, v%d' % y_); a('v_and_b32 v143, s45, v%d' % y_)
            a('v_mul_f32 v140, v140, v142'); a('v_mul_f32 v141, v141, v143')
            a('v_cvt_pk_bf16_f32 v%d, v140, v141' % q_)
        a('s_mov_b32 s%d, %d' % (S_T0, j * 8 * 2304))
        a('buffer_store_dwordx4 %s, v4, s[52:55], s%d offen %s' % (vr(Q + 4 * j, 4), S_T0, st_flags))
```

```python
from asmlib import *

S, D = 2048, 576
WS_UT   = 0
WS_YT   = WS_UT + D * S * 2
KVP_BLK = 16 * 1024 + 512
WS_KVP  = WS_YT + D * S * 2
WS_PN   = WS_KVP + 128 * KVP_BLK
WS_W2T  = WS_PN + 128 * 18 * 1024
WS_RD   = WS_W2T + 36 * 18 * 1024
WS_FLAG = WS_RD + S * 128
WS_END  = WS_FLAG + 131072

S_KARG = 0
S_WG = 2
P_X, P_WQKV, P_WO, P_Q, P_K, P_V, P_SK, P_H = 4, 6, 8, 10, 12, 14, 16, 18
P_D, P_OUT, P_DBG, P_WS = 20, 22, 24, 26
S_WAVE = 28
KV_PAIRS = [(0,0),(1,0),(0,1),(1,1),(2,1),(1,2),(2,2),(3,2),(2,3),(3,3),(4,3),(3,4),(4,4)]

def prologue(a):
    a('s_load_dwordx16 s[4:19], s[0:1], 0')
    a('s_load_dwordx8 s[20:27], s[0:1], 64')
    a('v_lshrrev_b32 v1, 6, v0')
    a('v_and_b32 v0, 63, v0')
    a('v_readfirstlane_b32 s%d, v1' % S_WAVE)
    a('s_waitcnt lgkmcnt(0)')

def srd(a, dst, ptr, nbytes, off=None):
    if off is None:
        a('s_mov_b32 s%d, s%d' % (dst, ptr)); a('s_mov_b32 s%d, s%d' % (dst + 1, ptr + 1))
    else:
        a('s_add_u32 s%d, s%d, %s' % (dst, ptr, off)); a('s_addc_u32 s%d, s%d, 0' % (dst + 1, ptr + 1))
    a('s_mov_b32 s%d, %s' % (dst + 2, nbytes if isinstance(nbytes, str) else hex(nbytes)))
    a('s_mov_b32 s%d, 0x20000' % (dst + 3))

class LG:
    def __init__(self, a): self.a = a; self.n = 0; self.tag = {}; self.done = 0
    def issue(self, text, tags=()):
        self.a(text); self.n += 1
        for t in tags: self.tag[t] = self.n
    def wait(self, tags):
        need_ = max(self.tag[t] for t in tags)
        if need_ <= self.done: return
        k = self.n - need_
        if k > 15: k = 15; need_ = self.n - 15
        self.a('s_waitcnt lgkmcnt(%d)' % k); self.done = need_
    def waitall(self):
        if self.done < self.n: self.a('s_waitcnt lgkmcnt(0)'); self.done = self.n

def kernel_header(name):
    return '.globl %s\n.p2align 8\n.type %s,@function\n%s:\n' % (name, name, name)
def kernel_desc(name, vgpr=256, sgpr=102):
    return ('.section .rodata,"a"\n.p2align 6\n.amdhsa_kernel %s\n  .amdhsa_next_free_vgpr %d\n  .amdhsa_next_free_sgpr %d\n  .amdhsa_accum_offset %d\n'
            '  .amdhsa_group_segment_fixed_size 0\n  .amdhsa_kernarg_size 96\n  .amdhsa_user_sgpr_count 2\n  .amdhsa_user_sgpr_kernarg_segment_ptr 1\n'
            '  .amdhsa_system_sgpr_workgroup_id_x 1\n  .amdhsa_float_denorm_mode_32 3\n.end_amdhsa_kernel\n.text\n' % (name, vgpr, sgpr, (vgpr + 3) // 4 * 4))

STAMPS = False
STAMP_OP = 's_memrealtime'
NSTAMP = 12
S_STAMP = 76
def stamp(a, i):
    if not STAMPS: return
    if globals().get('DIAG_LOOP') and 1 <= i <= 9: return
    if globals().get('DIAG2') and 2 <= i <= 9: return
    if globals().get('DIAG3') and 4 <= i <= 9: return
    if globals().get('DIAG4') and 2 <= i <= 9: return
    if globals().get('DIAG5') and 1 <= i <= 6: return
    if globals().get('DIAG6') and 3 <= i <= 9: return
    a('%s s[98:99]' % STAMP_OP); a('s_waitcnt lgkmcnt(0)'); a('s_mov_b32 s%d, s98' % (S_STAMP + i))
def stamp_raw(a, i):
    a('%s s[98:99]' % STAMP_OP); a('s_waitcnt lgkmcnt(0)'); a('s_mov_b32 s%d, s98' % (S_STAMP + i))
def stamp_init(a):
    if not STAMPS: return
    for i in range(NSTAMP): a('s_mov_b32 s%d, 0' % (S_STAMP + i))
def stamp_flush(a, slot_base):
    if not STAMPS: return
    l = a.newlabel('Lst')
    a('s_cmp_eq_u32 s%d, 0' % S_WAVE); a('s_cbranch_scc0 %s' % l)
    srd(a, 92, P_DBG, 49152)
    a('s_add_u32 s98, s2, %d' % slot_base); a('s_lshl_b32 s98, s98, 6')
    for i in range(NSTAMP):
        a('v_mov_b32 v250, s%d' % (S_STAMP + i)); a('v_mov_b32 v251, %d' % (4 * i))
        a('s_mov_b64 s[90:91], exec'); a('s_mov_b64 exec, 1')
        a('buffer_store_dword v250, v251, s[92:95], s98 offen')
        a('s_mov_b64 exec, s[90:91]')
    a.label(l)
```

```python
from common import *
import common

SLOT = 36864
NSLOT = 4
XOFF, WOFF, DUMOFF = 0, 16384, 35840
LDS_GEMM1 = 163840
V_ACC = 64
V_XF = 104
V_WF = 120
V_XA0, V_XA1, V_WA = 10, 11, 12
V_XT0, V_XT1, V_WT = 13, 14, 15
V_WB, V_WT2 = 20, 21
V_GX, V_GW0, V_GW1, V_GW2 = 16, 17, 18, 19
S_RT, S_CG = 29, 30
SRD_X, SRD_W = 32, 36
S_M3 = 40; S_T0, S_T1, S_T2 = 41, 42, 43
S_MX = 44
S_MW = 45

def acc(t, mt): return V_ACC + (t * 2 + mt) * 4

def gemm1_lanes(a, isq):
    a('v_lshrrev_b32 v2, 3, v0')
    a('v_and_b32 v3, 7, v0')
    a('v_xor_b32 v3, v3, v2')
    a('s_lshl_b32 s%d, s%d, 7' % (S_T0, S_RT))
    a('s_lshl_b32 s%d, s%d, 4' % (S_T1, S_WAVE))
    a('s_add_u32 s%d, s%d, s%d' % (S_T0, S_T0, S_T1))
    a('v_lshlrev_b32 v3, 4, v3')
    a('v_add_u32 v2, s%d, v2' % S_T0)
    a('v_mul_u32_u24 v2, 1152, v2')
    a('v_add_u32 v%d, v2, v3' % V_GX)
    if isq:
        a('s_mul_i32 s%d, s%d, 288' % (S_T1, S_CG))
    else:
        a('s_mul_i32 s%d, s%d, 144' % (S_T1, S_CG))
        a('s_add_u32 s%d, s%d, 1152' % (S_T1, S_T1))
    a('s_lshl_b32 s%d, s%d, 6' % (S_T0, S_WAVE))
    for k, vg in enumerate((V_GW0, V_GW1, V_GW2)):
        a('v_add_u32 v2, s%d, v0' % S_T0)
        if k: a('v_add_u32 v2, %d, v2' % (512 * k))
        a('v_mul_u32_u24 v3, 27595, v2')
        a('v_lshrrev_b32 v3, 22, v3')
        a('v_mul_u32_u24 v4, 152, v3')
        a('v_sub_u32 v4, v2, v4')
        a('v_min_u32 v4, 143, v4')
        a('v_mul_u32_u24 v5, 3641, v4')
        a('v_lshrrev_b32 v5, 16, v5')
        a('v_mul_u32_u24 v6, 18, v5')
        a('v_sub_u32 v6, v4, v6')
        a('v_lshl_add_u32 v5, v3, 3, v5')
        a('v_mul_u32_u24 v5, 3456, v5')
        if not isq:
            a('v_cmp_le_u32 vcc, 9, v6')
            a('v_add_u32 v7, 63, v6')
            a('v_cndmask_b32 v6, v6, v7, vcc')
        a('v_lshl_add_u32 v5, v6, 4, v5')
        a('v_add_u32 v%d, s%d, v5' % (vg, S_T1))
    a('s_cmp_lt_u32 s%d, 3' % S_WAVE)
    a('s_cselect_b32 s%d, -1, 0' % S_T2)
    a('v_and_b32 v%d, s%d, v%d' % (V_GW2, S_T2, V_GW2))
    a('s_lshl_b32 s%d, s%d, 10' % (S_T0, S_WAVE))
    a('s_add_u32 s%d, s%d, %d' % (S_MW, S_T0, WOFF))
    a('s_add_u32 s%d, s%d, %d' % (S_T0, S_T0, WOFF + 16 * 1024))
    a('s_cmp_lt_u32 s%d, 3' % S_WAVE)
    a('s_cselect_b32 s%d, s%d, %d' % (S_M3, S_T0, DUMOFF))
    a('s_lshl_b32 s%d, s%d, 11' % (S_MX, S_WAVE))
    a('s_and_b32 s%d, s%d, 3' % (S_T0, S_WAVE))
    a('s_lshl_b32 s%d, s%d, 12' % (S_T0, S_T0))
    a('v_and_b32 v2, 15, v0')
    a('v_lshrrev_b32 v3, 4, v0')
    a('v_and_b32 v4, 7, v2')
    a('v_xor_b32 v4, v4, v3')
    a('v_lshlrev_b32 v4, 4, v4')
    a('v_lshl_add_u32 v4, v2, 7, v4')
    a('v_add_u32 v%d, s%d, v4' % (V_XA0, S_T0))
    a('v_xor_b32 v%d, 64, v%d' % (V_XA1, V_XA0))
    a('v_mul_u32_u24 v4, 2432, v3')
    a('v_bfe_u32 v5, v0, 2, 2')
    a('v_mul_u32_u24 v5, 288, v5')
    a('v_and_b32 v6, 3, v0')
    a('v_lshlrev_b32 v6, 3, v6')
    a('v_add3_u32 v4, v4, v5, v6')
    a('s_lshr_b32 s%d, s%d, 2' % (S_T0, S_WAVE))
    if isq:
        a('s_mul_i32 s%d, s%d, 144' % (S_T0, S_T0)); a('s_add_u32 s%d, s%d, %d' % (S_T0, S_T0, WOFF))
        a('v_add_u32 v%d, s%d, v4' % (V_WA, S_T0)); a('v_add_u32 v%d, 96, v%d' % (V_WB, V_WA))
    else:
        a('s_cmp_eq_u32 s%d, 0' % S_T0)
        a('s_cselect_b32 s%d, 0, %d' % (S_T1, 144 + 64))
        a('s_cselect_b32 s%d, %d, 0' % (S_T2, 48))
        a('s_add_u32 s%d, s%d, %d' % (S_T1, S_T1, WOFF)); a('s_add_u32 s%d, s%d, %d' % (S_T2, S_T2, WOFF + 96))
        a('v_add_u32 v%d, s%d, v4' % (V_WA, S_T1)); a('v_add_u32 v%d, s%d, v4' % (V_WB, S_T2))

def gemm1_rot(a, rot_sgpr):
    a('s_lshl_b32 s%d, s%d, 7' % (S_KX, rot_sgpr))

def gemm1_srds(a):
    srd(a, SRD_X, P_X, S * D * 2)
    srd(a, SRD_W, P_WQKV, D * 3 * D * 2)

S_KX, S_KW = 46, 47
def dma_stage(a, st):
    slot = (st % NSLOT) * SLOT
    a('s_add_u32 m0, s%d, %d' % (S_MX, slot + XOFF))
    a('s_add_u32 s%d, s%d, %d' % (S_T2, S_KX, 8 * 1152))
    a('buffer_load_dwordx4 v%d, s[%d:%d], s%d offen lds' % (V_GX, SRD_X, SRD_X + 3, S_KX))
    a('s_add_u32 m0, m0, 1024')
    a('s_mul_i32 s%d, s%d, 1728' % (S_KW, S_KX))
    a('buffer_load_dwordx4 v%d, s[%d:%d], s%d offen lds' % (V_GX, SRD_X, SRD_X + 3, S_T2))
    a('s_add_u32 m0, s%d, %d' % (S_MW, slot))
    a('s_add_u32 s%d, s%d, 128' % (S_KX, S_KX))
    a('buffer_load_dwordx4 v%d, s[%d:%d], s%d offen lds' % (V_GW0, SRD_W, SRD_W + 3, S_KW))
    a('s_add_u32 m0, m0, 8192')
    a('s_cmp_eq_u32 s%d, %d' % (S_KX, 9 * 128))
    a('buffer_load_dwordx4 v%d, s[%d:%d], s%d offen lds' % (V_GW1, SRD_W, SRD_W + 3, S_KW))
    a('s_cselect_b32 s%d, 0, s%d' % (S_KX, S_KX))
    a('s_add_u32 m0, s%d, %d' % (S_M3, slot))
    a('s_nop 0')
    a('buffer_load_dwordx4 v%d, s[%d:%d], s%d offen lds' % (V_GW2, SRD_W, SRD_W + 3, S_KW))

def gemm1_main(a, isq, hook0=None, n0=0, hook1=None, n1=0, hook_after_issue=None):
    NST = 9
    vm = []
    def issue(st):
        dma_stage(a, st); vm.extend([st] * 5)
    def wait_stage(st):
        last = max(i for i, o in enumerate(vm) if o == st)
        a('s_waitcnt vmcnt(%d)' % (len(vm) - 1 - last))
    issue(0)
    if hook0: hook0(a); vm.extend(['p'] * n0)
    issue(1)
    if hook_after_issue: hook_after_issue(a)
    lg = LG(a)
    def xf(s_, mt): return V_XF + (s_ * 2 + mt) * 4
    def wf(s_, t): return V_WF + (s_ * 5 + t) * 4
    def set_bases(st):
        slot = (st % NSLOT) * SLOT
        a('v_add_u32 v%d, %d, v%d' % (V_XT0, slot, V_XA0))
        a('v_add_u32 v%d, %d, v%d' % (V_XT1, slot, V_XA1))
        a('v_add_u32 v%d, %d, v%d' % (V_WT, slot, V_WA))
        a('v_add_u32 v%d, %d, v%d' % (V_WT2, slot, V_WB))
    def reads(st, ks):
        L = []
        xa = V_XT0 if ks == 0 else V_XT1
        for mt in range(2):
            L.append(('ds_read_b128 %s, v%d offset:%d' % (vr(xf(ks, mt), 4), xa, mt * 2048), [('x', st, ks, mt)]))
        for t in range(5):
            for q in range(2):
                base, tt = (V_WT, t) if t < 3 else (V_WT2, t - 3)
                L.append(('ds_read_b64_tr_b16 %s, v%d offset:%d' % (vr(wf(ks, t) + 2 * q, 2), base, ks * 9728 + q * 1152 + 32 * tt), [('w', st, ks, t, q)]))
        return L
    def mfmas(st, ks, pending, extra=None):
        pending = list(pending)
        for t in range(5):
            lg.wait([('x', st, ks, 0), ('x', st, ks, 1), ('w', st, ks, t, 0), ('w', st, ks, t, 1)])
            for mt in range(2):
                A, B = (xf(ks, mt), wf(ks, t)) if not isq else (wf(ks, t), xf(ks, mt))
                a('v_mfma_f32_16x16x32_bf16 %s, %s, %s, %s' % (vr(acc(t, mt), 4), vr(A, 4), vr(B, 4), vr(acc(t, mt), 4) if (st or ks) else '0'))
                n = 2 if mt == 0 else 1
                if t == 4 and mt == 1: n = 99
                for _ in range(n):
                    if pending:
                        txt, tags = pending.pop(0); lg.issue(txt, tags)
            if extra and t < len(extra): extra[t]()
    wait_stage(0)
    a('s_barrier')
    if common.STAMPS and getattr(common, 'DIAG_LOOP', False): common.stamp_raw(a, 1)
    set_bases(0)
    for txt, tags in reads(0, 0): lg.issue(txt, tags)
    for st in range(NST):
        ex0 = [lambda: issue(2)] if st == 0 else None
        mfmas(st, 0, reads(st, 1), ex0)
        if st + 1 < NST:
            wait_stage(st + 1)
            a('s_barrier')
            if common.STAMPS and getattr(common, 'DIAG_LOOP', False) and st in (1, 3, 5, 7): common.stamp_raw(a, 2 + st // 2); lg.done = lg.n
            set_bases(st + 1)
            nxt = reads(st + 1, 0)
            ex = None
            if st + 3 < NST:
                def f(s_=st):
                    issue(s_ + 3)
                    if hook1 and s_ == 3: hook1(a); vm.extend(['p'] * n1)
                ex = [f]
            mfmas(st, 1, nxt, ex)
        else:
            mfmas(st, 1, [])
    lg.waitall()

LOG2E = 0x3fb8aa3b
EPS6 = 0x358637bd
def phi(a, regs, tmp, s_l2e, s_eps):
    for k0 in range(0, len(regs), 8):
        grp = regs[k0:k0 + 8]
        for j, r in enumerate(grp): a('v_mul_f32 v%d, s%d, v%d' % (tmp + j, s_l2e, r))
        for j, r in enumerate(grp): a('v_exp_f32 v%d, v%d clamp' % (tmp + j, tmp + j))
        for j, r in enumerate(grp): a('v_max_f32 v%d, 0, v%d' % (r, r))
        for j, r in enumerate(grp): a('v_add_f32 v%d, s%d, v%d' % (tmp + j, s_eps, tmp + j))
        for j, r in enumerate(grp): a('v_add_f32 v%d, v%d, v%d' % (r, r, tmp + j))

KV_TILES = KV_PAIRS + [(4, 0), (4, 1), (4, 2)]
def phi_pk(a, regs, tmp, s_l2e2, s_eps2):
    assert len(regs) % 2 == 0 and all(regs[i] % 2 == 0 and regs[i + 1] == regs[i] + 1 for i in range(0, len(regs), 2))
    for k0 in range(0, len(regs), 8):
        grp = regs[k0:k0 + 8]
        for j in range(0, len(grp), 2): a('v_pk_mul_f32 %s, %s, %s' % (vr(tmp + j, 2), vr(grp[j], 2), sr(s_l2e2, 2)))
        for j, r in enumerate(grp): a('v_exp_f32 v%d, v%d clamp' % (tmp + j, tmp + j))
        for j, r in enumerate(grp): a('v_max_f32 v%d, 0, v%d' % (r, r))
        for j in range(0, len(grp), 2): a('v_pk_add_f32 %s, %s, %s' % (vr(tmp + j, 2), vr(tmp + j, 2), sr(s_eps2, 2)))
        for j in range(0, len(grp), 2): a('v_pk_add_f32 %s, %s, %s' % (vr(grp[j], 2), vr(grp[j], 2), vr(tmp + j, 2)))

def kv_epilogue(a, st_flags='', stampf=None, get_tag=None):
    S_L2E, S_EPS = 56, 58
    a('s_mov_b32 s56, 0x%x' % LOG2E); a('s_mov_b32 s57, 0x%x' % LOG2E); a('s_mov_b32 s58, 0x%x' % EPS6); a('s_mov_b32 s59, 0x%x' % EPS6)
    EX = 122880
    a('s_and_b32 s%d, s%d, 3' % (S_T0, S_WAVE)); a('s_mul_i32 s%d, s%d, 10240' % (S_T0, S_T0))
    a('s_lshr_b32 s%d, s%d, 2' % (S_T1, S_WAVE)); a('s_mul_i32 s%d, s%d, 5120' % (S_T2, S_T1))
    a('s_add_u32 s%d, s%d, s%d' % (S_T0, S_T0, S_T2)); a('s_add_u32 s%d, s%d, %d' % (S_T0, S_T0, EX))
    a('v_lshlrev_b32 v2, 4, v0')
    a('v_add_u32 v3, s%d, v2' % S_T0)
    lab = a.newlabel('Lkvb'); lab2 = a.newlabel('Lkvc')
    a('s_cmp_eq_u32 s%d, 0' % S_T1); a('s_cbranch_scc0 %s' % lab)
    phi_pk(a, [V_ACC + r for r in range(24)], 104, S_L2E, S_EPS)
    a('s_branch %s' % lab2)
    a.label(lab)
    phi_pk(a, [V_ACC + 24 + r for r in range(16)], 104, S_L2E, S_EPS)
    a.label(lab2)
    if stampf: stampf(a, 2)
    for t in range(5):
        f = 120 + 4 * t
        a('v_cvt_pk_bf16_f32 v%d, v%d, v%d' % (f + 0, acc(t, 0) + 0, acc(t, 0) + 1))
        a('v_cvt_pk_bf16_f32 v%d, v%d, v%d' % (f + 1, acc(t, 0) + 2, acc(t, 0) + 3))
        a('v_cvt_pk_bf16_f32 v%d, v%d, v%d' % (f + 2, acc(t, 1) + 0, acc(t, 1) + 1))
        a('v_cvt_pk_bf16_f32 v%d, v%d, v%d' % (f + 3, acc(t, 1) + 2, acc(t, 1) + 3))
        if t == 2:
            a('s_mov_b32 s%d, 0x01000100' % S_T0)
            a('s_cmp_eq_u32 s%d, 0' % S_T1); a('s_cselect_b32 s60, 0, s%d' % S_T0); a('s_mov_b32 s61, s60')
            a('v_mov_b32 v4, 0x3f803f80')
            for k in range(4): a('v_cndmask_b32 v%d, v%d, v4, s[60:61]' % (f + k, f + k))
        a('ds_write_b128 v3, %s offset:%d' % (vr(f, 4), t * 1024))
    kpos = {0: 0, 1: 1, 2: 2, 3: 5 + 3, 4: 5 + 4}; vpos = {0: 3, 1: 4, 2: 5 + 0, 3: 5 + 1, 4: 5 + 2}
    TA = sum(vpos[b] << (4 * p) for p, (b, a_) in enumerate(KV_TILES)); TB = sum(kpos[a_] << (4 * p) for p, (b, a_) in enumerate(KV_TILES))
    a('s_lshl_b32 s%d, s%d, 2' % (S_T0, S_WAVE))
    for h in range(2):
        ta = (TA >> (32 * h)) & 0xffffffff; tb = (TB >> (32 * h)) & 0xffffffff
        a('s_lshr_b32 s62, 0x%x, s%d' % (ta, S_T0)); a('s_and_b32 s62, s62, 15'); a('s_lshl_b32 s62, s62, 10'); a('s_add_u32 s62, s62, %d' % EX)
        a('s_lshr_b32 s63, 0x%x, s%d' % (tb, S_T0)); a('s_and_b32 s63, s63, 15'); a('s_lshl_b32 s63, s63, 10'); a('s_add_u32 s63, s63, %d' % EX)
        a('v_add_u32 v%d, s62, v2' % (4 + 2 * h)); a('v_add_u32 v%d, s63, v2' % (5 + 2 * h))
    a('s_lshl_b32 s%d, s%d, 4' % (S_T0, S_CG)); a('s_add_u32 s%d, s%d, s%d' % (S_T0, S_T0, S_RT))
    a('s_mul_i32 s%d, s%d, %d' % (S_T0, S_T0, KVP_BLK)); a('s_add_u32 s%d, s%d, %d' % (S_T0, S_T0, WS_KVP))
    a('s_lshl_b32 s%d, s%d, 10' % (S_T1, S_WAVE)); a('s_add_u32 s%d, s%d, s%d' % (S_T1, S_T1, S_T0))
    a('s_waitcnt lgkmcnt(0)')
    if stampf: stampf(a, 3)
    a('s_barrier')
    if stampf: stampf(a, 4)
    lg = LG(a)
    for h in range(2):
        for mw in range(4):
            r0 = 64 + 32 * h + 8 * mw
            lg.issue('ds_read_b128 %s, v%d offset:%d' % (vr(r0, 4), 4 + 2 * h, mw * 10240), [('A', h, mw)])
            lg.issue('ds_read_b128 %s, v%d offset:%d' % (vr(r0 + 4, 4), 5 + 2 * h, mw * 10240), [('B', h, mw)])
    for h in range(2):
        d = 160 + 4 * h
        for mw in range(4):
            r0 = 64 + 32 * h + 8 * mw
            lg.wait([('A', h, mw), ('B', h, mw)])
            a('v_mfma_f32_16x16x32_bf16 %s, %s, %s, %s' % (vr(d, 4), vr(r0, 4), vr(r0 + 4, 4), '0' if mw == 0 else vr(d, 4)))
    if get_tag:
        get_tag(a)
        a('v_mov_b32 v172, 0xffffff00')
        for r in range(4): a('v_bfe_u32 v%d, s92, %d, 8' % (168 + r, 8 * r))
        for k in range(8): a('v_and_or_b32 v%d, v%d, v172, v%d' % (160 + k, 160 + k, 168 + (k & 3)))
    a('buffer_store_dwordx4 v[160:163], v2, s[64:67], s%d offen %s' % (S_T1, st_flags))
    a('s_add_u32 s%d, s%d, 8192' % (S_T1, S_T1))
    a('buffer_store_dwordx4 v[164:167], v2, s[64:67], s%d offen %s' % (S_T1, st_flags))
    zown = {10: 3, 12: 4, 13: 0, 14: 1, 15: 2}
    lz = a.newlabel('Lkvz')
    tbl = 0
    for p, a_ in zown.items(): tbl |= (a_ + 1) << (4 * (p - 8))
    a('s_lshl_b32 s62, s%d, 2' % S_WAVE); a('s_lshr_b32 s62, 0x%x, s62' % tbl); a('s_and_b32 s62, s62, 15')
    a('s_cmp_eq_u32 s62, 0'); a('s_cbranch_scc1 %s' % lz)
    a('s_sub_u32 s62, s62, 1'); a('s_lshl_b32 s62, s62, 6'); a('s_add_u32 s62, s62, s%d' % S_T0); a('s_add_u32 s62, s62, %d' % (16 * 1024 - 128))
    a('v_lshlrev_b32 v3, 2, v0')
    for r in range(4): a('v_mov_b32_dpp v%d, v164 quad_perm:[%d,%d,%d,%d] row_mask:0xf bank_mask:0xf' % (176 + r, r, r, r, r))
    if get_tag:
        for r in range(4): a('v_and_or_b32 v%d, v%d, v172, v%d' % (176 + r, 176 + r, 168 + r))
    a('s_mov_b32 exec_lo, 0'); a('s_mov_b32 exec_hi, 0x1111')
    a('buffer_store_dwordx4 v[176:179], v3, s[64:67], s62 offen %s' % st_flags)
    a('s_mov_b64 exec, -1')
    a.label(lz)

def q_epilogue(a, st_flags='', ld_flags='', wait_z=None, tagged=False, spin_max=100000, stampf=None):
    a('s_mov_b32 s56, 0x%x' % LOG2E); a('s_mov_b32 s57, 0x%x' % LOG2E); a('s_mov_b32 s58, 0x%x' % EPS6); a('s_mov_b32 s59, 0x%x' % EPS6)
    phi_pk(a, [V_ACC + r for r in range(40)], 104, 56, 58)
    PB = 120
    def pb(mt, j): return PB + (mt * 3 + j) * 4
    for mt in range(2):
        for t in range(5):
            d = pb(mt, t // 2) + 2 * (t % 2)
            a('v_cvt_pk_bf16_f32 v%d, v%d, v%d' % (d, acc(t, mt), acc(t, mt) + 1))
            a('v_cvt_pk_bf16_f32 v%d, v%d, v%d' % (d + 1, acc(t, mt) + 2, acc(t, mt) + 3))
        a('v_mov_b32 v%d, 0' % (pb(mt, 2) + 2)); a('v_mov_b32 v%d, 0' % (pb(mt, 2) + 3))
    Z = 144
    MK = 192
    ZA = 164; DEN = 176; SEL = 184
    a('s_lshr_b32 s%d, s%d, 2' % (S_T0, S_WAVE))
    a('s_lshl_b32 s%d, s%d, 1' % (S_T1, S_CG))
    a('s_add_u32 s%d, s%d, s%d' % (S_T1, S_T1, S_T0))
    a('s_mul_i32 s%d, s%d, %d' % (S_T1, S_T1, 16 * KVP_BLK))
    a('s_add_u32 s48, s%d, %d' % (S_T1, WS_KVP + 16 * 1024))
    a('v_and_b32 v2, 15, v0')
    a('v_lshrrev_b32 v3, 4, v0')
    a('v_mul_u32_u24 v4, %d, v2' % KVP_BLK)
    a('v_lshl_add_u32 v4, v3, 4, v4')
    a('v_and_b32 v5, 3, v2')
    a('v_mul_u32_u24 v5, 18, v5')
    a('v_lshlrev_b32 v6, 2, v3')
    a('v_sub_u32 v5, v6, v5')
    for t in range(5):
        for r in range(4):
            a('v_add_u32 v6, %d, v5' % (16 * t + r))
            a('v_cmp_gt_u32 vcc, 18, v6')
            a('v_cndmask_b32 v%d, 0, 1.0, vcc' % (MK + 4 * t + r))
    a('v_mov_b32 v%d, 0' % (ZA + 10)); a('v_mov_b32 v%d, 0' % (ZA + 11))
    for mt in range(2):
        for k in range(4): a('v_mov_b32 v%d, s58' % (DEN + 4 * mt + k))
    a('s_mov_b64 s[54:55], 0xffff')
    a('s_mov_b32 s56, -1'); a('s_mov_b32 s57, 0')
    a('s_and_b32 s%d, s%d, 3' % (S_T0, S_WAVE)); a('s_lshl_b32 s%d, s%d, 1' % (S_T0, S_T0))
    a('s_lshl_b32 s%d, s%d, 3' % (S_T1, S_RT)); a('s_add_u32 s%d, s%d, s%d' % (S_T0, S_T0, S_T1))
    a('s_mul_i32 s%d, s%d, %d' % (S_T0, S_T0, 18 * 1024)); a('s_add_u32 s%d, s%d, %d' % (S_T0, S_T0, WS_PN))
    a('s_lshr_b32 s%d, s%d, 2' % (S_T1, S_WAVE))
    a('s_lshl_b32 s49, s%d, 2' % S_CG); a('s_lshl_b32 s53, s%d, 1' % S_T1); a('s_add_u32 s49, s49, s53')
    a('s_lshl_b32 s49, s49, 10'); a('s_add_u32 s49, s49, s%d' % S_T0)
    a('s_lshr_b32 s53, s%d, 1' % S_CG); a('s_add_u32 s53, s53, 16'); a('s_lshl_b32 s53, s53, 10'); a('s_add_u32 s53, s53, s%d' % S_T0)
    a('s_and_b32 s52, s%d, 1' % S_CG); a('s_lshl_b32 s52, s52, 3'); a('s_add_u32 s53, s53, s52')
    a('s_lshl_b32 s52, s%d, 9' % S_T1); a('s_add_u32 s53, s53, s52')
    a('v_lshlrev_b32 v2, 4, v0')
    if wait_z: wait_z(a)
    lp = a.newlabel('Lzp'); lo_ = a.newlabel('Lzo')
    if tagged:
        a('s_mov_b32 s69, 0')
        for r in range(4): a('v_bfe_u32 v%d, s92, %d, 8' % (216 + r, 8 * r))
    a.label(lp)
    for t in range(5):
        a('buffer_load_dwordx4 %s, v4, s[64:67], s48 offen offset:%d %s' % (vr(Z + 4 * t, 4), 64 * t, ld_flags))
    if tagged:
        a('s_add_u32 s69, s69, 1')
        for t in range(5):
            a('s_waitcnt vmcnt(%d)' % (4 - t))
            for r in range(4): a('v_xor_b32 v%d, v%d, v%d' % (220 + r, Z + 4 * t + r, 216 + r))
            if t == 0:
                a('v_or3_b32 v224, v220, v221, v222'); a('v_or_b32 v224, v224, v223')
            else:
                a('v_or3_b32 v224, v224, v220, v221'); a('v_or3_b32 v224, v224, v222, v223')
        a('v_and_b32 v224, 0xff, v224')
        a('v_cmp_ne_u32 vcc, 0, v224')
        a('s_cmp_ge_u32 s69, %d' % spin_max); a('s_cbranch_scc1 %s' % lo_)
        a('s_cmp_lg_u64 vcc, 0'); a('s_cbranch_scc1 %s' % lp)
        a.label(lo_)
        if stampf:
            stampf(a, 5); a('s_mov_b32 s85, s69')
    else:
        a('s_waitcnt vmcnt(0)')
    for sh in (8, 4, 2, 1):
        for k in range(20):
            a('v_add_f32_dpp v%d, v%d, v%d row_ror:%d row_mask:0xf bank_mask:0xf' % (Z + k, Z + k, Z + k, sh))
    for k in range(0, 20, 2): a('v_pk_mul_f32 %s, %s, %s' % (vr(Z + k, 2), vr(Z + k, 2), vr(MK + k, 2)))
    for t in range(5):
        d = ZA + 4 * (t // 2) + 2 * (t % 2)
        a('v_cvt_pk_bf16_f32 v%d, v%d, v%d' % (d, Z + 4 * t, Z + 4 * t + 1))
        a('v_cvt_pk_bf16_f32 v%d, v%d, v%d' % (d + 1, Z + 4 * t + 2, Z + 4 * t + 3))
    for j in range(3):
        for mt in range(2):
            a('v_mfma_f32_16x16x32_bf16 %s, %s, %s, %s' % (vr(DEN + 4 * mt, 4), vr(ZA + 4 * j, 4), vr(pb(mt, j), 4), vr(DEN + 4 * mt, 4)))
    if stampf: stampf(a, 6)
    for mt in range(2):
        for k in range(4): a('v_rcp_f32 v%d, v%d' % (DEN + 4 * mt + k, DEN + 4 * mt + k))
    for mt in range(2):
        rd = DEN + 4 * mt; s_ = SEL + 4 * mt
        a('v_cndmask_b32 v%d, v%d, v%d, s[54:55]' % (s_ + 0, rd + 1, rd + 0))
        a('v_cndmask_b32 v%d, v%d, v%d, s[54:55]' % (s_ + 1, rd + 2, rd + 1))
        a('v_cndmask_b32 v%d, v%d, v%d, s[56:57]' % (s_ + 2, rd + 3, rd + 2))
        a('v_cndmask_b32 v%d, v%d, v%d, s[54:55]' % (s_ + 3, rd + 3, rd + 2))
    for mt in range(2):
        rd = DEN + 4 * mt; s_ = SEL + 4 * mt
        for jj in range(3):
            for t in (2 * jj, 2 * jj + 1):
                if t > 4: continue
                for r in range(4):
                    if t == 0: m = rd + 0
                    elif t == 1: m = s_ + 0 if r < 2 else rd + 1
                    elif t == 2: m = s_ + 1
                    elif t == 3: m = s_ + 2 if r < 2 else s_ + 3
                    else: m = rd + 3
                    a('v_mul_f32 v%d, v%d, v%d' % (acc(t, mt) + r, acc(t, mt) + r, m))
                d = pb(mt, t // 2) + 2 * (t % 2)
                a('v_cvt_pk_bf16_f32 v%d, v%d, v%d' % (d, acc(t, mt), acc(t, mt) + 1))
                a('v_cvt_pk_bf16_f32 v%d, v%d, v%d' % (d + 1, acc(t, mt) + 2, acc(t, mt) + 3))
            if jj < 2:
                a('s_add_u32 s52, s49, %d' % (mt * 18 * 1024 + jj * 1024))
                a('buffer_store_dwordx4 %s, v2, s[64:67], s52 offen %s' % (vr(pb(mt, jj), 4), st_flags))
            else:
                a('s_add_u32 s52, s53, %d' % (mt * 18 * 1024))
                a('s_mov_b64 exec, s[56:57]')
                a('buffer_store_dwordx2 %s, v2, s[64:67], s52 offen %s' % (vr(pb(mt, 2), 2), st_flags))
                a('s_mov_b64 exec, -1')
```

```python
from common import *
S_T0, S_T1, S_T2 = 41, 42, 43
S_TASK = 29

W2_PITCH = 1184
LDS_W2_RED = 0
LDS_W2_AF = 32768
LDS_W2_WO = 34816
LDS_W2 = LDS_W2_WO + 81920
PIDX = {pr: p for p, pr in enumerate(KV_PAIRS)}

def w2_prefetch(a):
    srd(a, 32, P_WO, D * D * 2)
    a('s_cmp_lt_u32 s%d, 32' % S_TASK)
    lm = a.newlabel('Lw2m'); le = a.newlabel('Lw2e')
    a('s_cbranch_scc0 %s' % lm)
    a('s_lshr_b32 s30, s%d, 2' % S_TASK); a('s_and_b32 s31, s%d, 3' % S_TASK)
    a('s_max_u32 s%d, s31, 1' % S_T0); a('s_sub_u32 s%d, s%d, 1' % (S_T0, S_T0)); a('s_lshl_b32 s%d, s%d, 4' % (S_T0, S_T0))
    a('s_mul_i32 s%d, s30, 72' % S_T1); a('s_add_u32 s%d, s%d, s%d' % (S_T0, S_T0, S_T1))
    a('s_mov_b32 s%d, 0' % S_T1)
    a('s_branch %s' % le)
    a.label(lm)
    a('s_sub_u32 s30, s%d, 32' % S_TASK); a('s_lshl_b32 s30, s30, 1'); a('s_mov_b32 s31, 4')
    a('s_mul_i32 s%d, s30, 72' % S_T0); a('s_add_u32 s%d, s%d, 48' % (S_T0, S_T0))
    a('s_mov_b32 s%d, 40' % S_T1)
    a.label(le)
    a('s_lshl_b32 s%d, s%d, 6' % (S_T2, S_WAVE))
    a('s_lshl_b32 s44, s%d, 10' % S_WAVE)
    for k in range(10):
        a('v_add_u32 v2, s%d, v0' % S_T2)
        if k: a('v_add_u32 v2, %d, v2' % (512 * k))
        a('v_mul_u32_u24 v3, 3543, v2')
        a('v_lshrrev_b32 v3, 18, v3')
        a('v_mul_u32_u24 v4, 74, v3')
        a('v_sub_u32 v4, v2, v4')
        a('v_min_u32 v4, 71, v4')
        a('v_cmp_le_u32 vcc, 32, v3')
        a('v_mov_b32 v5, s%d' % S_T1)
        a('v_cndmask_b32 v5, 0, v5, vcc')
        a('v_add3_u32 v3, v3, v5, s%d' % S_T0)
        a('v_mul_u32_u24 v3, 1152, v3')
        a('v_lshl_add_u32 v3, v4, 4, v3')
        a('s_add_u32 m0, s44, %d' % (LDS_W2_WO + k * 8192))
        a('s_nop 0')
        a('buffer_load_dwordx4 v3, s[32:35], 0 offen lds')
for q in range(5120): assert (q * 3543) >> 18 == q // 74, q

def w2_main(a, st_flags='', ld_flags='', wait_kv=None, tagged=False, spin_max=100000, stampf=None):
    end = a.newlabel('Lw2end')
    a('v_lshlrev_b32 v2, 4, v0')
    a('v_and_b32 v6, 15, v0'); a('v_lshrrev_b32 v7, 4, v0')
    a('v_bfe_u32 v14, v0, 2, 2'); a('v_lshl_add_u32 v14, v7, 2, v14'); a('v_mul_u32_u24 v14, %d, v14' % W2_PITCH)
    a('v_and_b32 v9, 3, v0'); a('v_lshl_add_u32 v14, v9, 3, v14')
    a('s_lshl_b32 s%d, s%d, 5' % (S_T0, S_WAVE)); a('s_add_u32 s%d, s%d, %d' % (S_T0, S_T0, LDS_W2_WO)); a('v_add_u32 v14, s%d, v14' % S_T0)
    lm = a.newlabel('Lw2j'); le = a.newlabel('Lw2k')
    a('s_cmp_lt_u32 s31, 4'); a('s_cbranch_scc0 %s' % lm)
    a('s_lshl_b32 s%d, s30, 1' % S_T0); a('s_lshr_b32 s%d, s31, 1' % S_T1); a('s_add_u32 s%d, s%d, s%d' % (S_T0, S_T0, S_T1)); a('s_and_b32 s%d, s31, 1' % S_T1)
    a('s_branch %s' % le)
    a.label(lm)
    a('s_lshr_b32 s%d, s30, 2' % S_T0); a('s_add_u32 s%d, s%d, 16' % (S_T0, S_T0)); a('s_lshr_b32 s%d, s30, 1' % S_T1); a('s_and_b32 s%d, s%d, 1' % (S_T1, S_T1))
    a.label(le)
    a('s_lshl_b32 s%d, s%d, 10' % (S_T0, S_T0)); a('s_lshl_b32 s%d, s%d, 3' % (S_T1, S_T1)); a('s_add_u32 s%d, s%d, s%d' % (S_T0, S_T0, S_T1))
    a('s_mul_i32 s%d, s%d, %d' % (S_T1, S_WAVE, 18 * 1024)); a('s_add_u32 s%d, s%d, s%d' % (S_T0, S_T0, S_T1)); a('s_add_u32 s46, s%d, %d' % (S_T0, WS_W2T))
    a('s_lshl_b32 s%d, s30, 4' % S_T0); a('s_lshl_b32 s%d, s%d, 1' % (S_T1, S_WAVE)); a('s_add_u32 s%d, s%d, s%d' % (S_T0, S_T0, S_T1))
    a('s_mul_i32 s%d, s%d, %d' % (S_T0, S_T0, KVP_BLK)); a('s_add_u32 s47, s%d, %d' % (S_T0, WS_KVP))
    a('s_lshl_b32 s%d, s%d, 12' % (S_T0, S_WAVE)); a('v_add_u32 v9, s%d, v2' % S_T0)
    a('s_lshl_b32 s%d, s%d, 10' % (S_T0, S_WAVE)); a('v_add_u32 v10, s%d, v2' % S_T0)
    a('s_lshr_b32 s%d, s%d, 1' % (S_T0, S_WAVE)); a('s_lshl_b32 s%d, s%d, 10' % (S_T0, S_T0))
    a('s_and_b32 s%d, s%d, 1' % (S_T1, S_WAVE)); a('s_lshl_b32 s%d, s%d, 3' % (S_T1, S_T1)); a('s_add_u32 s%d, s%d, s%d' % (S_T0, S_T0, S_T1))
    a('v_add_u32 v11, s%d, v2' % S_T0)
    for var in range(5):
        nxt = a.newlabel('Lw2v')
        a('s_cmp_eq_u32 s31, %d' % var); a('s_cbranch_scc0 %s' % nxt)
        if var == 0: tiles = [(0, 0, 0), (0, 1, 0)]
        elif var == 1: tiles = [(0, 0, 1), (0, 1, 1), (0, 2, 1)]
        elif var == 2: tiles = [(0, 1, 2), (0, 2, 2), (0, 3, 2)]
        elif var == 3: tiles = [(0, 2, 3), (0, 3, 3), (0, 4, 3)]
        else: tiles = [(0, 3, 4), (0, 4, 4), (1, 3, 4), (1, 4, 4)]
        if var == 4:
            a('v_cmp_le_u32 vcc, 8, v6')
            a('v_subrev_u32 v8, 128, v2')
            a('v_cndmask_b32 v8, v2, v8, vcc')
        a_ = tiles[0][2]
        if var == 4:
            a('s_cmp_ge_u32 s%d, 2' % S_WAVE); a('s_cselect_b32 s%d, 8, 0' % S_T1)
            a('v_subrev_u32 v12, s%d, v6' % S_T1)
            a('v_cmp_gt_u32 vcc, 8, v12')
            a('v_mov_b32 v13, 54'); a('v_mov_b32 v15, 0x10000')
            a('v_cndmask_b32 v13, v15, v13, vcc')
        else:
            a('v_add_u32 v12, %d, v6' % (16 * a_))
            a('v_mul_u32_u24 v13, 3641, v12'); a('v_lshrrev_b32 v13, 16, v13'); a('v_mul_u32_u24 v13, 18, v13')
        bl = [t_[1] for t_ in tiles] + [0] * (4 - len(tiles))
        a('s_mov_b32 s%d, 0x%x' % (S_T1, sum(b << (8 * k) for k, b in enumerate(bl))))
        a('s_and_b32 s%d, s%d, 3' % (S_T2, S_WAVE)); a('s_lshl_b32 s%d, s%d, 3' % (S_T2, S_T2)); a('s_lshr_b32 s%d, s%d, s%d' % (S_T1, S_T1, S_T2)); a('s_and_b32 s%d, s%d, 0xff' % (S_T1, S_T1))
        a('s_lshl_b32 s%d, s%d, 4' % (S_T1, S_T1))
        a('v_lshlrev_b32 v12, 2, v7'); a('v_add_u32 v12, s%d, v12' % S_T1); a('v_sub_u32 v12, v12, v13')
        for r in range(4):
            a('v_add_u32 v13, %d, v12' % r)
            a('v_cmp_gt_u32 vcc, 18, v13')
            a('v_cndmask_b32 v%d, 0, 1.0, vcc' % (16 + r))
        a('s_cmp_lt_u32 s%d, %d' % (S_WAVE, len(tiles))); a('s_cselect_b32 s%d, 1.0, 0' % S_T1)
        for r in range(4): a('v_mul_f32 v%d, s%d, v%d' % (16 + r, S_T1, 16 + r))
        if wait_kv: wait_kv(a)
        lp = a.newlabel('Lwp'); lo_ = a.newlabel('Lwo')
        if tagged:
            a('s_mov_b32 s69, 0')
            for r in range(4): a('v_bfe_u32 v%d, s92, %d, 8' % (100 + r, 8 * r))
        a.label(lp)
        for q, (dh, b, a_) in enumerate(tiles):
            for rr in range(2):
                off = dh * 16 * KVP_BLK + rr * KVP_BLK + PIDX[(b, a_)] * 1024
                a('s_add_u32 s%d, s47, %d' % (S_T1, off))
                va = 8 if (var == 4 and dh == 1) else 2
                a('buffer_load_dwordx4 %s, v%d, s[64:67], s%d offen %s' % (vr(64 + 8 * q + 4 * rr, 4), va, S_T1, ld_flags))
        if tagged:
            a('s_add_u32 s69, s69, 1')
            n = 2 * len(tiles)
            for c in range(n):
                a('s_waitcnt vmcnt(%d)' % (n - 1 - c))
                for r in range(4): a('v_xor_b32 v%d, v%d, v%d' % (104 + r, 64 + 4 * c + r, 100 + r))
                if c == 0:
                    a('v_or3_b32 v108, v104, v105, v106'); a('v_or_b32 v108, v108, v107')
                else:
                    a('v_or3_b32 v108, v108, v104, v105'); a('v_or3_b32 v108, v108, v106, v107')
            a('v_and_b32 v108, 0xff, v108')
            a('v_cmp_ne_u32 vcc, 0, v108')
            a('s_cmp_ge_u32 s69, %d' % spin_max); a('s_cbranch_scc1 %s' % lo_)
            a('s_cmp_lg_u64 vcc, 0'); a('s_cbranch_scc1 %s' % lp)
            a.label(lo_)
            if stampf:
                stampf(a, 4); a('s_mov_b32 s85, s69')
        for q in range(len(tiles)):
            if not tagged: a('s_waitcnt vmcnt(%d)' % (2 * (len(tiles) - 1 - q)))
            for k in range(0, 4, 2): a('v_pk_add_f32 %s, %s, %s' % (vr(64 + 8 * q + k, 2), vr(64 + 8 * q + k, 2), vr(64 + 8 * q + 4 + k, 2)))
            a('ds_write_b128 v9, %s offset:%d' % (vr(64 + 8 * q, 4), LDS_W2_RED + q * 1024))
        a('s_branch %s' % end)
        a.label(nxt)
    a.label(end)
    a('s_waitcnt lgkmcnt(0)')
    a('s_barrier')
    if stampf: stampf(a, 5)
    skip = a.newlabel('Lw2skip')
    a('s_cmp_ge_u32 s%d, 4' % S_WAVE); a('s_cbranch_scc1 %s' % skip)
    for w in range(8): a('ds_read_b128 %s, v10 offset:%d' % (vr(64 + 4 * w, 4), LDS_W2_RED + w * 4096))
    for w in range(1, 8):
        a('s_waitcnt lgkmcnt(%d)' % (7 - w))
        for k in range(0, 4, 2): a('v_pk_add_f32 %s, %s, %s' % (vr(64 + k, 2), vr(64 + k, 2), vr(64 + 4 * w + k, 2)))
    for r in range(4):
        a('v_cmp_neq_f32 vcc, 0, v%d' % (16 + r))
        a('v_cndmask_b32 v%d, 0, v%d, vcc' % (64 + r, 64 + r))
    a('v_cvt_pk_bf16_f32 v68, v64, v65'); a('v_cvt_pk_bf16_f32 v69, v66, v67')
    a('ds_write_b64 v11, v[68:69] offset:%d' % LDS_W2_AF)
    a.label(skip)
    a('s_waitcnt vmcnt(0) lgkmcnt(0)')
    a('s_barrier')
    if stampf: stampf(a, 7)
    a('ds_read_b128 v[64:67], v2 offset:%d' % LDS_W2_AF)
    a('ds_read_b128 v[68:71], v2 offset:%d' % (LDS_W2_AF + 1024))
    for k in range(5):
        for u in range(2):
            for h in range(2):
                a('ds_read_b64_tr_b16 %s, v14 offset:%d' % (vr(72 + 8 * k + 4 * u + 2 * h, 2), (u * 32 + h * 16) * W2_PITCH + 256 * k))
    for k in range(5):
        if k == 4:
            skip = a.newlabel('Lw2t'); a('s_cmp_ge_u32 s%d, 4' % S_WAVE); a('s_cbranch_scc1 %s' % skip)
        a('s_waitcnt lgkmcnt(%d)' % min(15, 4 * (4 - k) + 2))
        a('v_mfma_f32_16x16x32_bf16 %s, v[64:67], %s, 0' % (vr(120 + 4 * k, 4), vr(72 + 8 * k, 4)))
        a('s_waitcnt lgkmcnt(%d)' % min(15, 4 * (4 - k)))
        a('v_mfma_f32_16x16x32_bf16 %s, v[68:71], %s, %s' % (vr(120 + 4 * k, 4), vr(76 + 8 * k, 4), vr(120 + 4 * k, 4)))
        if k == 4: a.label(skip)
    for k in range(5):
        if k == 4:
            skip = a.newlabel('Lw2s'); a('s_cmp_ge_u32 s%d, 4' % S_WAVE); a('s_cbranch_scc1 %s' % skip)
        a('v_cvt_pk_bf16_f32 v%d, v%d, v%d' % (140 + 2 * k, 120 + 4 * k, 121 + 4 * k)); a('v_cvt_pk_bf16_f32 v%d, v%d, v%d' % (141 + 2 * k, 122 + 4 * k, 123 + 4 * k))
        a('s_add_u32 s%d, s46, %d' % (S_T1, k * 8 * 18 * 1024))
        a('buffer_store_dwordx2 %s, v2, s[64:67], s%d offen %s' % (vr(140 + 2 * k, 2), S_T1, st_flags))
        if k == 4: a.label(skip)

OUT_STG = 30720
OUT_NSLOT = 5
OUT_DUM = OUT_STG * OUT_NSLOT
LDS_OUT = OUT_DUM + 1024
def out_setup(a):
    for k in range(4):
        a('s_add_u32 s%d, s%d, %d' % (S_T0, S_WAVE, 8 * k))
        a('s_min_u32 s%d, s%d, 29' % (S_T0, S_T0))
        a('s_mul_i32 s%d, s%d, 6554' % (S_T1, S_T0)); a('s_lshr_b32 s%d, s%d, 16' % (S_T1, S_T1))
        a('s_mul_i32 s%d, s%d, 10' % (S_T2, S_T1)); a('s_sub_u32 s%d, s%d, s%d' % (S_T2, S_T0, S_T2))
        a('s_lshl_b32 s44, s29, 2'); a('s_add_u32 s44, s44, s%d' % S_T2); a('s_mul_i32 s44, s44, 18432'); a('s_add_u32 s44, s44, %d' % WS_PN)
        a('s_mul_i32 s45, s30, 6'); a('s_add_u32 s45, s45, s%d' % S_T2); a('s_mul_i32 s45, s45, 18432'); a('s_add_u32 s45, s45, %d' % (WS_W2T - 4 * 18432))
        a('s_cmp_lt_u32 s%d, 4' % S_T2); a('s_cselect_b32 s44, s44, s45')
        a('s_lshl_b32 s%d, s%d, 10' % (S_T1, S_T1)); a('s_add_u32 s%d, s44, s%d' % (60 + k, S_T1))
    a('v_lshlrev_b32 v2, 4, v0')
    a('s_lshl_b32 s44, s%d, 10' % S_WAVE)
    a('s_cmp_ge_u32 s%d, 6' % S_WAVE); a('s_cselect_b32 s45, 1, 0')
    a('s_and_b32 s%d, s%d, 3' % (S_T0, S_WAVE)); a('s_lshl_b32 s%d, s%d, 10' % (S_T0, S_T0)); a('v_add_u32 v10, s%d, v2' % S_T0)
    a('s_lshr_b32 s%d, s%d, 2' % (S_T0, S_WAVE)); a('s_mul_i32 s%d, s%d, 3072' % (S_T0, S_T0)); a('s_add_u32 s%d, s%d, 4096' % (S_T0, S_T0)); a('v_add_u32 v11, s%d, v2' % S_T0)
    srd(a, 52, P_OUT, S * 1152 * 2)
    a('v_and_b32 v3, 15, v0'); a('v_lshrrev_b32 v4, 4, v0')
    a('s_and_b32 s%d, s%d, 3' % (S_T0, S_WAVE)); a('s_lshl_b32 s%d, s%d, 4' % (S_T0, S_T0)); a('v_add_u32 v3, s%d, v3' % S_T0)
    a('v_mul_u32_u24 v3, %d, v3' % OUT_PITCH); a('v_lshl_add_u32 v3, v4, 3, v3')
    a('s_lshr_b32 s%d, s%d, 2' % (S_T0, S_WAVE)); a('s_mul_i32 s%d, s%d, 96' % (S_T0, S_T0)); a('v_add_u32 v14, s%d, v3' % S_T0)
    for k in range(2):
        a('s_lshl_b32 s%d, s%d, 6' % (S_T0, S_WAVE)); a('s_add_u32 s%d, s%d, %d' % (S_T0, S_T0, 512 * k))
        a('v_add_u32 v5, s%d, v0' % S_T0)
        a('v_mul_u32_u24 v6, 5462, v5'); a('v_lshrrev_b32 v6, 16, v6')
        a('v_mul_u32_u24 v7, 12, v6'); a('v_sub_u32 v7, v5, v7')
        a('v_mul_u32_u24 v8, %d, v6' % OUT_PITCH); a('v_lshl_add_u32 v%d, v7, 4, v8' % (16 + 2 * k))
        a('s_lshl_b32 s%d, s29, 6' % S_T0); a('v_add_u32 v6, s%d, v6' % S_T0)
        a('v_mul_u32_u24 v6, 2304, v6'); a('v_lshl_add_u32 v%d, v7, 4, v6' % (17 + 2 * k))
    a('s_mul_i32 s46, s30, 192')

def out_dma(a, st, ld_flags):
    slot = (st % OUT_NSLOT) * OUT_STG
    for k in range(4):
        if k < 3:
            a('s_add_u32 m0, s44, %d' % (slot + k * 8192))
        else:
            a('s_add_u32 m0, s44, %d' % (slot + k * 8192))
            a('s_cmp_eq_u32 s45, 0'); a('s_cselect_b32 m0, m0, %d' % OUT_DUM)
        a('s_add_u32 s%d, s%d, %d' % (S_T0, 60 + k, st * 3072))
        a('buffer_load_dwordx4 v2, s[64:67], s%d offen %s lds' % (S_T0, ld_flags))

def out_main(a, ld_flags='', wait_in=None):
    NST = 6
    ACC = 64
    if wait_in: wait_in(a)
    for st in range(5): out_dma(a, st, ld_flags)
    issued = 5
    lg = LG(a)
    F = 80
    for st in range(NST):
        a('s_waitcnt vmcnt(%d)' % (4 * (issued - 1 - st)))
        a('s_barrier')
        if st == 1: out_dma(a, 5, ld_flags); issued = 6
        slot = (st % OUT_NSLOT) * OUT_STG
        a('v_add_u32 v12, %d, v10' % slot); a('v_add_u32 v13, %d, v11' % slot)
        def rd(kk):
            s_ = F + 16 * (kk % 2)
            lg.issue('ds_read_b128 %s, v12 offset:%d' % (vr(s_, 4), kk * 10240), [('b', st, kk)])
            for t in range(3): lg.issue('ds_read_b128 %s, v13 offset:%d' % (vr(s_ + 4 + 4 * t, 4), kk * 10240 + t * 1024), [('a', st, kk, t)])
        rd(0); rd(1)
        for kk in range(3):
            s_ = F + 16 * (kk % 2)
            for t in range(3):
                lg.wait([('b', st, kk), ('a', st, kk, t)])
                a('v_mfma_f32_16x16x32_bf16 %s, %s, %s, %s' % (vr(ACC + 4 * t, 4), vr(s_ + 4 + 4 * t, 4), vr(s_, 4), vr(ACC + 4 * t, 4) if (st or kk) else '0'))
            if kk == 0: rd(2)
        lg.waitall()

OUT_PITCH = 208
def out_epilogue(a, st_flags=''):
    ACC = 64
    for t in range(3):
        a('v_cvt_pk_bf16_f32 v%d, v%d, v%d' % (80 + 2 * t, ACC + 4 * t, ACC + 4 * t + 1))
        a('v_cvt_pk_bf16_f32 v%d, v%d, v%d' % (81 + 2 * t, ACC + 4 * t + 2, ACC + 4 * t + 3))
    for t in range(3): a('ds_write_b64 v14, %s offset:%d' % (vr(80 + 2 * t, 2), 2 * OUT_STG + 32 * t))
    a('s_waitcnt lgkmcnt(0)')
    a('s_barrier')
    a('ds_read_b128 v[88:91], v16 offset:%d' % (2 * OUT_STG))
    skip = a.newlabel('Lout'); a('s_cmp_ge_u32 s%d, 4' % S_WAVE); a('s_cbranch_scc1 %s' % skip)
    a('ds_read_b128 v[92:95], v18 offset:%d' % (2 * OUT_STG))
    a('s_waitcnt lgkmcnt(0)')
    a('buffer_store_dwordx4 v[92:95], v19, s[52:55], s46 offen %s' % st_flags)
    a.label(skip)
    a('s_waitcnt lgkmcnt(0)')
    a('buffer_store_dwordx4 v[88:91], v17, s[52:55], s46 offen %s' % st_flags)
for q in range(768): assert (q * 5462) >> 16 == q // 12
for f in range(30): assert (f * 6554) >> 16 == f // 10
```

```python
import sys
from common import *
import common, gemm1, w2out, bpart

S_NONCE = 70
S_X, S_SLOT = 71, 72
F_U, F_KV, F_PN, F_W2, F_Y = 0, 64, 192, 256, 320
ST = 'sc1'; LD = 'sc1'
SPIN_MAX = 100000
PREFETCH = True
ROT = True
CODE_END = 'Lcode_end'
SRD_F = 64

def nonce_publish(a):
    l = a.newlabel('Lnpub')
    a('s_or_b32 s68, s2, s%d' % S_WAVE); a('s_cmp_eq_u32 s68, 0'); a('s_cbranch_scc0 %s' % l)
    srd(a, 60, P_DBG, 256)
    a('s_memrealtime s[68:69]'); a('v_mov_b32 v240, 0'); a('s_waitcnt lgkmcnt(0)')
    a('s_or_b32 s68, s68, 1')
    a('v_mov_b32 v241, s68')
    a('s_mov_b64 s[68:69], exec'); a('s_mov_b64 exec, 1')
    a('buffer_store_dword v241, v240, s[60:63], 0 offen sc1')
    a('s_mov_b64 exec, s[68:69]')
    a.label(l)

def nonce_issue(a):
    l = a.newlabel('Lni')
    a('s_cmp_eq_u32 s%d, 0' % S_WAVE); a('s_cbranch_scc0 %s' % l)
    srd(a, 60, P_DBG, 256)
    a('v_mov_b32 v240, 0')
    a('buffer_load_dword v239, v240, s[60:63], 0 offen sc1')
    a.label(l)

def nonce_finish(a):
    l = a.newlabel('Lnf'); p = a.newlabel('Lnq')
    a('s_cmp_eq_u32 s%d, 0' % S_WAVE); a('s_cbranch_scc0 %s' % l)
    srd(a, 60, P_DBG, 256)
    a('s_mov_b32 s69, 0'); a('v_mov_b32 v240, 0')
    a('s_waitcnt vmcnt(0)')
    a('v_readfirstlane_b32 s%d, v239' % S_NONCE)
    a('s_cmp_lg_u32 s%d, 0' % S_NONCE); a('s_cbranch_scc1 %s' % l)
    a.label(p)
    a('buffer_load_dword v239, v240, s[60:63], 0 offen sc1')
    a('s_add_u32 s69, s69, 1')
    a('s_waitcnt vmcnt(0)')
    a('v_readfirstlane_b32 s%d, v239' % S_NONCE)
    a('s_cmp_ge_u32 s69, %d' % SPIN_MAX); a('s_cbranch_scc1 %s' % l)
    a('s_cmp_eq_u32 s%d, 0' % S_NONCE)
    a('s_cbranch_scc1 %s' % p)
    a.label(l)

def nonce_issue_all(a):
    srd(a, 60, P_DBG, 256)
    a('v_mov_b32 v240, 0')
    a('buffer_load_dword v239, v240, s[60:63], 0 offen sc1')

def nonce_finish_all(a):
    l = a.newlabel('Lnf'); p = a.newlabel('Lnq')
    a('s_waitcnt vmcnt(0)')
    a('v_readfirstlane_b32 s%d, v239' % S_NONCE)
    a('s_cmp_lg_u32 s%d, 0' % S_NONCE); a('s_cbranch_scc1 %s' % l)
    srd(a, 60, P_DBG, 256)
    a('s_mov_b32 s69, 0'); a('v_mov_b32 v240, 0')
    a.label(p)
    a('buffer_load_dword v239, v240, s[60:63], 0 offen sc1')
    a('s_add_u32 s69, s69, 1')
    a('s_waitcnt vmcnt(0)')
    a('v_readfirstlane_b32 s%d, v239' % S_NONCE)
    a('s_cmp_ge_u32 s69, %d' % SPIN_MAX); a('s_cbranch_scc1 %s' % l)
    a('s_cmp_eq_u32 s%d, 0' % S_NONCE)
    a('s_cbranch_scc1 %s' % p)
    a.label(l)

def tag_ready(a):
    l = a.newlabel('Ltr')
    a('v_readfirstlane_b32 s%d, v239' % S_NONCE)
    a('s_cmp_lg_u32 s%d, 0' % S_NONCE); a('s_cbranch_scc1 %s' % l)
    nonce_issue_all(a); nonce_finish_all(a)
    a.label(l)
    a('s_mul_i32 s92, s%d, 0x9E3779B1' % S_NONCE)

def hint(a, idx_sgpr_expr):
    l = a.newlabel('Lhint')
    a('s_cmp_eq_u32 s%d, 0' % S_WAVE); a('s_cbranch_scc0 %s' % l)
    idx_sgpr_expr(a)
    a('s_lshl_b32 s68, s68, 7'); a('s_add_u32 s68, s68, %d' % WS_FLAG)
    a('v_mov_b32 v240, 0'); a('v_mov_b32 v241, s%d' % S_NONCE)
    a('s_mov_b64 exec, 1')
    a('buffer_store_dword v241, v240, s[%d:%d], s68 offen sc1' % (SRD_F, SRD_F + 3))
    a('s_mov_b64 exec, -1')
    a.label(l)

def wave_wait_flags(a, lane_idx):
    l = a.newlabel('Lwf'); p = a.newlabel('Lwp')
    lane_idx(a)
    a('v_lshlrev_b32 v242, 7, v242'); a('v_add_u32 v242, %d, v242' % WS_FLAG)
    a('s_mov_b32 s69, 0')
    a.label(p)
    a('buffer_load_dword v243, v242, s[%d:%d], 0 offen sc1' % (SRD_F, SRD_F + 3))
    a('s_add_u32 s69, s69, 1')
    a('s_waitcnt vmcnt(0)')
    a('v_cmp_ne_u32 vcc, s%d, v243' % S_NONCE)
    a('s_cmp_ge_u32 s69, %d' % SPIN_MAX); a('s_cbranch_scc1 %s' % l)
    a('s_cmp_lg_u64 vcc, 0')
    a('s_cbranch_scc1 %s' % p)
    a.label(l)

PF = 238
def prefetch0(a):
    l_d = a.newlabel('Lpfd'); l_e = a.newlabel('Lpfe')
    a('s_and_b32 s56, s%d, 15' % S_SLOT); a('s_cmp_eq_u32 s56, 0'); a('s_cbranch_scc1 %s' % l_d)
    a('v_mov_b32 v3, 0'); a('buffer_load_dword v%d, v3, s[32:35], 0 offen' % PF)
    a('s_branch %s' % l_e)
    a.label(l_d)
    a('s_getpc_b64 s[56:57]')
    pcl = a.newlabel('Lpc'); a.label(pcl)
    a('s_lshl_b32 s59, s%d, 13' % S_WAVE)
    a('v_lshlrev_b32 v2, 7, v0'); a('v_add_u32 v2, s59, v2')
    a('v_min_u32 v2, %s - %s, v2' % (CODE_END, pcl))
    a('v_mov_b32 v5, s57'); a('v_add_co_u32 v4, vcc, s56, v2'); a('v_addc_co_u32 v5, vcc, 0, v5, vcc')
    a('global_load_dword v%d, v[4:5], off' % PF)
    a.label(l_e)
for q in range(7680): assert (q * 34953) >> 19 == q // 15
for q in range(15): assert (q * 13108) >> 16 == q // 5

def prefetch1(a, iskv):
    lb = a.newlabel('Lpfb'); lbe = a.newlabel('Lpfbe')
    if iskv:
        a('s_lshl_b32 s56, s%d, 3' % S_SLOT); a('s_add_u32 s56, s56, s%d' % S_X)
        a('s_cmp_lt_u32 s56, 116'); a('s_cselect_b32 s57, 1, 0'); a('s_cmp_lt_u32 s%d, 2' % S_WAVE); a('s_cselect_b32 s57, s57, 0')
        a('s_cmp_eq_u32 s57, 0'); a('s_cbranch_scc1 %s' % lb)
        srd(a, 60, P_H, D * S * 2)
        a('s_add_u32 s57, s56, 28'); a('s_lshl_b32 s57, s57, 14'); a('s_lshl_b32 s58, s%d, 13' % S_WAVE); a('s_add_u32 s57, s57, s58')
        a('v_lshlrev_b32 v3, 7, v0')
        a('buffer_load_dword v%d, v3, s[60:63], s57 offen' % PF)
        a('s_branch %s' % lbe)
    a.label(lb)
    a('v_mov_b32 v3, 0'); a('buffer_load_dword v%d, v3, s[32:35], 0 offen' % PF)
    a.label(lbe)
    lq = a.newlabel('Lpfq'); lqe = a.newlabel('Lpfqe')
    a('v_and_b32 v3, 7, v0'); a('v_lshlrev_b32 v3, 21, v3'); a('v_min_u32 v3, %d, v3' % (WS_END - 4))
    a('buffer_load_dword v%d, v3, s[%d:%d], 0 offen' % (PF, SRD_F, SRD_F + 3))
    nonce_issue_all(a)

def publish(a, idx_sgpr_expr, lgkm=False):
    a('s_waitcnt vmcnt(0) lgkmcnt(0)' if lgkm else 's_waitcnt vmcnt(0)')
    a('s_barrier')
    l = a.newlabel('Lpub')
    a('s_cmp_eq_u32 s%d, 0' % S_WAVE); a('s_cbranch_scc0 %s' % l)
    idx_sgpr_expr(a)
    a('s_lshl_b32 s68, s68, 7'); a('s_add_u32 s68, s68, %d' % WS_FLAG)
    a('v_mov_b32 v240, 0'); a('v_mov_b32 v241, s%d' % S_NONCE)
    a('s_mov_b64 s[74:75], exec'); a('s_mov_b64 exec, 1')
    a('buffer_store_dword v241, v240, s[%d:%d], s68 offen sc1' % (SRD_F, SRD_F + 3))
    a('s_mov_b64 exec, s[74:75]')
    a.label(l)

def wait_flags(a, lane_idx):
    l = a.newlabel('Lwf'); p = a.newlabel('Lwp')
    a('s_cmp_eq_u32 s%d, 0' % S_WAVE); a('s_cbranch_scc0 %s' % l)
    lane_idx(a)
    a('v_lshlrev_b32 v242, 7, v242'); a('v_add_u32 v242, %d, v242' % WS_FLAG)
    a('s_mov_b32 s69, 0')
    a.label(p)
    a('buffer_load_dword v243, v242, s[%d:%d], 0 offen sc1' % (SRD_F, SRD_F + 3))
    a('s_add_u32 s69, s69, 1')
    a('s_waitcnt vmcnt(0)')
    a('v_cmp_ne_u32 vcc, s%d, v243' % S_NONCE)
    a('s_cmp_ge_u32 s69, %d' % SPIN_MAX); a('s_cbranch_scc1 %s' % l)
    a('s_cmp_lg_u64 vcc, 0')
    a('s_cbranch_scc1 %s' % p)
    a.label(l)
    a('s_barrier')

def k_persist(name):
    a = Asm()
    a('s_cmp_ge_u32 s2, 256'); a('s_cbranch_scc1 %s_end' % name)
    a('s_load_dwordx16 s[4:19], s[0:1], 0')
    a('s_load_dwordx8 s[20:27], s[0:1], 64')
    a('v_lshrrev_b32 v1, 6, v0')
    a('v_and_b32 v0, 63, v0')
    a('s_and_b32 s%d, s2, 7' % S_X); a('s_lshr_b32 s%d, s2, 3' % S_SLOT)
    a('v_readfirstlane_b32 s%d, v1' % S_WAVE)
    def kernarg_ready():
        a('s_waitcnt lgkmcnt(0)')
        stamp_init(a); stamp(a, 0)
        srd(a, SRD_F, P_WS, WS_END)
    L_Q, L_B, L_OUT, L_B3, L_END = [name + s_ for s_ in ('_q', '_b', '_out', '_b3', '_fin')]
    a('s_cmp_ge_u32 s%d, 24' % S_SLOT); a('s_cbranch_scc1 %s' % L_B)
    a('s_cmp_ge_u32 s%d, 16' % S_SLOT); a('s_cbranch_scc1 %s' % L_Q)
    EX = 3 if PREFETCH else 0
    a('s_and_b32 s41, s%d, 3' % S_X); a('s_lshl_b32 s41, s41, 2'); a('s_and_b32 s29, s%d, 3' % S_SLOT); a('s_add_u32 s29, s29, s41')
    a('s_lshr_b32 s41, s%d, 2' % S_X); a('s_lshl_b32 s41, s41, 2'); a('s_lshr_b32 s30, s%d, 2' % S_SLOT); a('s_add_u32 s30, s30, s41')
    a('s_and_b32 s41, s29, 3'); a('s_lshl_b32 s41, s41, 1'); a('s_and_b32 s42, s30, 3'); a('s_mul_i32 s42, s42, 3'); a('s_add_u32 s41, s41, s42')
    a('s_cmp_ge_u32 s41, 9'); a('s_cselect_b32 s42, 9, 0'); a('s_sub_u32 s41, s41, s42')
    if not ROT: a('s_mov_b32 s41, 0')
    gemm1.gemm1_rot(a, 41)
    gemm1.gemm1_lanes(a, False)
    kernarg_ready()
    gemm1.gemm1_srds(a)
    if PREFETCH: gemm1.gemm1_main(a, False, hook0=prefetch0, n0=1, hook1=lambda a: prefetch1(a, True), n1=3, hook_after_issue=nonce_publish)
    else: gemm1.gemm1_main(a, False, hook_after_issue=nonce_publish)
    stamp(a, 1)
    if getattr(common, 'DIAG_LOOP', False): common.stamp_raw(a, 6)
    L_KVNEXT = name + '_kvnext'; L_KVPUB = name + '_kvpub'; L_CONVMAIN = name + '_convmain'
    a('s_lshl_b32 s73, s%d, 3' % S_SLOT); a('s_add_u32 s73, s73, s%d' % S_X)
    def idx_kv(a): a('s_lshl_b32 s68, s30, 4'); a('s_add_u32 s68, s68, s91'); a('s_add_u32 s68, s68, %d' % F_KV)
    def u_flag_lane(a):
        a('v_and_b32 v242, 3, v0'); a('s_lshr_b32 s68, s93, 4'); a('s_lshl_b32 s68, s68, 2'); a('s_add_u32 s68, s68, %d' % F_U); a('v_add_u32 v242, s68, v242')
    a('s_mov_b32 s91, s29')
    tag_ready(a)
    lno = name + '_kvnoconv'
    a('s_cmp_ge_u32 s73, 116'); a('s_cbranch_scc1 %s' % lno)
    a('s_add_u32 s93, s73, 28'); a('s_mov_b32 s29, s93')
    u_flag_lane(a)
    a('v_lshlrev_b32 v242, 7, v242'); a('v_add_u32 v242, %d, v242' % WS_FLAG)
    a('buffer_load_dword v243, v242, s[%d:%d], 0 offen sc1' % (SRD_F, SRD_F + 3))
    bpart.conv_issue(a)
    a('s_mov_b32 s29, s91')
    gemm1.kv_epilogue(a, st_flags=ST, stampf=(lambda a, i: common.stamp_raw(a, i)) if getattr(common, 'DIAG2', False) else None, get_tag=lambda a: None)
    hint(a, idx_kv)
    if getattr(common, 'DIAG2', False): common.stamp_raw(a, 5)
    lfast = a.newlabel('Lfast')
    a('s_waitcnt vmcnt(3)')
    a('v_cmp_ne_u32 vcc, s%d, v243' % S_NONCE)
    a('s_cmp_eq_u64 vcc, 0'); a('s_cbranch_scc1 %s' % lfast)
    wave_wait_flags(a, u_flag_lane)
    a.label(lfast)
    bpart.conv_u_dma(a, LD)
    bpart.conv_copies(a, 0, waited=True)
    if getattr(common, 'DIAG2', False): common.stamp_raw(a, 7)
    a('s_waitcnt vmcnt(0) lgkmcnt(0)'); a('s_barrier')
    if getattr(common, 'DIAG2', False): common.stamp_raw(a, 8)
    stamp(a, 2)
    a('s_branch %s' % L_CONVMAIN)
    a.label(lno)
    gemm1.kv_epilogue(a, st_flags=ST, get_tag=lambda a: None)
    hint(a, idx_kv)
    a('s_barrier')
    stamp(a, 2)
    a.label(L_KVNEXT)
    a('s_cmp_ge_u32 s73, 64'); a('s_cbranch_scc1 %s' % L_B3)
    a('s_mov_b32 s59, s%d' % S_SLOT)
    a('s_branch %s' % L_OUT)
    a.label(L_Q)
    a('s_and_b32 s41, s%d, 3' % S_X); a('s_lshl_b32 s41, s41, 2'); a('s_and_b32 s29, s%d, 3' % S_SLOT); a('s_add_u32 s29, s29, s41')
    a('s_lshr_b32 s41, s%d, 2' % S_X); a('s_lshl_b32 s41, s41, 1'); a('s_bfe_u32 s30, s%d, 0x10002' % S_SLOT); a('s_add_u32 s30, s30, s41')
    a('s_and_b32 s41, s29, 3'); a('s_lshl_b32 s41, s41, 1'); a('s_and_b32 s42, s30, 1'); a('s_lshl_b32 s42, s42, 2'); a('s_add_u32 s41, s41, s42'); a('s_add_u32 s41, s41, 1')
    a('s_cmp_ge_u32 s41, 9'); a('s_cselect_b32 s42, 9, 0'); a('s_sub_u32 s41, s41, s42')
    if not ROT: a('s_mov_b32 s41, 0')
    gemm1.gemm1_rot(a, 41)
    gemm1.gemm1_lanes(a, True)
    kernarg_ready()
    gemm1.gemm1_srds(a)
    if PREFETCH: gemm1.gemm1_main(a, True, hook0=prefetch0, n0=1, hook1=lambda a: prefetch1(a, False), n1=3)
    else: gemm1.gemm1_main(a, True)
    stamp(a, 1)
    if getattr(common, 'DIAG_LOOP', False): common.stamp_raw(a, 6)
    tag_ready(a)
    def wz(a):
        def li(a):
            a('v_and_b32 v242, 31, v0'); a('s_lshl_b32 s68, s30, 5'); a('s_add_u32 s68, s68, %d' % F_KV); a('v_add_u32 v242, s68, v242')
        stamp(a, 2)
        wait_flags(a, li)
        stamp(a, 3)
    gemm1.q_epilogue(a, st_flags=ST, ld_flags=LD, wait_z=wz, tagged=True, spin_max=SPIN_MAX, stampf=(lambda a, i: common.stamp_raw(a, i)) if getattr(common, 'DIAG3', False) else None)
    if getattr(common, 'DIAG3', False): common.stamp_raw(a, 7)
    def idx_pn(a): a('s_lshl_b32 s68, s29, 2'); a('s_add_u32 s68, s68, s30'); a('s_add_u32 s68, s68, %d' % F_PN)
    publish(a, idx_pn)
    stamp(a, 4)
    if getattr(common, 'DIAG3', False): common.stamp_raw(a, 8)
    a('s_sub_u32 s59, s%d, 8' % S_SLOT)
    a('s_branch %s' % L_OUT)
    a.label(L_B)
    a('s_sub_u32 s73, s%d, 24' % S_SLOT); a('s_lshl_b32 s73, s73, 3'); a('s_add_u32 s73, s73, s%d' % S_X)
    kernarg_ready()
    L_NOB1 = name + '_nob1'
    a('s_cmp_ge_u32 s73, 36'); a('s_cbranch_scc1 %s' % L_NOB1)
    a('s_mul_i32 s29, s73, 7282'); a('s_lshr_b32 s29, s29, 16'); a('s_mul_i32 s30, s29, 9'); a('s_sub_u32 s30, s73, s30')
    a('s_mov_b32 s58, s29')
    a('s_lshl_b32 s29, s29, 3'); a('s_add_u32 s29, s29, s%d' % S_WAVE)
    bpart.b1_tile(a, st_flags=ST, hook_after_issue=nonce_issue_all)
    tag_ready(a)
    def idx_u(a): a('s_lshl_b32 s68, s30, 2'); a('s_add_u32 s68, s68, s58'); a('s_add_u32 s68, s68, %d' % F_U)
    publish(a, idx_u)
    stamp(a, 1)
    a('s_mov_b32 s29, s73')
    w2out.w2_prefetch(a)
    def wkv(a):
        def li(a):
            a('v_and_b32 v242, 15, v0'); a('v_bfe_u32 v241, v0, 4, 1')
            a('s_cmp_eq_u32 s31, 4'); a('s_cselect_b32 s68, 16, 0')
            a('v_mul_u32_u24 v241, s68, v241'); a('v_add_u32 v242, v242, v241')
            a('s_lshl_b32 s68, s30, 4'); a('s_add_u32 s68, s68, %d' % F_KV); a('v_add_u32 v242, s68, v242')
        stamp(a, 2)
        wait_flags(a, li)
        stamp(a, 3)
    w2out.w2_main(a, st_flags=ST, ld_flags=LD, wait_kv=wkv, tagged=True, spin_max=SPIN_MAX, stampf=(lambda a, i: common.stamp_raw(a, i)) if getattr(common, 'DIAG3', False) else None)
    if getattr(common, 'DIAG3', False): common.stamp_raw(a, 8)
    def idx_w2(a): a('s_add_u32 s68, s73, %d' % F_W2)
    publish(a, idx_w2)
    stamp(a, 6)
    if getattr(common, 'DIAG3', False): common.stamp_raw(a, 6)
    a('s_sub_u32 s59, s%d, 8' % S_SLOT)
    a('s_branch %s' % L_OUT)
    a.label(L_NOB1)
    nonce_issue_all(a)
    a('s_sub_u32 s93, s73, 36'); a('s_mov_b32 s29, s93')
    bpart.conv_issue(a)
    nonce_finish_all(a)
    bpart.conv_copies(a, 0, waited=False)
    stamp(a, 4)
    wave_wait_flags(a, u_flag_lane)
    stamp(a, 5)
    bpart.conv_u_dma(a, LD)
    a('s_waitcnt vmcnt(0) lgkmcnt(0)'); a('s_barrier')
    a.label(L_CONVMAIN)
    bpart.conv_main(a, st_flags=ST)
    def idx_y(a): a('s_add_u32 s68, s93, %d' % F_Y)
    publish(a, idx_y)
    stamp(a, 6)
    a('s_cmp_lt_u32 s%d, 16' % S_SLOT); a('s_cbranch_scc1 %s' % L_KVNEXT)
    a('s_sub_u32 s59, s%d, 8' % S_SLOT)
    a.label(L_OUT)
    a('s_lshl_b32 s29, s%d, 2' % S_X); a('s_and_b32 s41, s59, 3'); a('s_add_u32 s29, s29, s41'); a('s_lshr_b32 s30, s59, 2')
    a('s_barrier')
    w2out.out_setup(a)
    def wo_(a):
        def li(a):
            a('s_lshr_b32 s68, s29, 1'); a('s_lshl_b32 s68, s68, 2'); a('s_add_u32 s68, s68, %d' % F_PN)
            a('v_add_u32 v242, s68, v0')
            a('v_add_u32 v241, %d, v0' % (F_W2 - 4))
            a('v_cmp_le_u32 vcc, 4, v0'); a('v_cndmask_b32 v242, v242, v241, vcc')
            a('v_mov_b32 v241, s68')
            a('v_cmp_le_u32 vcc, 40, v0'); a('v_cndmask_b32 v242, v242, v241, vcc')
        stamp(a, 7)
        wait_flags(a, li)
        stamp(a, 8)
    w2out.out_main(a, ld_flags=LD, wait_in=wo_)
    stamp(a, 9)
    w2out.out_epilogue(a)
    a('s_branch %s' % L_END)
    a.label(L_B3)
    a('s_sub_u32 s58, s73, 64'); a('s_cmp_ge_u32 s58, 36'); a('s_cbranch_scc1 %s' % L_END)
    a('s_mul_i32 s29, s58, 7282'); a('s_lshr_b32 s29, s29, 16'); a('s_mul_i32 s30, s29, 9'); a('s_sub_u32 s30, s58, s30')
    a('s_lshl_b32 s29, s29, 3'); a('s_add_u32 s29, s29, s%d' % S_WAVE)
    a('s_barrier')
    def wy(a):
        def li(a):
            a('v_and_b32 v242, 15, v0'); a('s_lshl_b32 s68, s30, 4'); a('s_add_u32 s68, s68, %d' % F_Y); a('v_add_u32 v242, s68, v242')
        stamp(a, 7)
        wait_flags(a, li)
        stamp(a, 8)
    bpart.b3_tile(a, ld_flags=LD, wait_y=wy)
    a.label(L_END)
    if common.STAMPS:
        a('s_waitcnt vmcnt(0)'); stamp(a, 10); stamp_flush(a, 0)
    a.label(name + '_end'); a('s_endpgm')
    a.label(CODE_END)
    return a

NAME = 'concat_heads__linear_attn_block__ssm_conv_h3__prompt_kernel'
def build():
    lds = max(gemm1.LDS_GEMM1, w2out.LDS_W2, w2out.LDS_OUT, bpart.LDS_CONV, bpart.LDS_B3, bpart.LDS_B1)
    assert lds <= 163840
    a = k_persist(NAME)
    lines = fix_hazards(a.lines, verbose=True)
    hdr = '; concat_heads / linear attention block + H3 ssm conv : single persistent kernel (generated by gen/persist.py)\n'
    hdr += '; @launch grid=(256,1,1) block=(512,1,1) lds=%d\n' % lds
    return hdr + '.amdgcn_target "amdgcn-amd-amdhsa--gfx950"\n.text\n' + kernel_header(NAME) + '\n'.join(lines) + '\n' + kernel_desc(NAME)
if __name__ == '__main__':
    if 'nopf' in sys.argv: PREFETCH = False
    if 'norot' in sys.argv: ROT = False
    if 'diag' in sys.argv: common.DIAG_LOOP = True
    if 'diag2' in sys.argv: common.DIAG2 = True
    if 'diag3' in sys.argv: common.DIAG3 = True
    if len(sys.argv) > 2 and sys.argv[2] in ('rt', 'cyc'):
        common.STAMPS = True
        if sys.argv[2] == 'cyc': common.STAMP_OP = 's_memtime'
    open(sys.argv[1], 'w').write(build())
```

```python
import sys
from common import *
import common, gemm1, w2out, bpart

S_NONCE = 70
S_X, S_SLOT = 71, 72
F_U, F_KV, F_PN, F_W2, F_Y = 0, 64, 192, 256, 320
ST = 'sc1'; LD = 'sc1'
SPIN_MAX = 100000
PREFETCH = True
ROT = True
IDLEPF = True
ROTMODE = 'full'
CODE_END = 'Lcode_end'
SRD_F = 64

def nonce_publish(a):
    l = a.newlabel('Lnpub')
    a('s_or_b32 s68, s2, s%d' % S_WAVE); a('s_cmp_eq_u32 s68, 0'); a('s_cbranch_scc0 %s' % l)
    srd(a, 60, P_DBG, 256)
    a('s_memrealtime s[68:69]'); a('v_mov_b32 v240, 0'); a('s_waitcnt lgkmcnt(0)')
    a('s_or_b32 s68, s68, 1')
    a('v_mov_b32 v241, s68')
    a('s_mov_b64 s[68:69], exec'); a('s_mov_b64 exec, 1')
    a('buffer_store_dword v241, v240, s[60:63], 0 offen sc1')
    a('s_mov_b64 exec, s[68:69]')
    a.label(l)

def nonce_issue(a):
    l = a.newlabel('Lni')
    a('s_cmp_eq_u32 s%d, 0' % S_WAVE); a('s_cbranch_scc0 %s' % l)
    srd(a, 60, P_DBG, 256)
    a('v_mov_b32 v240, 0')
    a('buffer_load_dword v239, v240, s[60:63], 0 offen sc1')
    a.label(l)

def nonce_finish(a):
    l = a.newlabel('Lnf'); p = a.newlabel('Lnq')
    a('s_cmp_eq_u32 s%d, 0' % S_WAVE); a('s_cbranch_scc0 %s' % l)
    srd(a, 60, P_DBG, 256)
    a('s_mov_b32 s69, 0'); a('v_mov_b32 v240, 0')
    a('s_waitcnt vmcnt(0)')
    a('v_readfirstlane_b32 s%d, v239' % S_NONCE)
    a('s_cmp_lg_u32 s%d, 0' % S_NONCE); a('s_cbranch_scc1 %s' % l)
    a.label(p)
    a('buffer_load_dword v239, v240, s[60:63], 0 offen sc1')
    a('s_add_u32 s69, s69, 1')
    a('s_waitcnt vmcnt(0)')
    a('v_readfirstlane_b32 s%d, v239' % S_NONCE)
    a('s_cmp_ge_u32 s69, %d' % SPIN_MAX); a('s_cbranch_scc1 %s' % l)
    a('s_cmp_eq_u32 s%d, 0' % S_NONCE)
    a('s_cbranch_scc1 %s' % p)
    a.label(l)

def nonce_issue_all(a):
    srd(a, 60, P_DBG, 256)
    a('v_mov_b32 v240, 0')
    a('buffer_load_dword v239, v240, s[60:63], 0 offen sc1')

def nonce_finish_all(a):
    l = a.newlabel('Lnf'); p = a.newlabel('Lnq')
    a('s_waitcnt vmcnt(0)')
    a('v_readfirstlane_b32 s%d, v239' % S_NONCE)
    a('s_cmp_lg_u32 s%d, 0' % S_NONCE); a('s_cbranch_scc1 %s' % l)
    srd(a, 60, P_DBG, 256)
    a('s_mov_b32 s69, 0'); a('v_mov_b32 v240, 0')
    a.label(p)
    a('buffer_load_dword v239, v240, s[60:63], 0 offen sc1')
    a('s_add_u32 s69, s69, 1')
    a('s_waitcnt vmcnt(0)')
    a('v_readfirstlane_b32 s%d, v239' % S_NONCE)
    a('s_cmp_ge_u32 s69, %d' % SPIN_MAX); a('s_cbranch_scc1 %s' % l)
    a('s_cmp_eq_u32 s%d, 0' % S_NONCE)
    a('s_cbranch_scc1 %s' % p)
    a.label(l)

def tag_ready(a):
    l = a.newlabel('Ltr')
    a('v_readfirstlane_b32 s%d, v239' % S_NONCE)
    a('s_cmp_lg_u32 s%d, 0' % S_NONCE); a('s_cbranch_scc1 %s' % l)
    nonce_issue_all(a); nonce_finish_all(a)
    a.label(l)
    a('s_mul_i32 s92, s%d, 0x9E3779B1' % S_NONCE)

def hint(a, idx_sgpr_expr):
    l = a.newlabel('Lhint')
    a('s_cmp_eq_u32 s%d, 0' % S_WAVE); a('s_cbranch_scc0 %s' % l)
    idx_sgpr_expr(a)
    a('s_lshl_b32 s68, s68, 7'); a('s_add_u32 s68, s68, %d' % WS_FLAG)
    a('v_mov_b32 v240, 0'); a('v_mov_b32 v241, s%d' % S_NONCE)
    a('s_mov_b64 exec, 1')
    a('buffer_store_dword v241, v240, s[%d:%d], s68 offen sc1' % (SRD_F, SRD_F + 3))
    a('s_mov_b64 exec, -1')
    a.label(l)

def wave_wait_flags(a, lane_idx):
    l = a.newlabel('Lwf'); p = a.newlabel('Lwp')
    lane_idx(a)
    a('v_lshlrev_b32 v242, 7, v242'); a('v_add_u32 v242, %d, v242' % WS_FLAG)
    a('s_mov_b32 s69, 0')
    a.label(p)
    a('buffer_load_dword v243, v242, s[%d:%d], 0 offen sc1' % (SRD_F, SRD_F + 3))
    a('s_add_u32 s69, s69, 1')
    a('s_waitcnt vmcnt(0)')
    a('v_cmp_ne_u32 vcc, s%d, v243' % S_NONCE)
    a('s_cmp_ge_u32 s69, %d' % SPIN_MAX); a('s_cbranch_scc1 %s' % l)
    a('s_cmp_lg_u64 vcc, 0')
    a('s_cbranch_scc1 %s' % p)
    a.label(l)

PF = 238
def prefetch0(a):
    l_d = a.newlabel('Lpfd'); l_e = a.newlabel('Lpfe')
    a('s_and_b32 s56, s%d, 15' % S_SLOT); a('s_cmp_eq_u32 s56, 0'); a('s_cbranch_scc1 %s' % l_d)
    a('v_mov_b32 v3, 0'); a('buffer_load_dword v%d, v3, s[32:35], 0 offen' % PF)
    a('s_branch %s' % l_e)
    a.label(l_d)
    a('s_getpc_b64 s[56:57]')
    pcl = a.newlabel('Lpc'); a.label(pcl)
    a('s_lshl_b32 s59, s%d, 13' % S_WAVE)
    a('v_lshlrev_b32 v2, 7, v0'); a('v_add_u32 v2, s59, v2')
    a('v_min_u32 v2, %s - %s, v2' % (CODE_END, pcl))
    a('v_mov_b32 v5, s57'); a('v_add_co_u32 v4, vcc, s56, v2'); a('v_addc_co_u32 v5, vcc, 0, v5, vcc')
    a('global_load_dword v%d, v[4:5], off' % PF)
    a.label(l_e)
for q in range(7680): assert (q * 34953) >> 19 == q // 15
for q in range(15): assert (q * 13108) >> 16 == q // 5

def prefetch1(a, iskv):
    nonce_issue_all(a)

def idle_prefetch(a):
    a('s_sub_u32 s56, s73, 36'); a('s_lshl_b32 s56, s56, 3'); a('s_add_u32 s56, s56, s%d' % S_WAVE)
    a('v_and_b32 v3, 7, v0'); a('v_lshlrev_b32 v3, 21, v3')
    a('v_min_u32 v4, %d, v3' % (WS_END - 4))
    a('buffer_load_dword v%d, v4, s[%d:%d], 0 offen' % (PF, SRD_F, SRD_F + 3))
    srd(a, 60, P_OUT, S * 1152 * 2)
    a('v_min_u32 v4, %d, v3' % (S * 1152 * 2 - 4))
    a('buffer_load_dword v%d, v4, s[60:63], 0 offen' % PF)
    a('v_lshlrev_b32 v3, 7, v0')
    for ptr, nb, n in ((P_H, D * S * 2, 288), (P_WO, D * D * 2, 81), (P_Q, S * D * 2, 288)):
        srd(a, 60, ptr, nb)
        for k in range((n + 223) // 224):
            a('s_add_u32 s57, s56, %d' % (224 * k)); a('s_lshl_b32 s57, s57, 13')
            a('buffer_load_dword v%d, v3, s[60:63], s57 offen' % PF)

def publish(a, idx_sgpr_expr, lgkm=False):
    a('s_waitcnt vmcnt(0) lgkmcnt(0)' if lgkm else 's_waitcnt vmcnt(0)')
    a('s_barrier')
    l = a.newlabel('Lpub')
    a('s_cmp_eq_u32 s%d, 0' % S_WAVE); a('s_cbranch_scc0 %s' % l)
    idx_sgpr_expr(a)
    a('s_lshl_b32 s68, s68, 7'); a('s_add_u32 s68, s68, %d' % WS_FLAG)
    a('v_mov_b32 v240, 0'); a('v_mov_b32 v241, s%d' % S_NONCE)
    a('s_mov_b64 s[74:75], exec'); a('s_mov_b64 exec, 1')
    a('buffer_store_dword v241, v240, s[%d:%d], s68 offen sc1' % (SRD_F, SRD_F + 3))
    a('s_mov_b64 exec, s[74:75]')
    a.label(l)

def wait_flags(a, lane_idx):
    l = a.newlabel('Lwf'); p = a.newlabel('Lwp')
    a('s_cmp_eq_u32 s%d, 0' % S_WAVE); a('s_cbranch_scc0 %s' % l)
    lane_idx(a)
    a('v_lshlrev_b32 v242, 7, v242'); a('v_add_u32 v242, %d, v242' % WS_FLAG)
    a('s_mov_b32 s69, 0')
    a.label(p)
    a('buffer_load_dword v243, v242, s[%d:%d], 0 offen sc1' % (SRD_F, SRD_F + 3))
    a('s_add_u32 s69, s69, 1')
    a('s_waitcnt vmcnt(0)')
    a('v_cmp_ne_u32 vcc, s%d, v243' % S_NONCE)
    a('s_cmp_ge_u32 s69, %d' % SPIN_MAX); a('s_cbranch_scc1 %s' % l)
    a('s_cmp_lg_u64 vcc, 0')
    a('s_cbranch_scc1 %s' % p)
    a.label(l)
    a('s_barrier')

def rot_override(a):
    if not ROT or ROTMODE == 'none': a('s_mov_b32 s41, 0')
    elif ROTMODE == 'r3':
        a('s_and_b32 s41, s29, 3'); a('s_and_b32 s42, s30, 3'); a('s_add_u32 s41, s41, s42')
        a('s_cmp_ge_u32 s41, 3'); a('s_cselect_b32 s42, 3, 0'); a('s_sub_u32 s41, s41, s42')
        a('s_cmp_ge_u32 s41, 3'); a('s_cselect_b32 s42, 3, 0'); a('s_sub_u32 s41, s41, s42'); a('s_mul_i32 s41, s41, 3')
    elif ROTMODE == 'r2':
        a('s_and_b32 s41, s29, 1'); a('s_lshl_b32 s41, s41, 2')
    elif ROTMODE == 'rt':
        a('s_and_b32 s41, s29, 3'); a('s_lshl_b32 s41, s41, 1')

def k_persist(name):
    a = Asm()
    a('s_cmp_ge_u32 s2, 256'); a('s_cbranch_scc1 %s_end' % name)
    a('s_load_dwordx16 s[4:19], s[0:1], 0')
    a('s_load_dwordx8 s[20:27], s[0:1], 64')
    a('v_lshrrev_b32 v1, 6, v0')
    a('v_and_b32 v0, 63, v0')
    a('s_and_b32 s%d, s2, 7' % S_X); a('s_lshr_b32 s%d, s2, 3' % S_SLOT)
    a('v_readfirstlane_b32 s%d, v1' % S_WAVE)
    def kernarg_ready():
        a('s_waitcnt lgkmcnt(0)')
        stamp_init(a); stamp(a, 0)
        srd(a, SRD_F, P_WS, WS_END)
    L_Q, L_B, L_OUT, L_B3, L_END = [name + s_ for s_ in ('_q', '_b', '_out', '_b3', '_fin')]
    a('s_cmp_ge_u32 s%d, 24' % S_SLOT); a('s_cbranch_scc1 %s' % L_B)
    a('s_cmp_ge_u32 s%d, 16' % S_SLOT); a('s_cbranch_scc1 %s' % L_Q)
    EX = 3 if PREFETCH else 0
    a('s_and_b32 s41, s%d, 3' % S_X); a('s_lshl_b32 s41, s41, 2'); a('s_and_b32 s29, s%d, 3' % S_SLOT); a('s_add_u32 s29, s29, s41')
    a('s_lshr_b32 s41, s%d, 2' % S_X); a('s_lshl_b32 s41, s41, 2'); a('s_lshr_b32 s30, s%d, 2' % S_SLOT); a('s_add_u32 s30, s30, s41')
    a('s_and_b32 s41, s29, 3'); a('s_lshl_b32 s41, s41, 1'); a('s_and_b32 s42, s30, 3'); a('s_mul_i32 s42, s42, 3'); a('s_add_u32 s41, s41, s42')
    a('s_cmp_ge_u32 s41, 9'); a('s_cselect_b32 s42, 9, 0'); a('s_sub_u32 s41, s41, s42')
    rot_override(a)
    gemm1.gemm1_rot(a, 41)
    gemm1.gemm1_lanes(a, False)
    kernarg_ready()
    gemm1.gemm1_srds(a)
    if PREFETCH: gemm1.gemm1_main(a, False, hook0=prefetch0, n0=1, hook1=lambda a: prefetch1(a, True), n1=1, hook_after_issue=nonce_publish)
    else: gemm1.gemm1_main(a, False, hook_after_issue=nonce_publish)
    stamp(a, 1)
    if getattr(common, 'DIAG_LOOP', False): common.stamp_raw(a, 6)
    L_KVNEXT = name + '_kvnext'; L_KVPUB = name + '_kvpub'; L_CONVMAIN = name + '_convmain'
    a('s_lshl_b32 s73, s%d, 3' % S_SLOT); a('s_add_u32 s73, s73, s%d' % S_X)
    def idx_kv(a): a('s_lshl_b32 s68, s30, 4'); a('s_add_u32 s68, s68, s91'); a('s_add_u32 s68, s68, %d' % F_KV)
    def u_flag_lane(a):
        a('v_and_b32 v242, 3, v0'); a('s_lshr_b32 s68, s93, 4'); a('s_lshl_b32 s68, s68, 2'); a('s_add_u32 s68, s68, %d' % F_U); a('v_add_u32 v242, s68, v242')
    a('s_mov_b32 s91, s29')
    tag_ready(a)
    lno = name + '_kvnoconv'
    a('s_cmp_ge_u32 s73, 116'); a('s_cbranch_scc1 %s' % lno)
    a('s_add_u32 s93, s73, 28'); a('s_mov_b32 s29, s93')
    u_flag_lane(a)
    a('v_lshlrev_b32 v242, 7, v242'); a('v_add_u32 v242, %d, v242' % WS_FLAG)
    a('buffer_load_dword v243, v242, s[%d:%d], 0 offen sc1' % (SRD_F, SRD_F + 3))
    bpart.conv_issue(a)
    a('s_mov_b32 s29, s91')
    gemm1.kv_epilogue(a, st_flags=ST, stampf=(lambda a, i: common.stamp_raw(a, i)) if getattr(common, 'DIAG2', False) else None, get_tag=lambda a: None)
    hint(a, idx_kv)
    if getattr(common, 'DIAG2', False): common.stamp_raw(a, 5)
    lfast = a.newlabel('Lfast')
    a('s_waitcnt vmcnt(3)')
    a('v_cmp_ne_u32 vcc, s%d, v243' % S_NONCE)
    a('s_cmp_eq_u64 vcc, 0'); a('s_cbranch_scc1 %s' % lfast)
    wave_wait_flags(a, u_flag_lane)
    a.label(lfast)
    bpart.conv_u_dma(a, LD)
    bpart.conv_copies(a, 0, waited=True)
    if getattr(common, 'DIAG2', False): common.stamp_raw(a, 7)
    a('s_waitcnt vmcnt(0) lgkmcnt(0)'); a('s_barrier')
    if getattr(common, 'DIAG2', False): common.stamp_raw(a, 8)
    stamp(a, 2)
    a('s_branch %s' % L_CONVMAIN)
    a.label(lno)
    gemm1.kv_epilogue(a, st_flags=ST, get_tag=lambda a: None)
    hint(a, idx_kv)
    a('s_barrier')
    stamp(a, 2)
    a.label(L_KVNEXT)
    a('s_cmp_ge_u32 s73, 64'); a('s_cbranch_scc1 %s' % L_B3)
    a('s_mov_b32 s59, s%d' % S_SLOT)
    a('s_branch %s' % L_OUT)
    a.label(L_Q)
    a('s_and_b32 s41, s%d, 3' % S_X); a('s_lshl_b32 s41, s41, 2'); a('s_and_b32 s29, s%d, 3' % S_SLOT); a('s_add_u32 s29, s29, s41')
    a('s_lshr_b32 s41, s%d, 2' % S_X); a('s_lshl_b32 s41, s41, 1'); a('s_bfe_u32 s30, s%d, 0x10002' % S_SLOT); a('s_add_u32 s30, s30, s41')
    a('s_and_b32 s41, s29, 3'); a('s_lshl_b32 s41, s41, 1'); a('s_and_b32 s42, s30, 1'); a('s_lshl_b32 s42, s42, 2'); a('s_add_u32 s41, s41, s42'); a('s_add_u32 s41, s41, 1')
    a('s_cmp_ge_u32 s41, 9'); a('s_cselect_b32 s42, 9, 0'); a('s_sub_u32 s41, s41, s42')
    rot_override(a)
    gemm1.gemm1_rot(a, 41)
    gemm1.gemm1_lanes(a, True)
    kernarg_ready()
    gemm1.gemm1_srds(a)
    if PREFETCH: gemm1.gemm1_main(a, True, hook0=prefetch0, n0=1, hook1=lambda a: prefetch1(a, False), n1=1)
    else: gemm1.gemm1_main(a, True)
    stamp(a, 1)
    if getattr(common, 'DIAG_LOOP', False): common.stamp_raw(a, 6)
    tag_ready(a)
    def wz(a):
        def li(a):
            a('v_and_b32 v242, 31, v0'); a('s_lshl_b32 s68, s30, 5'); a('s_add_u32 s68, s68, %d' % F_KV); a('v_add_u32 v242, s68, v242')
        stamp(a, 2)
        wait_flags(a, li)
        stamp(a, 3)
    gemm1.q_epilogue(a, st_flags=ST, ld_flags=LD, wait_z=wz, tagged=True, spin_max=SPIN_MAX, stampf=(lambda a, i: common.stamp_raw(a, i)) if getattr(common, 'DIAG3', False) else None)
    if getattr(common, 'DIAG3', False): common.stamp_raw(a, 7)
    def idx_pn(a): a('s_lshl_b32 s68, s29, 2'); a('s_add_u32 s68, s68, s30'); a('s_add_u32 s68, s68, %d' % F_PN)
    publish(a, idx_pn)
    stamp(a, 4)
    if getattr(common, 'DIAG3', False): common.stamp_raw(a, 8)
    a('s_sub_u32 s59, s%d, 8' % S_SLOT)
    a('s_branch %s' % L_OUT)
    a.label(L_B)
    a('s_sub_u32 s73, s%d, 24' % S_SLOT); a('s_lshl_b32 s73, s73, 3'); a('s_add_u32 s73, s73, s%d' % S_X)
    kernarg_ready()
    L_NOB1 = name + '_nob1'
    a('s_cmp_ge_u32 s73, 36'); a('s_cbranch_scc1 %s' % L_NOB1)
    a('s_mul_i32 s29, s73, 7282'); a('s_lshr_b32 s29, s29, 16'); a('s_mul_i32 s30, s29, 9'); a('s_sub_u32 s30, s73, s30')
    a('s_mov_b32 s58, s29')
    a('s_lshl_b32 s29, s29, 3'); a('s_add_u32 s29, s29, s%d' % S_WAVE)
    bpart.b1_tile(a, st_flags=ST, hook_after_issue=nonce_issue_all)
    tag_ready(a)
    def idx_u(a): a('s_lshl_b32 s68, s30, 2'); a('s_add_u32 s68, s68, s58'); a('s_add_u32 s68, s68, %d' % F_U)
    publish(a, idx_u)
    stamp(a, 1)
    a('s_mov_b32 s29, s73')
    w2out.w2_prefetch(a)
    def wkv(a):
        def li(a):
            a('v_and_b32 v242, 15, v0'); a('v_bfe_u32 v241, v0, 4, 1')
            a('s_cmp_eq_u32 s31, 4'); a('s_cselect_b32 s68, 16, 0')
            a('v_mul_u32_u24 v241, s68, v241'); a('v_add_u32 v242, v242, v241')
            a('s_lshl_b32 s68, s30, 4'); a('s_add_u32 s68, s68, %d' % F_KV); a('v_add_u32 v242, s68, v242')
        stamp(a, 2)
        wait_flags(a, li)
        stamp(a, 3)
    w2out.w2_main(a, st_flags=ST, ld_flags=LD, wait_kv=wkv, tagged=True, spin_max=SPIN_MAX, stampf=(lambda a, i: common.stamp_raw(a, i)) if getattr(common, 'DIAG3', False) else None)
    if getattr(common, 'DIAG3', False): common.stamp_raw(a, 8)
    def idx_w2(a): a('s_add_u32 s68, s73, %d' % F_W2)
    publish(a, idx_w2)
    stamp(a, 6)
    if getattr(common, 'DIAG3', False): common.stamp_raw(a, 6)
    a('s_sub_u32 s59, s%d, 8' % S_SLOT)
    a('s_branch %s' % L_OUT)
    a.label(L_NOB1)
    if IDLEPF: idle_prefetch(a)
    nonce_issue_all(a)
    a('s_sub_u32 s93, s73, 36'); a('s_mov_b32 s29, s93')
    bpart.conv_issue(a)
    nonce_finish_all(a)
    bpart.conv_copies(a, 0, waited=False)
    stamp(a, 4)
    wave_wait_flags(a, u_flag_lane)
    stamp(a, 5)
    bpart.conv_u_dma(a, LD)
    a('s_waitcnt vmcnt(0) lgkmcnt(0)'); a('s_barrier')
    a.label(L_CONVMAIN)
    bpart.conv_main(a, st_flags=ST)
    def idx_y(a): a('s_add_u32 s68, s93, %d' % F_Y)
    publish(a, idx_y)
    stamp(a, 6)
    a('s_cmp_lt_u32 s%d, 16' % S_SLOT); a('s_cbranch_scc1 %s' % L_KVNEXT)
    a('s_sub_u32 s59, s%d, 8' % S_SLOT)
    a.label(L_OUT)
    a('s_lshl_b32 s29, s%d, 2' % S_X); a('s_and_b32 s41, s59, 3'); a('s_add_u32 s29, s29, s41'); a('s_lshr_b32 s30, s59, 2')
    a('s_barrier')
    w2out.out_setup(a)
    def wo_(a):
        def li(a):
            a('s_lshr_b32 s68, s29, 1'); a('s_lshl_b32 s68, s68, 2'); a('s_add_u32 s68, s68, %d' % F_PN)
            a('v_add_u32 v242, s68, v0')
            a('v_add_u32 v241, %d, v0' % (F_W2 - 4))
            a('v_cmp_le_u32 vcc, 4, v0'); a('v_cndmask_b32 v242, v242, v241, vcc')
            a('v_mov_b32 v241, s68')
            a('v_cmp_le_u32 vcc, 40, v0'); a('v_cndmask_b32 v242, v242, v241, vcc')
        stamp(a, 7)
        wait_flags(a, li)
        stamp(a, 8)
    w2out.out_main(a, ld_flags=LD, wait_in=wo_)
    stamp(a, 9)
    w2out.out_epilogue(a)
    a('s_branch %s' % L_END)
    a.label(L_B3)
    a('s_sub_u32 s58, s73, 64'); a('s_cmp_ge_u32 s58, 36'); a('s_cbranch_scc1 %s' % L_END)
    a('s_mul_i32 s29, s58, 7282'); a('s_lshr_b32 s29, s29, 16'); a('s_mul_i32 s30, s29, 9'); a('s_sub_u32 s30, s58, s30')
    a('s_lshl_b32 s29, s29, 3'); a('s_add_u32 s29, s29, s%d' % S_WAVE)
    a('s_barrier')
    def wy(a):
        def li(a):
            a('v_and_b32 v242, 15, v0'); a('s_lshl_b32 s68, s30, 4'); a('s_add_u32 s68, s68, %d' % F_Y); a('v_add_u32 v242, s68, v242')
        stamp(a, 7)
        wait_flags(a, li)
        stamp(a, 8)
    bpart.b3_tile(a, ld_flags=LD, wait_y=wy)
    a.label(L_END)
    if common.STAMPS:
        a('s_waitcnt vmcnt(0)'); stamp(a, 10); stamp_flush(a, 0)
    a.label(name + '_end'); a('s_endpgm')
    a.label(CODE_END)
    return a

NAME = 'concat_heads__linear_attn_block__ssm_conv_h3__prompt_kernel'
def build():
    lds = max(gemm1.LDS_GEMM1, w2out.LDS_W2, w2out.LDS_OUT, bpart.LDS_CONV, bpart.LDS_B3, bpart.LDS_B1)
    assert lds <= 163840
    a = k_persist(NAME)
    lines = fix_hazards(a.lines, verbose=True)
    hdr = '; concat_heads / linear attention block + H3 ssm conv : single persistent kernel (generated by gen/persist.py)\n'
    hdr += '; @launch grid=(256,1,1) block=(512,1,1) lds=%d\n' % lds
    return hdr + '.amdgcn_target "amdgcn-amd-amdhsa--gfx950"\n.text\n' + kernel_header(NAME) + '\n'.join(lines) + '\n' + kernel_desc(NAME)
if __name__ == '__main__':
    if 'nopf' in sys.argv: PREFETCH = False
    if 'norot' in sys.argv: ROT = False
    if 'noidle' in sys.argv: IDLEPF = False
    for m_ in ('r3', 'r2', 'rt', 'none'):
        if m_ in sys.argv: ROTMODE = m_
    if 'diag' in sys.argv: common.DIAG_LOOP = True
    if 'diag2' in sys.argv: common.DIAG2 = True
    if 'diag3' in sys.argv: common.DIAG3 = True
    if len(sys.argv) > 2 and sys.argv[2] in ('rt', 'cyc'):
        common.STAMPS = True
        if sys.argv[2] == 'cyc': common.STAMP_OP = 's_memtime'
    open(sys.argv[1], 'w').write(build())
```

```python
import re

def vr(a, n=1):
    return 'v%d' % a if n == 1 else 'v[%d:%d]' % (a, a + n - 1)
def sr(a, n=1):
    return 's%d' % a if n == 1 else 's[%d:%d]' % (a, a + n - 1)

class Asm:
    UID = 0
    def __init__(self):
        self.lines = []
        self.uid = 0
    def __call__(self, s):
        for l in s.split('\n'):
            l = l.strip()
            if l: self.lines.append(l)
    def label(self, name): self.lines.append(name + ':')
    def newlabel(self, base='L'):
        Asm.UID += 1
        return '%s_%d' % (base, Asm.UID)
    def text(self): return '\n'.join(self.lines) + '\n'

_REG = re.compile(r'^(-|abs\()?([vsa])(?:(\d+)|\[(\d+):(\d+)\])\)?$')
def regs_of(tok):
    tok = tok.strip()
    if tok in ('vcc',): return {('s', 106), ('s', 107)}
    if tok == 'vcc_lo': return {('s', 106)}
    if tok == 'vcc_hi': return {('s', 107)}
    if tok == 'exec': return {('s', 126), ('s', 127)}
    if tok == 'm0': return {('s', 124)}
    m = _REG.match(tok)
    if not m: return set()
    f = m.group(2)
    if m.group(3) is not None: return {(f, int(m.group(3)))}
    return {(f, i) for i in range(int(m.group(4)), int(m.group(5)) + 1)}

TRANS = ('v_exp_f32', 'v_log_f32', 'v_rcp_f32', 'v_rsq_f32', 'v_sqrt_f32', 'v_sin_f32', 'v_cos_f32', 'v_rcp_iflag_f32')
class I:
    __slots__ = ('text', 'mn', 'kind', 'dst', 'src', 'mods', 'ws', 'srcc', 'srcab', 'passes', 'target', 'dpp', 'sdata')
def parse(line):
    i = I(); i.text = line
    s = line.split(';')[0].strip()
    i.dst = set(); i.src = set(); i.srcc = set(); i.srcab = set(); i.passes = 0; i.target = None; i.dpp = False; i.sdata = set(); i.ws = 1
    if s.endswith(':') or s.startswith('.') or not s:
        i.kind = 'label' if s.endswith(':') else 'dir'; i.mn = s; i.ws = 0; return i
    parts = s.split(None, 1)
    mn = parts[0]; i.mn = mn
    rest = parts[1] if len(parts) > 1 else ''
    ops = []; cur = ''; depth = 0
    for ch in rest:
        if ch == '[': depth += 1
        if ch == ']': depth -= 1
        if ch == ',' and depth == 0: ops.append(cur.strip()); cur = ''
        else: cur += ch
    if cur.strip(): ops.append(cur.strip())
    mods = []
    if ops:
        last = ops[-1].split()
        if last:
            ops[-1] = last[0]; mods = last[1:]
    i.mods = mods
    base = re.sub(r'_(e32|e64|dpp|sdwa)$', '', mn)
    if mn == 's_nop':
        i.kind = 'nop'; i.ws = int(ops[0], 0) + 1
    elif mn.startswith('v_mfma'):
        i.kind = 'mfma'; i.dst = regs_of(ops[0]); i.srcab = regs_of(ops[1]) | regs_of(ops[2]); i.srcc = regs_of(ops[3]); i.src = i.srcab | i.srcc
        i.passes = 8 if '32x32' in mn else 4
    elif mn.startswith('v_'):
        i.kind = 'valu'
        i.dpp = any(m.startswith(('quad_perm', 'row_', 'wave_', 'bank_mask')) for m in mods) or mn.endswith('_dpp')
        if base.startswith('v_cmp'):
            i.dst = regs_of(ops[0])
            for o in ops[1:]: i.src |= regs_of(o)
        elif base in ('v_add_co_u32', 'v_sub_co_u32', 'v_addc_co_u32', 'v_subb_co_u32', 'v_mad_u64_u32'):
            i.dst = regs_of(ops[0]) | regs_of(ops[1])
            for o in ops[2:]: i.src |= regs_of(o)
        elif base.startswith('v_permlane') and 'swap' in base:
            i.dst = regs_of(ops[0]) | regs_of(ops[1]); i.src = set(i.dst)
        else:
            i.dst = regs_of(ops[0])
            for o in ops[1:]: i.src |= regs_of(o)
            if base in ('v_fmac_f32', 'v_pk_fmac_f16', 'v_dot2c_f32_bf16', 'v_writelane_b32') or i.dpp: i.src |= i.dst
            if base == 'v_cndmask_b32' and len(ops) == 3: i.src |= regs_of('vcc')
            if base == 'v_accvgpr_write_b32' or base == 'v_accvgpr_read_b32': pass
    elif mn.startswith('ds_'):
        i.kind = 'ds'
        if 'read' in mn or 'bpermute' in mn or 'permute' in mn or 'swizzle' in mn or '_rtn' in mn:
            i.dst = regs_of(ops[0])
            for o in ops[1:]: i.src |= regs_of(o)
        else:
            for o in ops: i.src |= regs_of(o)
    elif mn.startswith(('buffer_', 'global_')):
        i.kind = 'vmem'
        islds = 'lds' in mods or '_load_lds' in mn
        if mn.startswith(('buffer_wbl2', 'buffer_inv')):
            pass
        elif 'store' in mn or ('atomic' in mn and 'sc0' not in mods):
            for o in ops: i.src |= regs_of(o)
            if mn.startswith('buffer_'): i.sdata = regs_of(ops[0])
            else: i.sdata = regs_of(ops[1])
            if not (mn.endswith('x4') or mn.endswith('x3')): i.sdata = set()
        elif islds:
            for o in ops: i.src |= regs_of(o)
            i.src |= regs_of('m0')
            i.kind = 'dma'
        else:
            i.dst = regs_of(ops[0])
            for o in ops[1:]: i.src |= regs_of(o)
            if 'atomic' in mn: i.src |= i.dst
    elif mn.startswith('s_'):
        i.kind = 'salu'
        if mn.startswith(('s_branch', 's_cbranch')):
            i.kind = 'branch'; i.target = ops[0]
        elif mn.startswith(('s_cmp', 's_waitcnt', 's_barrier', 's_endpgm', 's_setprio', 's_sleep', 's_bitcmp')):
            for o in ops: i.src |= regs_of(o)
        else:
            if ops: i.dst = regs_of(ops[0])
            for o in ops[1:]: i.src |= regs_of(o)
            if 'saveexec' in mn: i.dst |= regs_of('exec')
    else:
        raise ValueError('unknown instr: ' + line)
    return i

def need(p, c):
    n = 0
    pv = {r for r in p.dst if r[0] in 'va'}; ps = {r for r in p.dst if r[0] == 's'}
    cv_src = {r for r in c.src if r[0] in 'va'}; cs_src = {r for r in c.src if r[0] == 's'}
    if p.kind == 'valu':
        if c.kind == 'mfma' and pv & c.src: n = max(n, 2)
        if c.kind in ('vmem', 'dma') and ps & cs_src: n = max(n, 5)
        if c.kind == 'valu' and ps & cs_src: n = max(n, 2)
        if c.kind == 'valu' and c.mn.startswith(('v_readlane', 'v_readfirstlane')) and pv & cv_src: n = max(n, 1)
        if c.kind == 'valu' and c.mn.startswith(('v_readlane', 'v_writelane')) and ps & cs_src: n = max(n, 4)
        if c.kind == 'valu' and c.dpp and pv & cv_src: n = max(n, 2)
        if c.kind == 'valu' and c.mn.startswith('v_permlane') and pv & cv_src: n = max(n, 2)
        if p.mn.startswith(TRANS) and c.kind in ('valu', 'mfma', 'ds', 'vmem') and pv & c.src: n = max(n, 1)
        if ('sdwa' in p.mn or (not p.mn.startswith('v_pk_') and any(m.startswith(('op_sel', 'dst_sel')) for m in p.mods))) and c.kind == 'valu' and pv & (c.src | c.dst): n = max(n, 1)
        if c.kind == 'salu' and ps & cs_src: n = max(n, 1)
    if p.kind == 'mfma':
        P = p.passes
        if c.kind == 'mfma':
            if p.dst & c.srcab: n = max(n, {4: 8, 8: 12}[P])
            if p.dst & c.srcc and not (p.dst == c.srcc and p.passes == c.passes): n = max(n, {4: 6, 8: 10}[P])
            if p.dst & c.dst and not (p.dst & c.srcc): n = max(n, {4: 6, 8: 10}[P])
        elif c.kind in ('valu', 'vmem', 'ds', 'dma'):
            if p.dst & (c.src | c.dst): n = max(n, {4: 8, 8: 12}[P])
        if c.kind == 'valu' and p.srcc & c.dst: n = max(n, {4: 3, 8: 7}[P])
    if p.kind == 'salu' and ('s', 124) in p.dst and c.kind == 'dma': n = max(n, 1)
    if p.kind == 'vmem' and p.sdata:
        if c.kind == 'valu' and p.sdata & c.dst: n = max(n, 2)
        elif c.kind in ('ds', 'vmem', 'mfma') and p.sdata & c.dst: n = max(n, 1)
    return n

WINDOW = 24
def fix_hazards(lines, verbose=False):
    ins = [parse(l) for l in lines]
    added = 0
    def check_from(hist, start, ins, labels, depth=0):
        dist_base = 0
        seq = []
        pos = start
        slots = 0
        while pos < len(ins) and slots < WINDOW:
            c = ins[pos]
            if c.kind in ('label', 'dir'): pos += 1; continue
            d = slots
            for p in reversed(hist):
                if p.kind in ('label', 'dir'): continue
                n = need(p, c)
                if n > d: return pos, n - d
                d += p.ws
                if d > WINDOW: break
            slots += c.ws
            if c.kind == 'branch' and c.mn == 's_branch': break
            if c.mn == 's_endpgm': break
            pos += 1
        return None
    changed = True
    while changed:
        changed = False
        out = []
        hist = []
        for c in ins:
            if c.kind in ('label', 'dir'):
                out.append(c); continue
            d = 0; req = 0
            for p in reversed(hist):
                n = need(p, c)
                if n > d: req = max(req, n - d)
                d += p.ws
                if d > WINDOW: break
            if req:
                while req > 0:
                    k = min(req, 16)
                    nop = parse('s_nop %d' % (k - 1)); out.append(nop); hist.append(nop); req -= k; added += 1
            out.append(c); hist.append(c)
            if c.mn in ('s_branch', 's_endpgm'): hist = []
            if len(hist) > 64: hist = hist[-40:]
        ins = out
        labels = {c.mn[:-1]: k for k, c in enumerate(ins) if c.kind == 'label'}
        for k, c in enumerate(ins):
            if c.kind == 'branch':
                if c.target not in labels: raise ValueError('unknown label ' + c.target)
                h = [p for p in ins[max(0, k - 40):k + 1] if p.kind not in ('label', 'dir')]
                for q in range(len(h) - 2, -1, -1):
                    if h[q].mn in ('s_branch', 's_endpgm'): h = h[q + 1:]; break
                r = check_from(h, labels[c.target], ins, labels)
                if r:
                    pos, n = r
                    t = labels[c.target] + 1
                    ins.insert(t, parse('s_nop %d' % (n - 1))); added += 1
                    changed = True
                    break
    if verbose: print('hazard fixer: inserted %d s_nop' % added)
    return [c.text for c in ins]
```

```python
from common import *
S_T0, S_T1, S_T2 = 41, 42, 43

LDS_B1 = 8 * 8192
def b1_tile(a, st_flags='', hook_after_issue=None):
    srd(a, 32, P_K, S * D * 2); srd(a, 36, P_V, S * D * 2); srd(a, 52, P_SK, D * 8)
    KR, VR, SK = 64, 108, 140
    a('v_and_b32 v2, 7, v0'); a('v_lshrrev_b32 v3, 3, v0')
    a('s_lshl_b32 s%d, s29, 6' % S_T0); a('v_lshlrev_b32 v4, 3, v3'); a('v_add_u32 v4, s%d, v4' % S_T0)
    a('v_mul_u32_u24 v4, 1152, v4'); a('v_lshlrev_b32 v5, 4, v2'); a('v_add_u32 v4, v4, v5')
    a('s_lshl_b32 s%d, s30, 7' % S_T0); a('v_add_u32 v4, s%d, v4' % S_T0)
    a('v_subrev_u32 v6, %d, v4' % (3 * 1152))
    a('s_lshl_b32 s%d, s30, 9' % S_T0); a('v_lshlrev_b32 v7, 6, v2'); a('v_add_u32 v7, s%d, v7' % S_T0)
    for k in range(4): a('buffer_load_dwordx4 %s, v7, s[52:55], 0 offen offset:%d' % (vr(SK + 4 * k, 4), 16 * k))
    for j in range(11):
        if j < 3:
            a('v_add_u32 v8, %d, v6' % (j * 1152))
            a('buffer_load_dwordx4 %s, v8, s[32:35], 0 offen' % vr(KR + 4 * j, 4))
        else:
            a('s_mov_b32 s%d, %d' % (S_T0, (j - 3) * 1152))
            a('buffer_load_dwordx4 %s, v4, s[32:35], s%d offen' % (vr(KR + 4 * j, 4), S_T0))
    for j in range(8):
        a('s_mov_b32 s%d, %d' % (S_T0, j * 1152))
        a('buffer_load_dwordx4 %s, v4, s[36:39], s%d offen' % (vr(VR + 4 * j, 4), S_T0))
    if hook_after_issue: hook_after_issue(a)
    a('s_mov_b32 s44, 0xffff0000')
    a('v_xor_b32 v9, v2, v3'); a('v_lshlrev_b32 v9, 4, v9'); a('v_lshl_add_u32 v9, v3, 7, v9')
    a('s_lshl_b32 s45, s%d, 13' % S_WAVE); a('v_add_u32 v9, s45, v9')
    a('s_waitcnt vmcnt(0)')
    T = 160
    for e in range(8):
        d = e >> 1; hi = e & 1
        a('v_lshlrev_b32 v%d, 16, v%d' % (T + 0, SK + 2 * e)); a('v_and_b32 v%d, s44, v%d' % (T + 1, SK + 2 * e))
        a('v_lshlrev_b32 v%d, 16, v%d' % (T + 2, SK + 2 * e + 1)); a('v_and_b32 v%d, s44, v%d' % (T + 3, SK + 2 * e + 1))
        for j in range(11):
            if hi: a('v_and_b32 v%d, s44, v%d' % (T + 4 + j, KR + 4 * j + d))
            else: a('v_lshlrev_b32 v%d, 16, v%d' % (T + 4 + j, KR + 4 * j + d))
        for i in range(8): a('v_mul_f32 v%d, v%d, v%d' % (T + 16 + i, T + 4 + i, T + 3))
        for i in range(8): a('v_fmac_f32 v%d, v%d, v%d' % (T + 16 + i, T + 5 + i, T + 2))
        for i in range(8): a('v_fmac_f32 v%d, v%d, v%d' % (T + 16 + i, T + 6 + i, T + 1))
        for i in range(8): a('v_fmac_f32 v%d, v%d, v%d' % (T + 16 + i, T + 7 + i, T + 0))
        for i in range(8):
            if hi: a('v_and_b32 v%d, s44, v%d' % (T + 4 + i, VR + 4 * i + d))
            else: a('v_lshlrev_b32 v%d, 16, v%d' % (T + 4 + i, VR + 4 * i + d))
        for i in range(8): a('v_mul_f32 v%d, v%d, v%d' % (T + 16 + i, T + 16 + i, T + 4 + i))
        U = T + 24 + 4 * (e & 1)
        for i in range(4): a('v_cvt_pk_bf16_f32 v%d, v%d, v%d' % (U + i, T + 16 + 2 * i, T + 17 + 2 * i))
        a('ds_write_b128 v9, %s offset:%d' % (vr(U, 4), e * 1024))
    a('v_lshlrev_b32 v10, 10, v3'); a('v_lshl_add_u32 v10, v2, 7, v10'); a('v_add_u32 v10, s45, v10')
    a('v_lshlrev_b32 v11, 12, v3'); a('v_lshl_add_u32 v11, v2, 4, v11')
    a('s_lshl_b32 s%d, s30, 18' % S_T0); a('s_lshl_b32 s%d, s29, 7' % S_T1); a('s_add_u32 s%d, s%d, s%d' % (S_T0, S_T0, S_T1)); a('s_add_u32 s%d, s%d, %d' % (S_T0, S_T0, WS_UT))
    a('s_waitcnt lgkmcnt(0)')
    for cc in range(8):
        a('v_xor_b32 v12, %d, v2' % cc); a('v_lshl_add_u32 v12, v12, 4, v10')
        a('ds_read_b128 %s, v12' % vr(64 + 4 * cc, 4))
    for cc in range(8):
        a('s_waitcnt lgkmcnt(%d)' % (7 - cc))
        a('s_add_u32 s%d, s%d, %d' % (S_T1, S_T0, cc * 8 * 4096))
        a('buffer_store_dwordx4 %s, v11, s[64:67], s%d offen %s' % (vr(64 + 4 * cc, 4), S_T1, st_flags))

HP = 4160
CH_H = 4 * HP
CH_U = 4576
CH_SZ = CH_H + CH_U
CONV_BASE = 36864
CONV_U = CONV_BASE
CONV_H = CONV_U + 4 * CH_U
LDS_CONV = CONV_H + 4 * CH_H
S_CH, S_P, S_LB, S_LU = 88, 89, 90, 94
V_H = 24
V_D = 40
def conv_issue(a):
    a('s_lshr_b32 s%d, s%d, 1' % (S_T0, S_WAVE)); a('s_and_b32 s%d, s%d, 1' % (S_P, S_WAVE))
    a('s_lshl_b32 s%d, s29, 2' % S_CH); a('s_add_u32 s%d, s%d, s%d' % (S_CH, S_CH, S_T0))
    a('s_mul_i32 s%d, s%d, %d' % (S_LB, S_T0, CH_H)); a('s_add_u32 s%d, s%d, %d' % (S_LB, S_LB, CONV_H))
    a('s_mul_i32 s%d, s%d, %d' % (S_LU, S_T0, CH_U)); a('s_add_u32 s%d, s%d, %d' % (S_LU, S_LU, CONV_U))
    a('s_lshl_b32 s%d, s%d, 12' % (S_T1, S_CH))
    srd(a, 32, P_H, 4096, 's%d' % S_T1)
    srd(a, 36, P_D, D * 2)
    a('v_lshlrev_b32 v41, 4, v0')
    a('s_lshl_b32 s%d, s%d, 11' % (S_T0, S_P)); a('v_add_u32 v42, s%d, v41' % S_T0)
    for k in range(2):
        if k: a('v_add_u32 v42, 1024, v42')
        a('buffer_load_dwordx4 %s, v42, s[32:35], 0 offen' % vr(V_H + 8 * k + 4, 4))
        a('v_subrev_u32 v43, 8, v42')
        a('buffer_load_dwordx2 %s, v43, s[32:35], 0 offen' % vr(V_H + 8 * k, 2))
    a('s_lshl_b32 s%d, s%d, 1' % (S_T0, S_CH)); a('v_mov_b32 v43, s%d' % S_T0)
    a('buffer_load_ushort v%d, v43, s[36:39], 0 offen' % V_D)

def conv_u_dma(a, ld_flags):
    a('v_lshlrev_b32 v41, 4, v0')
    a('s_lshl_b32 s%d, s%d, 12' % (S_T0, S_CH)); a('s_lshl_b32 s%d, s%d, 11' % (S_T1, S_P)); a('s_add_u32 s%d, s%d, s%d' % (S_T0, S_T0, S_T1)); a('s_add_u32 s%d, s%d, %d' % (S_T0, S_T0, WS_UT))
    a('s_add_u32 s%d, s%d, s%d' % (S_T1, S_T1, S_LU))
    for k in range(2):
        a('s_add_u32 m0, s%d, %d' % (S_T1, 480 + k * 1024))
        a('s_add_u32 s%d, s%d, %d' % (S_T2, S_T0, k * 1024))
        a('buffer_load_dwordx4 v41, s[64:67], s%d offen %s lds' % (S_T2, ld_flags))

def conv_copies(a, nyounger, waited=False):
    for k in range(4): a('v_mov_b32 v%d, 0' % (44 + k))
    a('v_lshlrev_b32 v41, 4, v0')
    a('s_mov_b64 s[52:53], exec')
    zl = a.newlabel('Lcz'); ze = a.newlabel('Lce')
    a('s_cmp_eq_u32 s%d, 0' % S_P); a('s_cbranch_scc0 %s' % zl)
    a('v_lshrrev_b32 v42, 2, v0'); a('v_mul_u32_u24 v42, %d, v42' % HP); a('v_and_b32 v43, 3, v0'); a('v_lshl_add_u32 v42, v43, 4, v42'); a('v_add_u32 v42, s%d, v42' % S_LB)
    a('s_mov_b64 exec, 0xffff')
    a('ds_write_b128 v42, v[44:47]')
    a('s_branch %s' % ze)
    a.label(zl)
    a('v_add_u32 v42, s%d, v41' % S_LU)
    a('s_mov_b64 exec, 0x3fffffff')
    a('ds_write_b128 v42, v[44:47]')
    a.label(ze)
    a('s_mov_b64 exec, s[52:53]')
    a('s_lshl_b32 s%d, s%d, 11' % (S_T0, S_P)); a('s_add_u32 s%d, s%d, s%d' % (S_T0, S_T0, S_LB)); a('v_add_u32 v42, s%d, v41' % S_T0)
    if not waited: a('s_waitcnt vmcnt(%d)' % (1 + nyounger))
    for k in range(2):
        pm2, pm1 = V_H + 8 * k, V_H + 8 * k + 1
        h = V_H + 8 * k + 4
        o = 64 + k * 1024
        c1, c2, c3 = 44 + 0, 48, 52
        a('ds_write_b128 v42, %s offset:%d' % (vr(h, 4), o))
        a('v_mov_b32 v48, v%d' % pm1); a('v_mov_b32 v49, v%d' % h); a('v_mov_b32 v50, v%d' % (h + 1)); a('v_mov_b32 v51, v%d' % (h + 2))
        a('ds_write_b128 v42, v[48:51] offset:%d' % (o + 2 * HP))
        a('v_alignbit_b32 v52, v%d, v%d, 16' % (pm1, pm2))
        a('v_alignbit_b32 v53, v%d, v%d, 16' % (h, pm1))
        a('v_alignbit_b32 v54, v%d, v%d, 16' % (h + 1, h))
        a('v_alignbit_b32 v55, v%d, v%d, 16' % (h + 2, h + 1))
        a('ds_write_b128 v42, v[52:55] offset:%d' % (o + 3 * HP))
        a('v_mov_b32 v56, v53'); a('v_mov_b32 v57, v54'); a('v_mov_b32 v58, v55')
        a('v_alignbit_b32 v59, v%d, v%d, 16' % (h + 3, h + 2))
        a('ds_write_b128 v42, v[56:59] offset:%d' % (o + HP))
    a('v_lshrrev_b32 v7, 4, v0'); a('v_bfe_u32 v8, v0, 2, 2'); a('v_and_b32 v9, 3, v0')
    a('v_mul_u32_u24 v10, %d, v8' % HP); a('v_lshl_add_u32 v10, v9, 3, v10'); a('v_lshlrev_b32 v11, 4, v7'); a('v_sub_u32 v10, v10, v11')
    a('s_lshl_b32 s%d, s%d, 8' % (S_T0, S_P)); a('s_add_u32 s%d, s%d, s%d' % (S_T0, S_T0, S_LB)); a('s_add_u32 s%d, s%d, %d' % (S_T0, S_T0, 64 + 32 - 8))
    a('v_add_u32 v10, s%d, v10' % S_T0)
    a('v_and_b32 v11, 15, v0'); a('v_lshlrev_b32 v11, 5, v11'); a('v_lshl_add_u32 v11, v7, 4, v11')
    a('s_lshl_b32 s%d, s%d, 8' % (S_T0, S_P)); a('s_sub_u32 s%d, s%d, s%d' % (S_T0, S_LU, S_T0))
    a('v_add_u32 v11, s%d, v11' % S_T0)

def conv_main(a, st_flags=''):
    ACC = 64
    AF, BF = 96, 160
    lg = LG(a)
    def rdlist(cc):
        s_ = cc & 1
        out = []
        for pp in range(8):
            out.append(('ds_read_b128 %s, v11 offset:%d' % (vr(BF + 32 * s_ + 4 * pp, 4), 448 + 512 * pp - 64 * cc), [('B', cc, pp)]))
            for q in range(2):
                out.append(('ds_read_b64_tr_b16 %s, v10 offset:%d' % (vr(AF + 32 * s_ + 4 * pp + 2 * q, 2), 64 * cc + 512 * pp + (8 if q == 0 else 0)), [('A', cc, pp, q)]))
        return out
    for txt, tg in rdlist(0): lg.issue(txt, tg)
    first = set()
    for cc in range(4):
        s_ = cc & 1
        pend = rdlist(cc + 1) if cc < 3 else []
        pairs = sorted([(p, m_) for p in range(8) for m_ in range(8) if p + m_ <= 7], key=lambda x: (max(x), x[0]))
        n = 0
        for (p, m_) in pairs:
            lg.wait([('A', cc, p, 0), ('A', cc, p, 1), ('B', cc, m_)])
            T = p + m_
            a('v_mfma_f32_16x16x32_bf16 %s, %s, %s, %s' % (vr(ACC + 4 * T, 4), vr(AF + 32 * s_ + 4 * p, 4), vr(BF + 32 * s_ + 4 * m_, 4), vr(ACC + 4 * T, 4) if T in first else '0'))
            first.add(T)
            n += 1
            if n >= 8 and pend:
                txt, tg = pend.pop(0); lg.issue(txt, tg)
        while pend:
            txt, tg = pend.pop(0); lg.issue(txt, tg)
    a('v_lshlrev_b32 v2, 4, v0')
    a('s_lshl_b32 s%d, s%d, 12' % (S_T0, S_P)); a('s_add_u32 s%d, s%d, s%d' % (S_T0, S_T0, S_LB)); a('v_add_u32 v6, s%d, v2' % S_T0)
    a('s_xor_b32 s%d, s%d, 1' % (S_T1, S_P)); a('s_lshl_b32 s%d, s%d, 12' % (S_T1, S_T1)); a('s_add_u32 s%d, s%d, s%d' % (S_T1, S_T1, S_LB)); a('v_add_u32 v7, s%d, v2' % S_T1)
    a('v_and_b32 v8, 15, v0'); a('v_lshlrev_b32 v8, 5, v8'); a('v_lshrrev_b32 v9, 4, v0'); a('v_lshl_add_u32 v8, v9, 3, v8')
    a('s_lshl_b32 s%d, s%d, 11' % (S_T0, S_P)); a('s_add_u32 s%d, s%d, s%d' % (S_T0, S_T0, S_LU)); a('s_add_u32 s%d, s%d, %d' % (S_T0, S_T0, 480))
    a('v_add_u32 v8, s%d, v8' % S_T0); a('v_add_u32 v9, s%d, v2' % S_T0)
    for t in range(4): a('ds_read_b64 %s, v8 offset:%d' % (vr(112 + 2 * t, 2), t * 512))
    a('v_lshlrev_b32 v%d, 16, v%d' % (V_D, V_D))
    a('s_mov_b32 s45, 0xffff0000')
    a('s_barrier')
    l1 = a.newlabel('Lcx'); l2 = a.newlabel('Lcy')
    a('s_cmp_eq_u32 s%d, 0' % S_P); a('s_cbranch_scc0 %s' % l1)
    for t in range(4): a('ds_write_b128 v6, %s offset:%d' % (vr(ACC + 16 + 4 * t, 4), t * 1024))
    a('s_branch %s' % l2)
    a.label(l1)
    for t in range(4): a('ds_write_b128 v6, %s offset:%d' % (vr(ACC + 4 * t, 4), t * 1024))
    a('s_nop 1')
    for r in range(16): a('v_mov_b32 v%d, v%d' % (ACC + r, ACC + 16 + r))
    a.label(l2)
    a('s_waitcnt lgkmcnt(4)')
    for t in range(4):
        a('v_lshlrev_b32 v120, 16, v%d' % (112 + 2 * t)); a('v_and_b32 v121, s45, v%d' % (112 + 2 * t))
        a('v_lshlrev_b32 v122, 16, v%d' % (113 + 2 * t)); a('v_and_b32 v123, s45, v%d' % (113 + 2 * t))
        for r in range(4): a('v_fmac_f32 v%d, v%d, v%d' % (ACC + 4 * t + r, 120 + r, V_D))
    a('s_waitcnt lgkmcnt(0)')
    a('s_barrier')
    for t in range(4): a('ds_read_b128 %s, v7 offset:%d' % (vr(96 + 4 * t, 4), t * 1024))
    for t in range(4):
        a('s_waitcnt lgkmcnt(%d)' % (3 - t))
        for r in range(0, 4, 2): a('v_pk_add_f32 %s, %s, %s' % (vr(ACC + 4 * t + r, 2), vr(ACC + 4 * t + r, 2), vr(96 + 4 * t + r, 2)))
        a('v_cvt_pk_bf16_f32 v%d, v%d, v%d' % (124 + 2 * t, ACC + 4 * t, ACC + 4 * t + 1))
        a('v_cvt_pk_bf16_f32 v%d, v%d, v%d' % (125 + 2 * t, ACC + 4 * t + 2, ACC + 4 * t + 3))
        a('ds_write_b64 v8, %s offset:%d' % (vr(124 + 2 * t, 2), t * 512))
    a('s_lshl_b32 s%d, s%d, 12' % (S_T0, S_CH)); a('s_lshl_b32 s%d, s%d, 11' % (S_T1, S_P)); a('s_add_u32 s%d, s%d, s%d' % (S_T0, S_T0, S_T1)); a('s_add_u32 s%d, s%d, %d' % (S_T0, S_T0, WS_YT))
    a('s_waitcnt lgkmcnt(0)')
    for k in range(2): a('ds_read_b128 %s, v9 offset:%d' % (vr(132 + 4 * k, 4), k * 1024))
    for k in range(2):
        a('s_waitcnt lgkmcnt(%d)' % (1 - k))
        a('s_add_u32 s%d, s%d, %d' % (S_T1, S_T0, k * 1024))
        a('buffer_store_dwordx4 %s, v2, s[64:67], s%d offen %s' % (vr(132 + 4 * k, 4), S_T1, st_flags))

LDS_B3 = 8 * 17408
def b3_tile(a, ld_flags='', st_flags='', wait_y=None):
    S_LB = 44
    srd(a, 32, P_Q, S * D * 2); srd(a, 52, P_OUT, S * 1152 * 2)
    a('s_mul_i32 s%d, s%d, 17408' % (S_LB, S_WAVE))
    a('v_and_b32 v2, 7, v0'); a('v_lshrrev_b32 v3, 3, v0')
    a('s_lshl_b32 s%d, s29, 6' % S_T0); a('v_add_u32 v4, s%d, v3' % S_T0); a('v_mul_u32_u24 v4, 1152, v4'); a('v_lshl_add_u32 v4, v2, 4, v4')
    a('s_lshl_b32 s%d, s30, 7' % S_T0); a('v_add_u32 v4, s%d, v4' % S_T0)
    Q = 64
    for j in range(8):
        a('s_mov_b32 s%d, %d' % (S_T0, j * 8 * 1152))
        a('buffer_load_dwordx4 %s, v4, s[32:35], s%d offen' % (vr(Q + 4 * j, 4), S_T0))
    if wait_y: wait_y(a)
    a('v_lshrrev_b32 v5, 1, v2'); a('v_and_b32 v6, 3, v3'); a('v_xor_b32 v5, v5, v6'); a('v_lshlrev_b32 v5, 1, v5'); a('v_and_b32 v6, 1, v2'); a('v_or_b32 v5, v5, v6')
    a('v_lshlrev_b32 v6, 12, v3'); a('v_lshl_add_u32 v6, v5, 4, v6')
    a('s_lshl_b32 s%d, s30, 18' % S_T0); a('s_lshl_b32 s%d, s29, 7' % S_T1); a('s_add_u32 s%d, s%d, s%d' % (S_T0, S_T0, S_T1)); a('s_add_u32 s%d, s%d, %d' % (S_T0, S_T0, WS_YT))
    for j in range(8):
        a('s_add_u32 m0, s%d, %d' % (S_LB, j * 1024))
        a('s_add_u32 s%d, s%d, %d' % (S_T1, S_T0, j * 8 * 4096))
        a('buffer_load_dwordx4 v6, s[64:67], s%d offen %s lds' % (S_T1, ld_flags))
    a('v_lshrrev_b32 v7, 4, v0'); a('v_bfe_u32 v8, v0, 2, 2'); a('v_and_b32 v9, 3, v0')
    a('v_xor_b32 v10, v7, v8'); a('v_lshlrev_b32 v10, 5, v10'); a('v_lshl_add_u32 v10, v8, 7, v10'); a('v_lshl_add_u32 v10, v9, 3, v10'); a('v_add_u32 v10, s%d, v10' % S_LB)
    a('v_mul_u32_u24 v11, 144, v0'); a('s_add_u32 s%d, s%d, 8192' % (S_T0, S_LB)); a('v_add_u32 v11, s%d, v11' % S_T0)
    a('s_waitcnt vmcnt(0)')
    Y = 96
    for chq in range(16): a('ds_read_b64_tr_b16 %s, v10 offset:%d' % (vr(Y + 2 * chq, 2), chq * 512))
    for chq in range(16):
        a('s_waitcnt lgkmcnt(%d)' % min(15, 15 - chq) if chq else 's_waitcnt lgkmcnt(15)')
        a('ds_write_b64 v11, %s offset:%d' % (vr(Y + 2 * chq, 2), chq * 8))
    a('v_mul_u32_u24 v12, 144, v3'); a('v_lshl_add_u32 v12, v2, 4, v12'); a('v_add_u32 v12, s%d, v12' % S_T0)
    a('s_waitcnt lgkmcnt(0)')
    for j in range(8): a('ds_read_b128 %s, v12 offset:%d' % (vr(Y + 4 * j, 4), j * 8 * 144))
    a('s_mov_b32 s45, 0xffff0000')
    a('s_lshl_b32 s%d, s29, 6' % S_T0); a('v_add_u32 v4, s%d, v3' % S_T0); a('v_mul_u32_u24 v4, 2304, v4'); a('v_lshl_add_u32 v4, v2, 4, v4')
    a('s_lshl_b32 s%d, s30, 7' % S_T0); a('s_add_u32 s%d, s%d, 1152' % (S_T0, S_T0)); a('v_add_u32 v4, s%d, v4' % S_T0)
    for j in range(8):
        a('s_waitcnt lgkmcnt(%d)' % (7 - j))
        for d in range(4):
            q_, y_ = Q + 4 * j + d, Y + 4 * j + d
            a('v_lshlrev_b32 v140, 16, v%d' % q_); a('v_and_b32 v141, s45, v%d' % q_)
            a('v_lshlrev_b32 v142, 16, v%d' % y_); a('v_and_b32 v143, s45, v%d' % y_)
            a('v_mul_f32 v140, v140, v142'); a('v_mul_f32 v141, v141, v143')
            a('v_cvt_pk_bf16_f32 v%d, v140, v141' % q_)
        a('s_mov_b32 s%d, %d' % (S_T0, j * 8 * 2304))
        a('buffer_store_dwordx4 %s, v4, s[52:55], s%d offen %s' % (vr(Q + 4 * j, 4), S_T0, st_flags))
```

```python
from common import *
import common

PRO_BARRIER = True
SLOT = 36864
NSLOT = 4
XOFF, WOFF, DUMOFF = 0, 16384, 35840
LDS_GEMM1 = 163840
V_ACC = 64
V_XF = 104
V_WF = 120
V_XA0, V_XA1, V_WA = 10, 11, 12
V_XT0, V_XT1, V_WT = 13, 14, 15
V_WB, V_WT2 = 20, 21
V_GX, V_GW0, V_GW1, V_GW2 = 16, 17, 18, 19
S_RT, S_CG = 29, 30
SRD_X, SRD_W = 32, 36
S_M3 = 40; S_T0, S_T1, S_T2 = 41, 42, 43
S_MX = 44
S_MW = 45

def acc(t, mt): return V_ACC + (t * 2 + mt) * 4

def gemm1_lanes(a, isq):
    a('v_lshrrev_b32 v2, 3, v0')
    a('v_and_b32 v3, 7, v0')
    a('v_xor_b32 v3, v3, v2')
    a('s_lshl_b32 s%d, s%d, 7' % (S_T0, S_RT))
    a('s_lshl_b32 s%d, s%d, 4' % (S_T1, S_WAVE))
    a('s_add_u32 s%d, s%d, s%d' % (S_T0, S_T0, S_T1))
    a('v_lshlrev_b32 v3, 4, v3')
    a('v_add_u32 v2, s%d, v2' % S_T0)
    a('v_mul_u32_u24 v2, 1152, v2')
    a('v_add_u32 v%d, v2, v3' % V_GX)
    if isq:
        a('s_mul_i32 s%d, s%d, 288' % (S_T1, S_CG))
    else:
        a('s_mul_i32 s%d, s%d, 144' % (S_T1, S_CG))
        a('s_add_u32 s%d, s%d, 1152' % (S_T1, S_T1))
    a('s_lshl_b32 s%d, s%d, 6' % (S_T0, S_WAVE))
    for k, vg in enumerate((V_GW0, V_GW1, V_GW2)):
        a('v_add_u32 v2, s%d, v0' % S_T0)
        if k: a('v_add_u32 v2, %d, v2' % (512 * k))
        a('v_mul_u32_u24 v3, 27595, v2')
        a('v_lshrrev_b32 v3, 22, v3')
        a('v_mul_u32_u24 v4, 152, v3')
        a('v_sub_u32 v4, v2, v4')
        a('v_min_u32 v4, 143, v4')
        a('v_mul_u32_u24 v5, 3641, v4')
        a('v_lshrrev_b32 v5, 16, v5')
        a('v_mul_u32_u24 v6, 18, v5')
        a('v_sub_u32 v6, v4, v6')
        a('v_lshl_add_u32 v5, v3, 3, v5')
        a('v_mul_u32_u24 v5, 3456, v5')
        if not isq:
            a('v_cmp_le_u32 vcc, 9, v6')
            a('v_add_u32 v7, 63, v6')
            a('v_cndmask_b32 v6, v6, v7, vcc')
        a('v_lshl_add_u32 v5, v6, 4, v5')
        a('v_add_u32 v%d, s%d, v5' % (vg, S_T1))
    a('s_cmp_lt_u32 s%d, 3' % S_WAVE)
    a('s_cselect_b32 s%d, -1, 0' % S_T2)
    a('v_and_b32 v%d, s%d, v%d' % (V_GW2, S_T2, V_GW2))
    a('s_lshl_b32 s%d, s%d, 10' % (S_T0, S_WAVE))
    a('s_add_u32 s%d, s%d, %d' % (S_MW, S_T0, WOFF))
    a('s_add_u32 s%d, s%d, %d' % (S_T0, S_T0, WOFF + 16 * 1024))
    a('s_cmp_lt_u32 s%d, 3' % S_WAVE)
    a('s_cselect_b32 s%d, s%d, %d' % (S_M3, S_T0, DUMOFF))
    a('s_lshl_b32 s%d, s%d, 11' % (S_MX, S_WAVE))
    a('s_and_b32 s%d, s%d, 3' % (S_T0, S_WAVE))
    a('s_lshl_b32 s%d, s%d, 12' % (S_T0, S_T0))
    a('v_and_b32 v2, 15, v0')
    a('v_lshrrev_b32 v3, 4, v0')
    a('v_and_b32 v4, 7, v2')
    a('v_xor_b32 v4, v4, v3')
    a('v_lshlrev_b32 v4, 4, v4')
    a('v_lshl_add_u32 v4, v2, 7, v4')
    a('v_add_u32 v%d, s%d, v4' % (V_XA0, S_T0))
    a('v_xor_b32 v%d, 64, v%d' % (V_XA1, V_XA0))
    a('v_mul_u32_u24 v4, 2432, v3')
    a('v_bfe_u32 v5, v0, 2, 2')
    a('v_mul_u32_u24 v5, 288, v5')
    a('v_and_b32 v6, 3, v0')
    a('v_lshlrev_b32 v6, 3, v6')
    a('v_add3_u32 v4, v4, v5, v6')
    a('s_lshr_b32 s%d, s%d, 2' % (S_T0, S_WAVE))
    if isq:
        a('s_mul_i32 s%d, s%d, 144' % (S_T0, S_T0)); a('s_add_u32 s%d, s%d, %d' % (S_T0, S_T0, WOFF))
        a('v_add_u32 v%d, s%d, v4' % (V_WA, S_T0)); a('v_add_u32 v%d, 96, v%d' % (V_WB, V_WA))
    else:
        a('s_cmp_eq_u32 s%d, 0' % S_T0)
        a('s_cselect_b32 s%d, 0, %d' % (S_T1, 144 + 64))
        a('s_cselect_b32 s%d, %d, 0' % (S_T2, 48))
        a('s_add_u32 s%d, s%d, %d' % (S_T1, S_T1, WOFF)); a('s_add_u32 s%d, s%d, %d' % (S_T2, S_T2, WOFF + 96))
        a('v_add_u32 v%d, s%d, v4' % (V_WA, S_T1)); a('v_add_u32 v%d, s%d, v4' % (V_WB, S_T2))

def gemm1_rot(a, rot_sgpr):
    a('s_lshl_b32 s%d, s%d, 7' % (S_KX, rot_sgpr))

def gemm1_srds(a):
    srd(a, SRD_X, P_X, S * D * 2)
    srd(a, SRD_W, P_WQKV, D * 3 * D * 2)

S_KX, S_KW = 46, 47
def dma_stage(a, st):
    slot = (st % NSLOT) * SLOT
    a('s_add_u32 m0, s%d, %d' % (S_MX, slot + XOFF))
    a('s_add_u32 s%d, s%d, %d' % (S_T2, S_KX, 8 * 1152))
    a('buffer_load_dwordx4 v%d, s[%d:%d], s%d offen lds' % (V_GX, SRD_X, SRD_X + 3, S_KX))
    a('s_add_u32 m0, m0, 1024')
    a('s_mul_i32 s%d, s%d, 1728' % (S_KW, S_KX))
    a('buffer_load_dwordx4 v%d, s[%d:%d], s%d offen lds' % (V_GX, SRD_X, SRD_X + 3, S_T2))
    a('s_add_u32 m0, s%d, %d' % (S_MW, slot))
    a('s_add_u32 s%d, s%d, 128' % (S_KX, S_KX))
    a('buffer_load_dwordx4 v%d, s[%d:%d], s%d offen lds' % (V_GW0, SRD_W, SRD_W + 3, S_KW))
    a('s_add_u32 m0, m0, 8192')
    a('s_cmp_eq_u32 s%d, %d' % (S_KX, 9 * 128))
    a('buffer_load_dwordx4 v%d, s[%d:%d], s%d offen lds' % (V_GW1, SRD_W, SRD_W + 3, S_KW))
    a('s_cselect_b32 s%d, 0, s%d' % (S_KX, S_KX))
    a('s_add_u32 m0, s%d, %d' % (S_M3, slot))
    a('s_nop 0')
    a('buffer_load_dwordx4 v%d, s[%d:%d], s%d offen lds' % (V_GW2, SRD_W, SRD_W + 3, S_KW))

def gemm1_main(a, isq, hook0=None, n0=0, hook1=None, n1=0, hook_after_issue=None, hook2=None):
    NST = 9
    vm = []
    def issue(st):
        dma_stage(a, st); vm.extend([st] * 5)
    def wait_stage(st):
        last = max(i for i, o in enumerate(vm) if o == st)
        a('s_waitcnt vmcnt(%d)' % (len(vm) - 1 - last))
    issue(0)
    if PRO_BARRIER: a('s_barrier')
    if hook0: hook0(a); vm.extend(['p'] * n0)
    issue(1)
    if hook_after_issue: hook_after_issue(a)
    lg = LG(a)
    def xf(s_, mt): return V_XF + (s_ * 2 + mt) * 4
    def wf(s_, t): return V_WF + (s_ * 5 + t) * 4
    def set_bases(st):
        slot = (st % NSLOT) * SLOT
        a('v_add_u32 v%d, %d, v%d' % (V_XT0, slot, V_XA0))
        a('v_add_u32 v%d, %d, v%d' % (V_XT1, slot, V_XA1))
        a('v_add_u32 v%d, %d, v%d' % (V_WT, slot, V_WA))
        a('v_add_u32 v%d, %d, v%d' % (V_WT2, slot, V_WB))
    def reads(st, ks):
        L = []
        xa = V_XT0 if ks == 0 else V_XT1
        for mt in range(2):
            L.append(('ds_read_b128 %s, v%d offset:%d' % (vr(xf(ks, mt), 4), xa, mt * 2048), [('x', st, ks, mt)]))
        for t in range(5):
            for q in range(2):
                base, tt = (V_WT, t) if t < 3 else (V_WT2, t - 3)
                L.append(('ds_read_b64_tr_b16 %s, v%d offset:%d' % (vr(wf(ks, t) + 2 * q, 2), base, ks * 9728 + q * 1152 + 32 * tt), [('w', st, ks, t, q)]))
        return L
    def mfmas(st, ks, pending, extra=None):
        pending = list(pending)
        for t in range(5):
            lg.wait([('x', st, ks, 0), ('x', st, ks, 1), ('w', st, ks, t, 0), ('w', st, ks, t, 1)])
            for mt in range(2):
                A, B = (xf(ks, mt), wf(ks, t)) if not isq else (wf(ks, t), xf(ks, mt))
                a('v_mfma_f32_16x16x32_bf16 %s, %s, %s, %s' % (vr(acc(t, mt), 4), vr(A, 4), vr(B, 4), vr(acc(t, mt), 4) if (st or ks) else '0'))
                n = 2 if mt == 0 else 1
                if t == 4 and mt == 1: n = 99
                for _ in range(n):
                    if pending:
                        txt, tags = pending.pop(0); lg.issue(txt, tags)
            if extra and t < len(extra): extra[t]()
    wait_stage(0)
    a('s_barrier')
    if common.STAMPS and getattr(common, 'DIAG_LOOP', False): common.stamp_raw(a, 1)
    set_bases(0)
    for txt, tags in reads(0, 0): lg.issue(txt, tags)
    for st in range(NST):
        ex0 = [lambda: issue(2)] if st == 0 else None
        mfmas(st, 0, reads(st, 1), ex0)
        if st + 1 < NST:
            wait_stage(st + 1)
            a('s_barrier')
            if common.STAMPS and getattr(common, 'DIAG_LOOP', False) and st in (1, 3, 5, 7): common.stamp_raw(a, 2 + st // 2); lg.done = lg.n
            set_bases(st + 1)
            nxt = reads(st + 1, 0)
            ex = None
            if st + 3 < NST:
                def f(s_=st):
                    issue(s_ + 3)
                    if hook1 and s_ == 3: hook1(a); vm.extend(['p'] * n1)
                ex = [f]
            if st == NST - 2 and hook2: ex = hook2(a)
            mfmas(st, 1, nxt, ex)
        else:
            mfmas(st, 1, [])
    lg.waitall()

LOG2E = 0x3fb8aa3b
EPS6 = 0x358637bd
def phi(a, regs, tmp, s_l2e, s_eps):
    for k0 in range(0, len(regs), 8):
        grp = regs[k0:k0 + 8]
        for j, r in enumerate(grp): a('v_mul_f32 v%d, s%d, v%d' % (tmp + j, s_l2e, r))
        for j, r in enumerate(grp): a('v_exp_f32 v%d, v%d clamp' % (tmp + j, tmp + j))
        for j, r in enumerate(grp): a('v_max_f32 v%d, 0, v%d' % (r, r))
        for j, r in enumerate(grp): a('v_add_f32 v%d, s%d, v%d' % (tmp + j, s_eps, tmp + j))
        for j, r in enumerate(grp): a('v_add_f32 v%d, v%d, v%d' % (r, r, tmp + j))

KV_TILES = KV_PAIRS + [(4, 0), (4, 1), (4, 2)]
def phi_pk(a, regs, tmp, s_l2e2, s_eps2):
    assert len(regs) % 2 == 0 and all(regs[i] % 2 == 0 and regs[i + 1] == regs[i] + 1 for i in range(0, len(regs), 2))
    for k0 in range(0, len(regs), 8):
        grp = regs[k0:k0 + 8]
        for j in range(0, len(grp), 2): a('v_pk_mul_f32 %s, %s, %s' % (vr(tmp + j, 2), vr(grp[j], 2), sr(s_l2e2, 2)))
        for j, r in enumerate(grp): a('v_exp_f32 v%d, v%d clamp' % (tmp + j, tmp + j))
        for j, r in enumerate(grp): a('v_max_f32 v%d, 0, v%d' % (r, r))
        for j in range(0, len(grp), 2): a('v_pk_add_f32 %s, %s, %s' % (vr(tmp + j, 2), vr(tmp + j, 2), sr(s_eps2, 2)))
        for j in range(0, len(grp), 2): a('v_pk_add_f32 %s, %s, %s' % (vr(grp[j], 2), vr(grp[j], 2), vr(tmp + j, 2)))

def kv_epilogue(a, st_flags='', stampf=None, get_tag=None):
    S_L2E, S_EPS = 56, 58
    a('s_mov_b32 s56, 0x%x' % LOG2E); a('s_mov_b32 s57, 0x%x' % LOG2E); a('s_mov_b32 s58, 0x%x' % EPS6); a('s_mov_b32 s59, 0x%x' % EPS6)
    EX = 122880
    a('s_and_b32 s%d, s%d, 3' % (S_T0, S_WAVE)); a('s_mul_i32 s%d, s%d, 10240' % (S_T0, S_T0))
    a('s_lshr_b32 s%d, s%d, 2' % (S_T1, S_WAVE)); a('s_mul_i32 s%d, s%d, 5120' % (S_T2, S_T1))
    a('s_add_u32 s%d, s%d, s%d' % (S_T0, S_T0, S_T2)); a('s_add_u32 s%d, s%d, %d' % (S_T0, S_T0, EX))
    a('v_lshlrev_b32 v2, 4, v0')
    a('v_add_u32 v3, s%d, v2' % S_T0)
    lab = a.newlabel('Lkvb'); lab2 = a.newlabel('Lkvc')
    a('s_cmp_eq_u32 s%d, 0' % S_T1); a('s_cbranch_scc0 %s' % lab)
    phi_pk(a, [V_ACC + r for r in range(24)], 104, S_L2E, S_EPS)
    a('s_branch %s' % lab2)
    a.label(lab)
    phi_pk(a, [V_ACC + 24 + r for r in range(16)], 104, S_L2E, S_EPS)
    a.label(lab2)
    if stampf: stampf(a, 2)
    for t in range(5):
        f = 120 + 4 * t
        a('v_cvt_pk_bf16_f32 v%d, v%d, v%d' % (f + 0, acc(t, 0) + 0, acc(t, 0) + 1))
        a('v_cvt_pk_bf16_f32 v%d, v%d, v%d' % (f + 1, acc(t, 0) + 2, acc(t, 0) + 3))
        a('v_cvt_pk_bf16_f32 v%d, v%d, v%d' % (f + 2, acc(t, 1) + 0, acc(t, 1) + 1))
        a('v_cvt_pk_bf16_f32 v%d, v%d, v%d' % (f + 3, acc(t, 1) + 2, acc(t, 1) + 3))
        if t == 2:
            a('s_mov_b32 s%d, 0x01000100' % S_T0)
            a('s_cmp_eq_u32 s%d, 0' % S_T1); a('s_cselect_b32 s60, 0, s%d' % S_T0); a('s_mov_b32 s61, s60')
            a('v_mov_b32 v4, 0x3f803f80')
            for k in range(4): a('v_cndmask_b32 v%d, v%d, v4, s[60:61]' % (f + k, f + k))
        a('ds_write_b128 v3, %s offset:%d' % (vr(f, 4), t * 1024))
    kpos = {0: 0, 1: 1, 2: 2, 3: 5 + 3, 4: 5 + 4}; vpos = {0: 3, 1: 4, 2: 5 + 0, 3: 5 + 1, 4: 5 + 2}
    TA = sum(vpos[b] << (4 * p) for p, (b, a_) in enumerate(KV_TILES)); TB = sum(kpos[a_] << (4 * p) for p, (b, a_) in enumerate(KV_TILES))
    a('s_lshl_b32 s%d, s%d, 2' % (S_T0, S_WAVE))
    for h in range(2):
        ta = (TA >> (32 * h)) & 0xffffffff; tb = (TB >> (32 * h)) & 0xffffffff
        a('s_lshr_b32 s62, 0x%x, s%d' % (ta, S_T0)); a('s_and_b32 s62, s62, 15'); a('s_lshl_b32 s62, s62, 10'); a('s_add_u32 s62, s62, %d' % EX)
        a('s_lshr_b32 s63, 0x%x, s%d' % (tb, S_T0)); a('s_and_b32 s63, s63, 15'); a('s_lshl_b32 s63, s63, 10'); a('s_add_u32 s63, s63, %d' % EX)
        a('v_add_u32 v%d, s62, v2' % (4 + 2 * h)); a('v_add_u32 v%d, s63, v2' % (5 + 2 * h))
    a('s_lshl_b32 s%d, s%d, 4' % (S_T0, S_CG)); a('s_add_u32 s%d, s%d, s%d' % (S_T0, S_T0, S_RT))
    a('s_mul_i32 s%d, s%d, %d' % (S_T0, S_T0, KVP_BLK)); a('s_add_u32 s%d, s%d, %d' % (S_T0, S_T0, WS_KVP))
    a('s_lshl_b32 s%d, s%d, 10' % (S_T1, S_WAVE)); a('s_add_u32 s%d, s%d, s%d' % (S_T1, S_T1, S_T0))
    a('s_waitcnt lgkmcnt(0)')
    if stampf: stampf(a, 3)
    a('s_barrier')
    if stampf: stampf(a, 4)
    lg = LG(a)
    for h in range(2):
        for mw in range(4):
            r0 = 64 + 32 * h + 8 * mw
            lg.issue('ds_read_b128 %s, v%d offset:%d' % (vr(r0, 4), 4 + 2 * h, mw * 10240), [('A', h, mw)])
            lg.issue('ds_read_b128 %s, v%d offset:%d' % (vr(r0 + 4, 4), 5 + 2 * h, mw * 10240), [('B', h, mw)])
    for h in range(2):
        d = 160 + 4 * h
        for mw in range(4):
            r0 = 64 + 32 * h + 8 * mw
            lg.wait([('A', h, mw), ('B', h, mw)])
            a('v_mfma_f32_16x16x32_bf16 %s, %s, %s, %s' % (vr(d, 4), vr(r0, 4), vr(r0 + 4, 4), '0' if mw == 0 else vr(d, 4)))
    if get_tag:
        get_tag(a)
        a('v_mov_b32 v172, 0xffffff00')
        for r in range(4): a('v_bfe_u32 v%d, s92, %d, 8' % (168 + r, 8 * r))
        for k in range(8): a('v_and_or_b32 v%d, v%d, v172, v%d' % (160 + k, 160 + k, 168 + (k & 3)))
    a('buffer_store_dwordx4 v[160:163], v2, s[64:67], s%d offen %s' % (S_T1, st_flags))
    a('s_add_u32 s%d, s%d, 8192' % (S_T1, S_T1))
    a('buffer_store_dwordx4 v[164:167], v2, s[64:67], s%d offen %s' % (S_T1, st_flags))
    zown = {10: 3, 12: 4, 13: 0, 14: 1, 15: 2}
    lz = a.newlabel('Lkvz')
    tbl = 0
    for p, a_ in zown.items(): tbl |= (a_ + 1) << (4 * (p - 8))
    a('s_lshl_b32 s62, s%d, 2' % S_WAVE); a('s_lshr_b32 s62, 0x%x, s62' % tbl); a('s_and_b32 s62, s62, 15')
    a('s_cmp_eq_u32 s62, 0'); a('s_cbranch_scc1 %s' % lz)
    a('s_sub_u32 s62, s62, 1'); a('s_lshl_b32 s62, s62, 6'); a('s_add_u32 s62, s62, s%d' % S_T0); a('s_add_u32 s62, s62, %d' % (16 * 1024 - 128))
    a('v_lshlrev_b32 v3, 2, v0')
    for r in range(4): a('v_mov_b32_dpp v%d, v164 quad_perm:[%d,%d,%d,%d] row_mask:0xf bank_mask:0xf' % (176 + r, r, r, r, r))
    if get_tag:
        for r in range(4): a('v_and_or_b32 v%d, v%d, v172, v%d' % (176 + r, 176 + r, 168 + r))
    a('s_mov_b32 exec_lo, 0'); a('s_mov_b32 exec_hi, 0x1111')
    a('buffer_store_dwordx4 v[176:179], v3, s[64:67], s62 offen %s' % st_flags)
    a('s_mov_b64 exec, -1')
    a.label(lz)

EX = 122880
def kv_epi_setup(a):
    a('s_mov_b32 s56, 0x%x' % LOG2E); a('s_mov_b32 s57, 0x%x' % LOG2E); a('s_mov_b32 s58, 0x%x' % EPS6); a('s_mov_b32 s59, 0x%x' % EPS6)
    a('s_and_b32 s%d, s%d, 3' % (S_T0, S_WAVE)); a('s_mul_i32 s%d, s%d, 10240' % (S_T0, S_T0))
    a('s_lshr_b32 s%d, s%d, 2' % (S_T1, S_WAVE)); a('s_mul_i32 s%d, s%d, 5120' % (S_T2, S_T1))
    a('s_add_u32 s%d, s%d, s%d' % (S_T0, S_T0, S_T2)); a('s_add_u32 s%d, s%d, %d' % (S_T0, S_T0, EX))
    a('v_lshlrev_b32 v2, 4, v0')
    a('v_add_u32 v3, s%d, v2' % S_T0)
    a('s_mov_b32 s48, s%d' % S_T1)
    a('s_mov_b32 s%d, 0x01000100' % S_T0)
    a('s_cmp_eq_u32 s48, 0'); a('s_cselect_b32 s60, 0, s%d' % S_T0); a('s_mov_b32 s61, s60')
    kpos = {0: 0, 1: 1, 2: 2, 3: 5 + 3, 4: 5 + 4}; vpos = {0: 3, 1: 4, 2: 5 + 0, 3: 5 + 1, 4: 5 + 2}
    TA = sum(vpos[b] << (4 * p) for p, (b, a_) in enumerate(KV_TILES)); TB = sum(kpos[a_] << (4 * p) for p, (b, a_) in enumerate(KV_TILES))
    a('s_lshl_b32 s%d, s%d, 2' % (S_T0, S_WAVE))
    for h in range(2):
        ta = (TA >> (32 * h)) & 0xffffffff; tb = (TB >> (32 * h)) & 0xffffffff
        a('s_lshr_b32 s62, 0x%x, s%d' % (ta, S_T0)); a('s_and_b32 s62, s62, 15'); a('s_lshl_b32 s62, s62, 10'); a('s_add_u32 s62, s62, %d' % EX)
        a('s_lshr_b32 s63, 0x%x, s%d' % (tb, S_T0)); a('s_and_b32 s63, s63, 15'); a('s_lshl_b32 s63, s63, 10'); a('s_add_u32 s63, s63, %d' % EX)
        a('v_add_u32 v%d, s62, v2' % (4 + 2 * h)); a('v_add_u32 v%d, s63, v2' % (5 + 2 * h))
    a('s_lshl_b32 s%d, s%d, 4' % (S_T0, S_CG)); a('s_add_u32 s%d, s%d, s91' % (S_T0, S_T0))
    a('s_mul_i32 s%d, s%d, %d' % (S_T0, S_T0, KVP_BLK)); a('s_add_u32 s49, s%d, %d' % (S_T0, WS_KVP))
    a('s_lshl_b32 s%d, s%d, 10' % (S_T1, S_WAVE)); a('s_add_u32 s50, s%d, s49' % S_T1)
    zown = {10: 3, 12: 4, 13: 0, 14: 1, 15: 2}
    tbl = 0
    for p, a_ in zown.items(): tbl |= (a_ + 1) << (4 * (p - 8))
    a('s_lshl_b32 s62, s%d, 2' % S_WAVE); a('s_lshr_b32 s62, 0x%x, s62' % tbl); a('s_and_b32 s51, s62, 15')
    a('s_sub_u32 s62, s51, 1'); a('s_lshl_b32 s62, s62, 6'); a('s_add_u32 s62, s62, s49'); a('s_add_u32 s62, s62, %d' % (16 * 1024 - 128))
    a('v_mov_b32 v172, 0xffffff00')
    for r in range(4): a('v_bfe_u32 v%d, s92, %d, 8' % (168 + r, 8 * r))
    a('v_mov_b32 v8, 0x3f803f80')
    a('v_lshlrev_b32 v9, 2, v0')

def kv_epilogue2(a, st_flags='', stampf=None):
    lab = a.newlabel('Lkvb'); lab2 = a.newlabel('Lkvc')
    a('s_cmp_eq_u32 s48, 0'); a('s_cbranch_scc0 %s' % lab)
    phi_pk(a, [V_ACC + r for r in range(24)], 104, 56, 58)
    a('s_branch %s' % lab2)
    a.label(lab)
    phi_pk(a, [V_ACC + 24 + r for r in range(16)], 104, 56, 58)
    a.label(lab2)
    if stampf: stampf(a, 2)
    for t in range(5):
        f = 120 + 4 * t
        a('v_cvt_pk_bf16_f32 v%d, v%d, v%d' % (f + 0, acc(t, 0) + 0, acc(t, 0) + 1))
        a('v_cvt_pk_bf16_f32 v%d, v%d, v%d' % (f + 1, acc(t, 0) + 2, acc(t, 0) + 3))
        a('v_cvt_pk_bf16_f32 v%d, v%d, v%d' % (f + 2, acc(t, 1) + 0, acc(t, 1) + 1))
        a('v_cvt_pk_bf16_f32 v%d, v%d, v%d' % (f + 3, acc(t, 1) + 2, acc(t, 1) + 3))
        if t == 2:
            for k in range(4): a('v_cndmask_b32 v%d, v%d, v8, s[60:61]' % (f + k, f + k))
        a('ds_write_b128 v3, %s offset:%d' % (vr(f, 4), t * 1024))
    a('s_waitcnt lgkmcnt(0)')
    if stampf: stampf(a, 3)
    a('s_barrier')
    if stampf: stampf(a, 4)
    lg = LG(a)
    for h in range(2):
        for mw in range(4):
            r0 = 64 + 32 * h + 8 * mw
            lg.issue('ds_read_b128 %s, v%d offset:%d' % (vr(r0, 4), 4 + 2 * h, mw * 10240), [('A', h, mw)])
            lg.issue('ds_read_b128 %s, v%d offset:%d' % (vr(r0 + 4, 4), 5 + 2 * h, mw * 10240), [('B', h, mw)])
    for h in range(2):
        d = 160 + 4 * h
        for mw in range(4):
            r0 = 64 + 32 * h + 8 * mw
            lg.wait([('A', h, mw), ('B', h, mw)])
            a('v_mfma_f32_16x16x32_bf16 %s, %s, %s, %s' % (vr(d, 4), vr(r0, 4), vr(r0 + 4, 4), '0' if mw == 0 else vr(d, 4)))
    for k in range(4): a('v_and_or_b32 v%d, v%d, v172, v%d' % (160 + k, 160 + k, 168 + k))
    a('buffer_store_dwordx4 v[160:163], v2, s[64:67], s50 offen %s' % st_flags)
    for k in range(4): a('v_and_or_b32 v%d, v%d, v172, v%d' % (164 + k, 164 + k, 168 + k))
    a('s_add_u32 s50, s50, 8192')
    a('buffer_store_dwordx4 v[164:167], v2, s[64:67], s50 offen %s' % st_flags)
    lz = a.newlabel('Lkvz')
    a('s_cmp_eq_u32 s51, 0'); a('s_cbranch_scc1 %s' % lz)
    for r in range(4): a('v_mov_b32_dpp v%d, v164 quad_perm:[%d,%d,%d,%d] row_mask:0xf bank_mask:0xf' % (176 + r, r, r, r, r))
    for r in range(4): a('v_and_or_b32 v%d, v%d, v172, v%d' % (176 + r, 176 + r, 168 + r))
    a('s_mov_b32 exec_lo, 0'); a('s_mov_b32 exec_hi, 0x1111')
    a('buffer_store_dwordx4 v[176:179], v9, s[64:67], s62 offen %s' % st_flags)
    a('s_mov_b64 exec, -1')
    a.label(lz)

def q_epilogue(a, st_flags='', ld_flags='', wait_z=None, tagged=False, spin_max=100000, stampf=None):
    a('s_mov_b32 s56, 0x%x' % LOG2E); a('s_mov_b32 s57, 0x%x' % LOG2E); a('s_mov_b32 s58, 0x%x' % EPS6); a('s_mov_b32 s59, 0x%x' % EPS6)
    phi_pk(a, [V_ACC + r for r in range(40)], 104, 56, 58)
    PB = 120
    def pb(mt, j): return PB + (mt * 3 + j) * 4
    for mt in range(2):
        for t in range(5):
            d = pb(mt, t // 2) + 2 * (t % 2)
            a('v_cvt_pk_bf16_f32 v%d, v%d, v%d' % (d, acc(t, mt), acc(t, mt) + 1))
            a('v_cvt_pk_bf16_f32 v%d, v%d, v%d' % (d + 1, acc(t, mt) + 2, acc(t, mt) + 3))
        a('v_mov_b32 v%d, 0' % (pb(mt, 2) + 2)); a('v_mov_b32 v%d, 0' % (pb(mt, 2) + 3))
    Z = 144
    MK = 192
    ZA = 164; DEN = 176; SEL = 184
    a('s_lshr_b32 s%d, s%d, 2' % (S_T0, S_WAVE))
    a('s_lshl_b32 s%d, s%d, 1' % (S_T1, S_CG))
    a('s_add_u32 s%d, s%d, s%d' % (S_T1, S_T1, S_T0))
    a('s_mul_i32 s%d, s%d, %d' % (S_T1, S_T1, 16 * KVP_BLK))
    a('s_add_u32 s48, s%d, %d' % (S_T1, WS_KVP + 16 * 1024))
    a('v_and_b32 v2, 15, v0')
    a('v_lshrrev_b32 v3, 4, v0')
    a('v_mul_u32_u24 v4, %d, v2' % KVP_BLK)
    a('v_lshl_add_u32 v4, v3, 4, v4')
    a('v_and_b32 v5, 3, v2')
    a('v_mul_u32_u24 v5, 18, v5')
    a('v_lshlrev_b32 v6, 2, v3')
    a('v_sub_u32 v5, v6, v5')
    for t in range(5):
        for r in range(4):
            a('v_add_u32 v6, %d, v5' % (16 * t + r))
            a('v_cmp_gt_u32 vcc, 18, v6')
            a('v_cndmask_b32 v%d, 0, 1.0, vcc' % (MK + 4 * t + r))
    a('v_mov_b32 v%d, 0' % (ZA + 10)); a('v_mov_b32 v%d, 0' % (ZA + 11))
    for mt in range(2):
        for k in range(4): a('v_mov_b32 v%d, s58' % (DEN + 4 * mt + k))
    a('s_mov_b64 s[54:55], 0xffff')
    a('s_mov_b32 s56, -1'); a('s_mov_b32 s57, 0')
    a('s_and_b32 s%d, s%d, 3' % (S_T0, S_WAVE)); a('s_lshl_b32 s%d, s%d, 1' % (S_T0, S_T0))
    a('s_lshl_b32 s%d, s%d, 3' % (S_T1, S_RT)); a('s_add_u32 s%d, s%d, s%d' % (S_T0, S_T0, S_T1))
    a('s_mul_i32 s%d, s%d, %d' % (S_T0, S_T0, 18 * 1024)); a('s_add_u32 s%d, s%d, %d' % (S_T0, S_T0, WS_PN))
    a('s_lshr_b32 s%d, s%d, 2' % (S_T1, S_WAVE))
    a('s_lshl_b32 s49, s%d, 2' % S_CG); a('s_lshl_b32 s53, s%d, 1' % S_T1); a('s_add_u32 s49, s49, s53')
    a('s_lshl_b32 s49, s49, 10'); a('s_add_u32 s49, s49, s%d' % S_T0)
    a('s_lshr_b32 s53, s%d, 1' % S_CG); a('s_add_u32 s53, s53, 16'); a('s_lshl_b32 s53, s53, 10'); a('s_add_u32 s53, s53, s%d' % S_T0)
    a('s_and_b32 s52, s%d, 1' % S_CG); a('s_lshl_b32 s52, s52, 3'); a('s_add_u32 s53, s53, s52')
    a('s_lshl_b32 s52, s%d, 9' % S_T1); a('s_add_u32 s53, s53, s52')
    a('v_lshlrev_b32 v2, 4, v0')
    if wait_z: wait_z(a)
    lp = a.newlabel('Lzp'); lo_ = a.newlabel('Lzo')
    if tagged:
        a('s_mov_b32 s69, 0')
        for r in range(4): a('v_bfe_u32 v%d, s92, %d, 8' % (216 + r, 8 * r))
    a.label(lp)
    for t in range(5):
        a('buffer_load_dwordx4 %s, v4, s[64:67], s48 offen offset:%d %s' % (vr(Z + 4 * t, 4), 64 * t, ld_flags))
    if tagged:
        a('s_add_u32 s69, s69, 1')
        for t in range(5):
            a('s_waitcnt vmcnt(%d)' % (4 - t))
            for r in range(4): a('v_xor_b32 v%d, v%d, v%d' % (220 + r, Z + 4 * t + r, 216 + r))
            if t == 0:
                a('v_or3_b32 v224, v220, v221, v222'); a('v_or_b32 v224, v224, v223')
            else:
                a('v_or3_b32 v224, v224, v220, v221'); a('v_or3_b32 v224, v224, v222, v223')
        a('v_and_b32 v224, 0xff, v224')
        a('v_cmp_ne_u32 vcc, 0, v224')
        a('s_cmp_ge_u32 s69, %d' % spin_max); a('s_cbranch_scc1 %s' % lo_)
        a('s_cmp_lg_u64 vcc, 0'); a('s_cbranch_scc1 %s' % lp)
        a.label(lo_)
        if stampf:
            stampf(a, 5); a('s_mov_b32 s85, s69')
    else:
        a('s_waitcnt vmcnt(0)')
    for sh in (8, 4, 2, 1):
        for k in range(20):
            a('v_add_f32_dpp v%d, v%d, v%d row_ror:%d row_mask:0xf bank_mask:0xf' % (Z + k, Z + k, Z + k, sh))
    for k in range(0, 20, 2): a('v_pk_mul_f32 %s, %s, %s' % (vr(Z + k, 2), vr(Z + k, 2), vr(MK + k, 2)))
    for t in range(5):
        d = ZA + 4 * (t // 2) + 2 * (t % 2)
        a('v_cvt_pk_bf16_f32 v%d, v%d, v%d' % (d, Z + 4 * t, Z + 4 * t + 1))
        a('v_cvt_pk_bf16_f32 v%d, v%d, v%d' % (d + 1, Z + 4 * t + 2, Z + 4 * t + 3))
    for j in range(3):
        for mt in range(2):
            a('v_mfma_f32_16x16x32_bf16 %s, %s, %s, %s' % (vr(DEN + 4 * mt, 4), vr(ZA + 4 * j, 4), vr(pb(mt, j), 4), vr(DEN + 4 * mt, 4)))
    if stampf: stampf(a, 6)
    for mt in range(2):
        for k in range(4): a('v_rcp_f32 v%d, v%d' % (DEN + 4 * mt + k, DEN + 4 * mt + k))
    for mt in range(2):
        rd = DEN + 4 * mt; s_ = SEL + 4 * mt
        a('v_cndmask_b32 v%d, v%d, v%d, s[54:55]' % (s_ + 0, rd + 1, rd + 0))
        a('v_cndmask_b32 v%d, v%d, v%d, s[54:55]' % (s_ + 1, rd + 2, rd + 1))
        a('v_cndmask_b32 v%d, v%d, v%d, s[56:57]' % (s_ + 2, rd + 3, rd + 2))
        a('v_cndmask_b32 v%d, v%d, v%d, s[54:55]' % (s_ + 3, rd + 3, rd + 2))
    for mt in range(2):
        rd = DEN + 4 * mt; s_ = SEL + 4 * mt
        for jj in range(3):
            for t in (2 * jj, 2 * jj + 1):
                if t > 4: continue
                for r in range(4):
                    if t == 0: m = rd + 0
                    elif t == 1: m = s_ + 0 if r < 2 else rd + 1
                    elif t == 2: m = s_ + 1
                    elif t == 3: m = s_ + 2 if r < 2 else s_ + 3
                    else: m = rd + 3
                    a('v_mul_f32 v%d, v%d, v%d' % (acc(t, mt) + r, acc(t, mt) + r, m))
                d = pb(mt, t // 2) + 2 * (t % 2)
                a('v_cvt_pk_bf16_f32 v%d, v%d, v%d' % (d, acc(t, mt), acc(t, mt) + 1))
                a('v_cvt_pk_bf16_f32 v%d, v%d, v%d' % (d + 1, acc(t, mt) + 2, acc(t, mt) + 3))
            if jj < 2:
                a('s_add_u32 s52, s49, %d' % (mt * 18 * 1024 + jj * 1024))
                a('buffer_store_dwordx4 %s, v2, s[64:67], s52 offen %s' % (vr(pb(mt, jj), 4), st_flags))
            else:
                a('s_add_u32 s52, s53, %d' % (mt * 18 * 1024))
                a('s_mov_b64 exec, s[56:57]')
                a('buffer_store_dwordx2 %s, v2, s[64:67], s52 offen %s' % (vr(pb(mt, 2), 2), st_flags))
                a('s_mov_b64 exec, -1')


def q_epilogue2(a, st_flags, ld_flags, publish_pq, wait_z, spin_max, stampf=None):
    a('s_mov_b32 s56, 0x%x' % LOG2E); a('s_mov_b32 s57, 0x%x' % LOG2E); a('s_mov_b32 s58, 0x%x' % EPS6); a('s_mov_b32 s59, 0x%x' % EPS6)
    a('s_and_b32 s%d, s%d, 3' % (S_T0, S_WAVE)); a('s_lshl_b32 s%d, s%d, 1' % (S_T0, S_T0))
    a('s_lshl_b32 s%d, s%d, 3' % (S_T1, S_RT)); a('s_add_u32 s%d, s%d, s%d' % (S_T0, S_T0, S_T1))
    a('s_lshl_b32 s50, s%d, 8' % S_T0)
    a('s_mul_i32 s%d, s%d, %d' % (S_T0, S_T0, 18 * 1024)); a('s_add_u32 s%d, s%d, %d' % (S_T0, S_T0, WS_PN))
    a('s_lshr_b32 s%d, s%d, 2' % (S_T1, S_WAVE))
    a('s_lshl_b32 s49, s%d, 2' % S_CG); a('s_lshl_b32 s53, s%d, 1' % S_T1); a('s_add_u32 s49, s49, s53')
    a('s_lshl_b32 s49, s49, 10'); a('s_add_u32 s49, s49, s%d' % S_T0)
    a('s_lshr_b32 s53, s%d, 1' % S_CG); a('s_add_u32 s53, s53, 16'); a('s_lshl_b32 s53, s53, 10'); a('s_add_u32 s53, s53, s%d' % S_T0)
    a('s_and_b32 s52, s%d, 1' % S_CG); a('s_lshl_b32 s52, s52, 3'); a('s_add_u32 s53, s53, s52')
    a('s_lshl_b32 s52, s%d, 9' % S_T1); a('s_add_u32 s53, s53, s52')
    a('s_lshl_b32 s52, s%d, 1' % S_CG); a('s_add_u32 s52, s52, s%d' % S_T1)
    a('s_lshl_b32 s51, s52, 15'); a('s_add_u32 s50, s50, s51'); a('s_add_u32 s50, s50, %d' % WS_RD)
    a('s_mul_i32 s52, s52, %d' % (16 * KVP_BLK)); a('s_add_u32 s48, s52, %d' % (WS_KVP + 16 * 1024))
    a('s_mov_b32 s54, -1'); a('s_mov_b32 s55, 0')
    a('v_lshlrev_b32 v2, 4, v0')
    PB = 120
    def pb(mt, j): return PB + (mt * 3 + j) * 4
    for mt in range(2):
        phi_pk(a, [acc(t, mt) + r for t in range(5) for r in range(4)], 104, 56, 58)
        for t in range(5):
            d = pb(mt, t // 2) + 2 * (t % 2)
            a('v_cvt_pk_bf16_f32 v%d, v%d, v%d' % (d, acc(t, mt), acc(t, mt) + 1))
            a('v_cvt_pk_bf16_f32 v%d, v%d, v%d' % (d + 1, acc(t, mt) + 2, acc(t, mt) + 3))
        for jj in range(2):
            a('s_add_u32 s52, s49, %d' % (mt * 18 * 1024 + jj * 1024))
            a('buffer_store_dwordx4 %s, v2, s[64:67], s52 offen %s' % (vr(pb(mt, jj), 4), st_flags))
        a('s_add_u32 s52, s53, %d' % (mt * 18 * 1024))
        a('s_mov_b64 exec, s[54:55]')
        a('buffer_store_dwordx2 %s, v2, s[64:67], s52 offen %s' % (vr(pb(mt, 2), 2), st_flags))
        a('s_mov_b64 exec, -1')
        a('v_mov_b32 v%d, 0' % (pb(mt, 2) + 2)); a('v_mov_b32 v%d, 0' % (pb(mt, 2) + 3))
    Z = 144; MK = 192; ZA = 164; DEN = 176
    a('v_and_b32 v2, 15, v0')
    a('v_lshrrev_b32 v3, 4, v0')
    a('v_mul_u32_u24 v4, %d, v2' % KVP_BLK)
    a('v_lshl_add_u32 v4, v3, 4, v4')
    a('v_lshlrev_b32 v7, 4, v2')
    a('v_and_b32 v5, 3, v2')
    a('v_mul_u32_u24 v5, 18, v5')
    a('v_lshlrev_b32 v6, 2, v3')
    a('v_sub_u32 v5, v6, v5')
    for t in range(5):
        for r in range(4):
            a('v_add_u32 v6, %d, v5' % (16 * t + r))
            a('v_cmp_gt_u32 vcc, 18, v6')
            a('v_cndmask_b32 v%d, 0, 1.0, vcc' % (MK + 4 * t + r))
    a('v_mov_b32 v%d, 0' % (ZA + 10)); a('v_mov_b32 v%d, 0' % (ZA + 11))
    for mt in range(2):
        for k in range(4): a('v_mov_b32 v%d, s58' % (DEN + 4 * mt + k))
    for r in range(4): a('v_bfe_u32 v%d, s92, %d, 8' % (216 + r, 8 * r))
    a('v_mov_b32 v226, 0xffffff00')
    publish_pq(a)
    wait_z(a)
    lp = a.newlabel('Lzp'); lo_ = a.newlabel('Lzo')
    a('s_mov_b32 s69, 0')
    a.label(lp)
    for t in range(5):
        a('buffer_load_dwordx4 %s, v4, s[64:67], s48 offen offset:%d %s' % (vr(Z + 4 * t, 4), 64 * t, ld_flags))
    a('s_add_u32 s69, s69, 1')
    for t in range(5):
        a('s_waitcnt vmcnt(%d)' % (4 - t))
        for r in range(4): a('v_xor_b32 v%d, v%d, v%d' % (220 + r, Z + 4 * t + r, 216 + r))
        if t == 0:
            a('v_or3_b32 v224, v220, v221, v222'); a('v_or_b32 v224, v224, v223')
        else:
            a('v_or3_b32 v224, v224, v220, v221'); a('v_or3_b32 v224, v224, v222, v223')
    a('v_and_b32 v224, 0xff, v224')
    a('v_cmp_ne_u32 vcc, 0, v224')
    a('s_cmp_ge_u32 s69, %d' % spin_max); a('s_cbranch_scc1 %s' % lo_)
    a('s_cmp_lg_u64 vcc, 0'); a('s_cbranch_scc1 %s' % lp)
    a.label(lo_)
    if stampf: stampf(a, 5)
    for sh in (8, 4, 2, 1):
        for k in range(20):
            a('v_add_f32_dpp v%d, v%d, v%d row_ror:%d row_mask:0xf bank_mask:0xf' % (Z + k, Z + k, Z + k, sh))
    for k in range(0, 20, 2): a('v_pk_mul_f32 %s, %s, %s' % (vr(Z + k, 2), vr(Z + k, 2), vr(MK + k, 2)))
    for t in range(5):
        d = ZA + 4 * (t // 2) + 2 * (t % 2)
        a('v_cvt_pk_bf16_f32 v%d, v%d, v%d' % (d, Z + 4 * t, Z + 4 * t + 1))
        a('v_cvt_pk_bf16_f32 v%d, v%d, v%d' % (d + 1, Z + 4 * t + 2, Z + 4 * t + 3))
    for j in range(3):
        for mt in range(2):
            a('v_mfma_f32_16x16x32_bf16 %s, %s, %s, %s' % (vr(DEN + 4 * mt, 4), vr(ZA + 4 * j, 4), vr(pb(mt, j), 4), vr(DEN + 4 * mt, 4)))
    for mt in range(2):
        for k in range(4): a('v_rcp_f32 v%d, v%d' % (DEN + 4 * mt + k, DEN + 4 * mt + k))
    for mt in range(2):
        for k in range(4): a('v_and_or_b32 v%d, v%d, v226, v%d' % (DEN + 4 * mt + k, DEN + 4 * mt + k, 216 + k))
    a('s_mov_b64 exec, 0xffff')
    for mt in range(2):
        a('s_add_u32 s52, s50, %d' % (mt * 16 * 16))
        a('buffer_store_dwordx4 %s, v7, s[64:67], s52 offen %s' % (vr(DEN + 4 * mt, 4), st_flags))
    a('s_mov_b64 exec, -1')
```

```python
from common import *
S_T0, S_T1, S_T2 = 41, 42, 43
S_TASK = 29

W2_PITCH = 1184
LDS_W2_RED = 0
LDS_W2_AF = 32768
LDS_W2_WO = 34816
LDS_W2 = LDS_W2_WO + 81920
PIDX = {pr: p for p, pr in enumerate(KV_PAIRS)}

def w2_prefetch(a):
    srd(a, 32, P_WO, D * D * 2)
    a('s_cmp_lt_u32 s%d, 32' % S_TASK)
    lm = a.newlabel('Lw2m'); le = a.newlabel('Lw2e')
    a('s_cbranch_scc0 %s' % lm)
    a('s_lshr_b32 s30, s%d, 2' % S_TASK); a('s_and_b32 s31, s%d, 3' % S_TASK)
    a('s_max_u32 s%d, s31, 1' % S_T0); a('s_sub_u32 s%d, s%d, 1' % (S_T0, S_T0)); a('s_lshl_b32 s%d, s%d, 4' % (S_T0, S_T0))
    a('s_mul_i32 s%d, s30, 72' % S_T1); a('s_add_u32 s%d, s%d, s%d' % (S_T0, S_T0, S_T1))
    a('s_mov_b32 s%d, 0' % S_T1)
    a('s_branch %s' % le)
    a.label(lm)
    a('s_sub_u32 s30, s%d, 32' % S_TASK); a('s_lshl_b32 s30, s30, 1'); a('s_mov_b32 s31, 4')
    a('s_mul_i32 s%d, s30, 72' % S_T0); a('s_add_u32 s%d, s%d, 48' % (S_T0, S_T0))
    a('s_mov_b32 s%d, 40' % S_T1)
    a.label(le)
    a('s_lshl_b32 s%d, s%d, 6' % (S_T2, S_WAVE))
    a('s_lshl_b32 s44, s%d, 10' % S_WAVE)
    for k in range(10):
        a('v_add_u32 v2, s%d, v0' % S_T2)
        if k: a('v_add_u32 v2, %d, v2' % (512 * k))
        a('v_mul_u32_u24 v3, 3543, v2')
        a('v_lshrrev_b32 v3, 18, v3')
        a('v_mul_u32_u24 v4, 74, v3')
        a('v_sub_u32 v4, v2, v4')
        a('v_min_u32 v4, 71, v4')
        a('v_cmp_le_u32 vcc, 32, v3')
        a('v_mov_b32 v5, s%d' % S_T1)
        a('v_cndmask_b32 v5, 0, v5, vcc')
        a('v_add3_u32 v3, v3, v5, s%d' % S_T0)
        a('v_mul_u32_u24 v3, 1152, v3')
        a('v_lshl_add_u32 v3, v4, 4, v3')
        a('s_add_u32 m0, s44, %d' % (LDS_W2_WO + k * 8192))
        a('s_nop 0')
        a('buffer_load_dwordx4 v3, s[32:35], 0 offen lds')
for q in range(5120): assert (q * 3543) >> 18 == q // 74, q

def w2_main(a, st_flags='', ld_flags='', wait_kv=None, tagged=False, spin_max=100000, stampf=None):
    end = a.newlabel('Lw2end')
    a('v_lshlrev_b32 v2, 4, v0')
    a('v_and_b32 v6, 15, v0'); a('v_lshrrev_b32 v7, 4, v0')
    a('v_bfe_u32 v14, v0, 2, 2'); a('v_lshl_add_u32 v14, v7, 2, v14'); a('v_mul_u32_u24 v14, %d, v14' % W2_PITCH)
    a('v_and_b32 v9, 3, v0'); a('v_lshl_add_u32 v14, v9, 3, v14')
    a('s_lshl_b32 s%d, s%d, 5' % (S_T0, S_WAVE)); a('s_add_u32 s%d, s%d, %d' % (S_T0, S_T0, LDS_W2_WO)); a('v_add_u32 v14, s%d, v14' % S_T0)
    lm = a.newlabel('Lw2j'); le = a.newlabel('Lw2k')
    a('s_cmp_lt_u32 s31, 4'); a('s_cbranch_scc0 %s' % lm)
    a('s_lshl_b32 s%d, s30, 1' % S_T0); a('s_lshr_b32 s%d, s31, 1' % S_T1); a('s_add_u32 s%d, s%d, s%d' % (S_T0, S_T0, S_T1)); a('s_and_b32 s%d, s31, 1' % S_T1)
    a('s_branch %s' % le)
    a.label(lm)
    a('s_lshr_b32 s%d, s30, 2' % S_T0); a('s_add_u32 s%d, s%d, 16' % (S_T0, S_T0)); a('s_lshr_b32 s%d, s30, 1' % S_T1); a('s_and_b32 s%d, s%d, 1' % (S_T1, S_T1))
    a.label(le)
    a('s_lshl_b32 s%d, s%d, 10' % (S_T0, S_T0)); a('s_lshl_b32 s%d, s%d, 3' % (S_T1, S_T1)); a('s_add_u32 s%d, s%d, s%d' % (S_T0, S_T0, S_T1))
    a('s_mul_i32 s%d, s%d, %d' % (S_T1, S_WAVE, 18 * 1024)); a('s_add_u32 s%d, s%d, s%d' % (S_T0, S_T0, S_T1)); a('s_add_u32 s46, s%d, %d' % (S_T0, WS_W2T))
    a('s_lshl_b32 s%d, s30, 4' % S_T0); a('s_lshl_b32 s%d, s%d, 1' % (S_T1, S_WAVE)); a('s_add_u32 s%d, s%d, s%d' % (S_T0, S_T0, S_T1))
    a('s_mul_i32 s%d, s%d, %d' % (S_T0, S_T0, KVP_BLK)); a('s_add_u32 s47, s%d, %d' % (S_T0, WS_KVP))
    a('s_lshl_b32 s%d, s%d, 12' % (S_T0, S_WAVE)); a('v_add_u32 v9, s%d, v2' % S_T0)
    a('s_lshl_b32 s%d, s%d, 10' % (S_T0, S_WAVE)); a('v_add_u32 v10, s%d, v2' % S_T0)
    a('s_lshr_b32 s%d, s%d, 1' % (S_T0, S_WAVE)); a('s_lshl_b32 s%d, s%d, 10' % (S_T0, S_T0))
    a('s_and_b32 s%d, s%d, 1' % (S_T1, S_WAVE)); a('s_lshl_b32 s%d, s%d, 3' % (S_T1, S_T1)); a('s_add_u32 s%d, s%d, s%d' % (S_T0, S_T0, S_T1))
    a('v_add_u32 v11, s%d, v2' % S_T0)
    for var in range(5):
        nxt = a.newlabel('Lw2v')
        a('s_cmp_eq_u32 s31, %d' % var); a('s_cbranch_scc0 %s' % nxt)
        if var == 0: tiles = [(0, 0, 0), (0, 1, 0)]
        elif var == 1: tiles = [(0, 0, 1), (0, 1, 1), (0, 2, 1)]
        elif var == 2: tiles = [(0, 1, 2), (0, 2, 2), (0, 3, 2)]
        elif var == 3: tiles = [(0, 2, 3), (0, 3, 3), (0, 4, 3)]
        else: tiles = [(0, 3, 4), (0, 4, 4), (1, 3, 4), (1, 4, 4)]
        if var == 4:
            a('v_cmp_le_u32 vcc, 8, v6')
            a('v_subrev_u32 v8, 128, v2')
            a('v_cndmask_b32 v8, v2, v8, vcc')
        a_ = tiles[0][2]
        if var == 4:
            a('s_cmp_ge_u32 s%d, 2' % S_WAVE); a('s_cselect_b32 s%d, 8, 0' % S_T1)
            a('v_subrev_u32 v12, s%d, v6' % S_T1)
            a('v_cmp_gt_u32 vcc, 8, v12')
            a('v_mov_b32 v13, 54'); a('v_mov_b32 v15, 0x10000')
            a('v_cndmask_b32 v13, v15, v13, vcc')
        else:
            a('v_add_u32 v12, %d, v6' % (16 * a_))
            a('v_mul_u32_u24 v13, 3641, v12'); a('v_lshrrev_b32 v13, 16, v13'); a('v_mul_u32_u24 v13, 18, v13')
        bl = [t_[1] for t_ in tiles] + [0] * (4 - len(tiles))
        a('s_mov_b32 s%d, 0x%x' % (S_T1, sum(b << (8 * k) for k, b in enumerate(bl))))
        a('s_and_b32 s%d, s%d, 3' % (S_T2, S_WAVE)); a('s_lshl_b32 s%d, s%d, 3' % (S_T2, S_T2)); a('s_lshr_b32 s%d, s%d, s%d' % (S_T1, S_T1, S_T2)); a('s_and_b32 s%d, s%d, 0xff' % (S_T1, S_T1))
        a('s_lshl_b32 s%d, s%d, 4' % (S_T1, S_T1))
        a('v_lshlrev_b32 v12, 2, v7'); a('v_add_u32 v12, s%d, v12' % S_T1); a('v_sub_u32 v12, v12, v13')
        for r in range(4):
            a('v_add_u32 v13, %d, v12' % r)
            a('v_cmp_gt_u32 vcc, 18, v13')
            a('v_cndmask_b32 v%d, 0, 1.0, vcc' % (16 + r))
        a('s_cmp_lt_u32 s%d, %d' % (S_WAVE, len(tiles))); a('s_cselect_b32 s%d, 1.0, 0' % S_T1)
        for r in range(4): a('v_mul_f32 v%d, s%d, v%d' % (16 + r, S_T1, 16 + r))
        if wait_kv: wait_kv(a)
        lp = a.newlabel('Lwp'); lo_ = a.newlabel('Lwo')
        if tagged:
            a('s_mov_b32 s69, 0')
            for r in range(4): a('v_bfe_u32 v%d, s92, %d, 8' % (100 + r, 8 * r))
        a.label(lp)
        for q, (dh, b, a_) in enumerate(tiles):
            for rr in range(2):
                off = dh * 16 * KVP_BLK + rr * KVP_BLK + PIDX[(b, a_)] * 1024
                a('s_add_u32 s%d, s47, %d' % (S_T1, off))
                va = 8 if (var == 4 and dh == 1) else 2
                a('buffer_load_dwordx4 %s, v%d, s[64:67], s%d offen %s' % (vr(64 + 8 * q + 4 * rr, 4), va, S_T1, ld_flags))
        if tagged:
            a('s_add_u32 s69, s69, 1')
            n = 2 * len(tiles)
            for c in range(n):
                a('s_waitcnt vmcnt(%d)' % (n - 1 - c))
                for r in range(4): a('v_xor_b32 v%d, v%d, v%d' % (104 + r, 64 + 4 * c + r, 100 + r))
                if c == 0:
                    a('v_or3_b32 v108, v104, v105, v106'); a('v_or_b32 v108, v108, v107')
                else:
                    a('v_or3_b32 v108, v108, v104, v105'); a('v_or3_b32 v108, v108, v106, v107')
            a('v_and_b32 v108, 0xff, v108')
            a('v_cmp_ne_u32 vcc, 0, v108')
            a('s_cmp_ge_u32 s69, %d' % spin_max); a('s_cbranch_scc1 %s' % lo_)
            a('s_cmp_lg_u64 vcc, 0'); a('s_cbranch_scc1 %s' % lp)
            a.label(lo_)
            if stampf:
                stampf(a, 4); a('s_mov_b32 s85, s69')
        for q in range(len(tiles)):
            if not tagged: a('s_waitcnt vmcnt(%d)' % (2 * (len(tiles) - 1 - q)))
            for k in range(0, 4, 2): a('v_pk_add_f32 %s, %s, %s' % (vr(64 + 8 * q + k, 2), vr(64 + 8 * q + k, 2), vr(64 + 8 * q + 4 + k, 2)))
            a('ds_write_b128 v9, %s offset:%d' % (vr(64 + 8 * q, 4), LDS_W2_RED + q * 1024))
        a('s_branch %s' % end)
        a.label(nxt)
    a.label(end)
    a('s_waitcnt lgkmcnt(0)')
    a('s_barrier')
    if stampf: stampf(a, 5)
    skip = a.newlabel('Lw2skip')
    a('s_cmp_ge_u32 s%d, 4' % S_WAVE); a('s_cbranch_scc1 %s' % skip)
    for w in range(8): a('ds_read_b128 %s, v10 offset:%d' % (vr(64 + 4 * w, 4), LDS_W2_RED + w * 4096))
    for w in range(1, 8):
        a('s_waitcnt lgkmcnt(%d)' % (7 - w))
        for k in range(0, 4, 2): a('v_pk_add_f32 %s, %s, %s' % (vr(64 + k, 2), vr(64 + k, 2), vr(64 + 4 * w + k, 2)))
    for r in range(4):
        a('v_cmp_neq_f32 vcc, 0, v%d' % (16 + r))
        a('v_cndmask_b32 v%d, 0, v%d, vcc' % (64 + r, 64 + r))
    a('v_cvt_pk_bf16_f32 v68, v64, v65'); a('v_cvt_pk_bf16_f32 v69, v66, v67')
    a('ds_write_b64 v11, v[68:69] offset:%d' % LDS_W2_AF)
    a.label(skip)
    a('s_waitcnt vmcnt(0) lgkmcnt(0)')
    a('s_barrier')
    if stampf: stampf(a, 7)
    a('ds_read_b128 v[64:67], v2 offset:%d' % LDS_W2_AF)
    a('ds_read_b128 v[68:71], v2 offset:%d' % (LDS_W2_AF + 1024))
    for k in range(5):
        for u in range(2):
            for h in range(2):
                a('ds_read_b64_tr_b16 %s, v14 offset:%d' % (vr(72 + 8 * k + 4 * u + 2 * h, 2), (u * 32 + h * 16) * W2_PITCH + 256 * k))
    for k in range(5):
        if k == 4:
            skip = a.newlabel('Lw2t'); a('s_cmp_ge_u32 s%d, 4' % S_WAVE); a('s_cbranch_scc1 %s' % skip)
        a('s_waitcnt lgkmcnt(%d)' % min(15, 4 * (4 - k) + 2))
        a('v_mfma_f32_16x16x32_bf16 %s, v[64:67], %s, 0' % (vr(120 + 4 * k, 4), vr(72 + 8 * k, 4)))
        a('s_waitcnt lgkmcnt(%d)' % min(15, 4 * (4 - k)))
        a('v_mfma_f32_16x16x32_bf16 %s, v[68:71], %s, %s' % (vr(120 + 4 * k, 4), vr(76 + 8 * k, 4), vr(120 + 4 * k, 4)))
        if k == 4: a.label(skip)
    for k in range(5):
        if k == 4:
            skip = a.newlabel('Lw2s'); a('s_cmp_ge_u32 s%d, 4' % S_WAVE); a('s_cbranch_scc1 %s' % skip)
        a('v_cvt_pk_bf16_f32 v%d, v%d, v%d' % (140 + 2 * k, 120 + 4 * k, 121 + 4 * k)); a('v_cvt_pk_bf16_f32 v%d, v%d, v%d' % (141 + 2 * k, 122 + 4 * k, 123 + 4 * k))
        a('s_add_u32 s%d, s46, %d' % (S_T1, k * 8 * 18 * 1024))
        a('buffer_store_dwordx2 %s, v2, s[64:67], s%d offen %s' % (vr(140 + 2 * k, 2), S_T1, st_flags))
        if k == 4: a.label(skip)

OUT_STG = 30720
OUT_NSLOT = 5
OUT_DUM = OUT_STG * OUT_NSLOT
LDS_OUT = OUT_DUM + 1024
def out_setup(a):
    for k in range(4):
        a('s_add_u32 s%d, s%d, %d' % (S_T0, S_WAVE, 8 * k))
        a('s_min_u32 s%d, s%d, 29' % (S_T0, S_T0))
        a('s_mul_i32 s%d, s%d, 6554' % (S_T1, S_T0)); a('s_lshr_b32 s%d, s%d, 16' % (S_T1, S_T1))
        a('s_mul_i32 s%d, s%d, 10' % (S_T2, S_T1)); a('s_sub_u32 s%d, s%d, s%d' % (S_T2, S_T0, S_T2))
        a('s_lshl_b32 s44, s29, 2'); a('s_add_u32 s44, s44, s%d' % S_T2); a('s_mul_i32 s44, s44, 18432'); a('s_add_u32 s44, s44, %d' % WS_PN)
        a('s_mul_i32 s45, s30, 6'); a('s_add_u32 s45, s45, s%d' % S_T2); a('s_mul_i32 s45, s45, 18432'); a('s_add_u32 s45, s45, %d' % (WS_W2T - 4 * 18432))
        a('s_cmp_lt_u32 s%d, 4' % S_T2); a('s_cselect_b32 s44, s44, s45')
        a('s_lshl_b32 s%d, s%d, 10' % (S_T1, S_T1)); a('s_add_u32 s%d, s44, s%d' % (60 + k, S_T1))
    a('v_lshlrev_b32 v2, 4, v0')
    a('s_lshl_b32 s44, s%d, 10' % S_WAVE)
    a('s_cmp_ge_u32 s%d, 6' % S_WAVE); a('s_cselect_b32 s45, 1, 0')
    a('s_and_b32 s%d, s%d, 3' % (S_T0, S_WAVE)); a('s_lshl_b32 s%d, s%d, 10' % (S_T0, S_T0)); a('v_add_u32 v10, s%d, v2' % S_T0)
    a('s_lshr_b32 s%d, s%d, 2' % (S_T0, S_WAVE)); a('s_mul_i32 s%d, s%d, 3072' % (S_T0, S_T0)); a('s_add_u32 s%d, s%d, 4096' % (S_T0, S_T0)); a('v_add_u32 v11, s%d, v2' % S_T0)
    srd(a, 52, P_OUT, S * 1152 * 2)
    a('v_and_b32 v3, 15, v0'); a('v_lshrrev_b32 v4, 4, v0')
    a('s_and_b32 s%d, s%d, 3' % (S_T0, S_WAVE)); a('s_lshl_b32 s%d, s%d, 4' % (S_T0, S_T0)); a('v_add_u32 v3, s%d, v3' % S_T0)
    a('v_mul_u32_u24 v3, %d, v3' % OUT_PITCH); a('v_lshl_add_u32 v3, v4, 3, v3')
    a('s_lshr_b32 s%d, s%d, 2' % (S_T0, S_WAVE)); a('s_mul_i32 s%d, s%d, 96' % (S_T0, S_T0)); a('v_add_u32 v14, s%d, v3' % S_T0)
    for k in range(2):
        a('s_lshl_b32 s%d, s%d, 6' % (S_T0, S_WAVE)); a('s_add_u32 s%d, s%d, %d' % (S_T0, S_T0, 512 * k))
        a('v_add_u32 v5, s%d, v0' % S_T0)
        a('v_mul_u32_u24 v6, 5462, v5'); a('v_lshrrev_b32 v6, 16, v6')
        a('v_mul_u32_u24 v7, 12, v6'); a('v_sub_u32 v7, v5, v7')
        a('v_mul_u32_u24 v8, %d, v6' % OUT_PITCH); a('v_lshl_add_u32 v%d, v7, 4, v8' % (16 + 2 * k))
        a('s_lshl_b32 s%d, s29, 6' % S_T0); a('v_add_u32 v6, s%d, v6' % S_T0)
        a('v_mul_u32_u24 v6, 2304, v6'); a('v_lshl_add_u32 v%d, v7, 4, v6' % (17 + 2 * k))
    a('s_mul_i32 s46, s30, 192')

def out_dma(a, st, ld_flags):
    slot = (st % OUT_NSLOT) * OUT_STG
    for k in range(4):
        if k < 3:
            a('s_add_u32 m0, s44, %d' % (slot + k * 8192))
        else:
            a('s_add_u32 m0, s44, %d' % (slot + k * 8192))
            a('s_cmp_eq_u32 s45, 0'); a('s_cselect_b32 m0, m0, %d' % OUT_DUM)
        a('s_add_u32 s%d, s%d, %d' % (S_T0, 60 + k, st * 3072))
        a('buffer_load_dwordx4 v2, s[64:67], s%d offen %s lds' % (S_T0, ld_flags))

def out_main(a, ld_flags='', wait_in=None):
    NST = 6
    ACC = 64
    if wait_in: wait_in(a)
    for st in range(5): out_dma(a, st, ld_flags)
    issued = 5
    lg = LG(a)
    F = 80
    for st in range(NST):
        a('s_waitcnt vmcnt(%d)' % (4 * (issued - 1 - st)))
        a('s_barrier')
        if st == 1: out_dma(a, 5, ld_flags); issued = 6
        slot = (st % OUT_NSLOT) * OUT_STG
        a('v_add_u32 v12, %d, v10' % slot); a('v_add_u32 v13, %d, v11' % slot)
        def rd(kk):
            s_ = F + 16 * (kk % 2)
            lg.issue('ds_read_b128 %s, v12 offset:%d' % (vr(s_, 4), kk * 10240), [('b', st, kk)])
            for t in range(3): lg.issue('ds_read_b128 %s, v13 offset:%d' % (vr(s_ + 4 + 4 * t, 4), kk * 10240 + t * 1024), [('a', st, kk, t)])
        rd(0); rd(1)
        for kk in range(3):
            s_ = F + 16 * (kk % 2)
            for t in range(3):
                lg.wait([('b', st, kk), ('a', st, kk, t)])
                a('v_mfma_f32_16x16x32_bf16 %s, %s, %s, %s' % (vr(ACC + 4 * t, 4), vr(s_ + 4 + 4 * t, 4), vr(s_, 4), vr(ACC + 4 * t, 4) if (st or kk) else '0'))
            if kk == 0: rd(2)
        lg.waitall()

OUT_PITCH = 208
def out_epilogue(a, st_flags=''):
    ACC = 64
    for t in range(3):
        a('v_cvt_pk_bf16_f32 v%d, v%d, v%d' % (80 + 2 * t, ACC + 4 * t, ACC + 4 * t + 1))
        a('v_cvt_pk_bf16_f32 v%d, v%d, v%d' % (81 + 2 * t, ACC + 4 * t + 2, ACC + 4 * t + 3))
    for t in range(3): a('ds_write_b64 v14, %s offset:%d' % (vr(80 + 2 * t, 2), 2 * OUT_STG + 32 * t))
    a('s_waitcnt lgkmcnt(0)')
    a('s_barrier')
    a('ds_read_b128 v[88:91], v16 offset:%d' % (2 * OUT_STG))
    skip = a.newlabel('Lout'); a('s_cmp_ge_u32 s%d, 4' % S_WAVE); a('s_cbranch_scc1 %s' % skip)
    a('ds_read_b128 v[92:95], v18 offset:%d' % (2 * OUT_STG))
    a('s_waitcnt lgkmcnt(0)')
    a('buffer_store_dwordx4 v[92:95], v19, s[52:55], s46 offen %s' % st_flags)
    a.label(skip)
    a('s_waitcnt lgkmcnt(0)')
    a('buffer_store_dwordx4 v[88:91], v17, s[52:55], s46 offen %s' % st_flags)
for q in range(768): assert (q * 5462) >> 16 == q // 12
for f in range(30): assert (f * 6554) >> 16 == f // 10


O2_P = 64
O2_R = 136
O2_ACC = 24
O2_A = 40
O2_S = 168
LDS_OUT2 = 108 * 1024 + 4 * 1024
def out2_setup(a):
    a('v_lshlrev_b32 v2, 4, v0')
    a('s_lshl_b32 s44, s%d, 10' % S_WAVE)
    a('s_mul_i32 s45, s29, %d' % (4 * 18432)); a('s_add_u32 s45, s45, s44'); a('s_add_u32 s45, s45, %d' % WS_PN)
    a('s_and_b32 s%d, s%d, 3' % (S_T0, S_WAVE)); a('s_mul_i32 s%d, s%d, 18432' % (S_T1, S_T0)); a('v_add_u32 v10, s%d, v2' % S_T1)
    a('s_lshl_b32 s%d, s29, 6' % S_T1); a('s_lshl_b32 s%d, s%d, 4' % (S_T0, S_T0)); a('s_add_u32 s%d, s%d, s%d' % (S_T0, S_T0, S_T1))
    a('v_and_b32 v3, 15, v0'); a('v_add_u32 v3, s%d, v3' % S_T0); a('v_lshlrev_b32 v12, 4, v3'); a('v_add_u32 v12, %d, v12' % WS_RD)
    a('s_mul_i32 s46, s30, %d' % (6 * 18432)); a('s_add_u32 s46, s46, %d' % WS_W2T)
    a('s_lshr_b32 s%d, s%d, 2' % (S_T0, S_WAVE)); a('s_mul_i32 s%d, s%d, 3072' % (S_T0, S_T0)); a('v_add_u32 v11, s%d, v2' % S_T0)
    srd(a, 52, P_OUT, S * 1152 * 2)
    a('v_and_b32 v3, 15, v0'); a('v_lshrrev_b32 v4, 4, v0')
    a('s_and_b32 s%d, s%d, 3' % (S_T0, S_WAVE)); a('s_lshl_b32 s%d, s%d, 4' % (S_T0, S_T0)); a('v_add_u32 v3, s%d, v3' % S_T0)
    a('v_mul_u32_u24 v3, %d, v3' % OUT_PITCH); a('v_lshl_add_u32 v3, v4, 3, v3')
    a('s_lshr_b32 s%d, s%d, 2' % (S_T0, S_WAVE)); a('s_mul_i32 s%d, s%d, 96' % (S_T0, S_T0)); a('v_add_u32 v14, s%d, v3' % S_T0)
    for k in range(2):
        a('s_lshl_b32 s%d, s%d, 6' % (S_T0, S_WAVE)); a('s_add_u32 s%d, s%d, %d' % (S_T0, S_T0, 512 * k))
        a('v_add_u32 v5, s%d, v0' % S_T0)
        a('v_mul_u32_u24 v6, 5462, v5'); a('v_lshrrev_b32 v6, 16, v6')
        a('v_mul_u32_u24 v7, 12, v6'); a('v_sub_u32 v7, v5, v7')
        a('v_mul_u32_u24 v8, %d, v6' % OUT_PITCH); a('v_lshl_add_u32 v%d, v7, 4, v8' % (16 + 2 * k))
        a('s_lshl_b32 s%d, s29, 6' % S_T0); a('v_add_u32 v6, s%d, v6' % S_T0)
        a('v_mul_u32_u24 v6, 2304, v6'); a('v_lshl_add_u32 v%d, v7, 4, v6' % (17 + 2 * k))
    a('s_mul_i32 s47, s30, 192')
    for r in range(4): a('v_bfe_u32 v%d, s92, %d, 8' % (20 + r, 8 * r))

def out2_w2_dma(a, ld_flags):
    for k in range(14):
        a('s_add_u32 s%d, s%d, %d' % (S_T0, S_WAVE, 8 * k))
        if k == 13: a('s_min_u32 s%d, s%d, 107' % (S_T0, S_T0))
        a('s_mul_i32 s%d, s%d, 10923' % (S_T1, S_T0)); a('s_lshr_b32 s%d, s%d, 16' % (S_T1, S_T1))
        a('s_mul_i32 s%d, s%d, 6' % (S_T2, S_T1)); a('s_sub_u32 s%d, s%d, s%d' % (S_T2, S_T0, S_T2))
        a('s_mul_i32 s%d, s%d, 18' % (S_T2, S_T2)); a('s_add_u32 s%d, s%d, s%d' % (S_T2, S_T2, S_T1)); a('s_lshl_b32 s%d, s%d, 10' % (S_T2, S_T2))
        a('s_add_u32 s%d, s%d, s46' % (S_T2, S_T2))
        a('s_add_u32 m0, s44, %d' % (k * 8192))
        a('s_nop 0')
        a('buffer_load_dwordx4 v2, s[64:67], s%d offen %s lds' % (S_T2, ld_flags))
for f in range(112): assert (f * 10923) >> 16 == f // 6

def out2_pre(a, ld_flags, wait_pq, spin_max, stampf=None):
    wait_pq(a)
    for k in range(9):
        a('s_add_u32 m0, s44, %d' % (k * 8192))
        a('s_add_u32 s%d, s45, %d' % (S_T0, k * 8192))
        a('buffer_load_dwordx4 v2, s[64:67], s%d offen %s lds' % (S_T0, ld_flags))
    lp = a.newlabel('Lrp'); lo_ = a.newlabel('Lro')
    a('s_mov_b32 s69, 0')
    a.label(lp)
    for h in range(8):
        a('s_mov_b32 s%d, %d' % (S_T0, h * 32768))
        a('buffer_load_dwordx4 %s, v12, s[64:67], s%d offen %s' % (vr(O2_R + 4 * h, 4), S_T0, ld_flags))
    a('s_add_u32 s69, s69, 1')
    for h in range(8):
        a('s_waitcnt vmcnt(%d)' % (7 - h))
        for r in range(4): a('v_xor_b32 v%d, v%d, v%d' % (4 + r, O2_R + 4 * h + r, 20 + r))
        if h == 0:
            a('v_or3_b32 v8, v4, v5, v6'); a('v_or_b32 v8, v8, v7')
        else:
            a('v_or3_b32 v8, v8, v4, v5'); a('v_or3_b32 v8, v8, v6, v7')
    a('v_and_b32 v8, 0xff, v8')
    a('v_cmp_ne_u32 vcc, 0, v8')
    a('s_cmp_ge_u32 s69, %d' % spin_max); a('s_cbranch_scc1 %s' % lo_)
    a('s_cmp_lg_u64 vcc, 0'); a('s_cbranch_scc1 %s' % lp)
    a.label(lo_)
    if stampf: stampf(a, 5)
    a('s_barrier')
    for j in range(18): a('ds_read_b128 %s, v10 offset:%d' % (vr(O2_P + 4 * j, 4), j * 1024))
    a('s_mov_b64 s[48:49], 0xffff'); a('s_mov_b32 s50, -1'); a('s_mov_b32 s51, 0')
    def R(h): return O2_R + h
    sc = {}
    n = O2_S
    for hg in range(8):
        h0, h1, h2, h3 = (R(4 * hg + i) for i in range(4))
        a('v_cndmask_b32 v%d, v%d, v%d, s[48:49]' % (n + 0, h1, h0))
        a('v_cndmask_b32 v%d, v%d, v%d, s[48:49]' % (n + 1, h2, h1))
        a('v_cndmask_b32 v%d, v%d, v%d, s[50:51]' % (n + 2, h3, h2))
        a('v_cndmask_b32 v%d, v%d, v%d, s[48:49]' % (n + 3, h3, h2))
        sc[(hg, 0)] = [h0, h0, n + 0, h1]
        sc[(hg, 1)] = [n + 1, n + 1, n + 2, n + 3]
        n += 4
    mg = {}
    for G in range(4):
        a('v_cndmask_b32 v%d, v%d, v%d, s[50:51]' % (n, R(4 * (2 * G + 1) + 3), R(4 * (2 * G) + 3)))
        mg[G] = n; n += 1
    assert n <= 204
    a('s_waitcnt lgkmcnt(0)')
    a('s_barrier')
    return sc, mg

def out2_scale(a, sc, mg):
    a('s_mov_b32 s58, 0xffff0000')
    T = 206
    for j in range(18):
        if j < 16:
            G = j >> 2; nw = (j >> 1) & 1; s4 = sc[(2 * G + nw, j & 1)]
        else:
            G0 = 2 * (j - 16); s4 = [mg[G0], mg[G0], mg[G0 + 1], mg[G0 + 1]]
        for d in range(4):
            p = O2_P + 4 * j + d; t = T + 2 * d
            a('v_lshlrev_b32 v%d, 16, v%d' % (t, p)); a('v_and_b32 v%d, s58, v%d' % (t + 1, p))
        for d in range(4):
            t = T + 2 * d; sreg = s4[d]
            if sreg % 2 == 0: a('v_pk_mul_f32 %s, %s, %s op_sel_hi:[1,0]' % (vr(t, 2), vr(t, 2), vr(sreg, 2)))
            else: a('v_pk_mul_f32 %s, %s, %s op_sel:[0,1] op_sel_hi:[1,1]' % (vr(t, 2), vr(t, 2), vr(sreg - 1, 2)))
        for d in range(4):
            p = O2_P + 4 * j + d; t = T + 2 * d
            a('v_cvt_pk_bf16_f32 v%d, v%d, v%d' % (p, t, t + 1))

def out2_main(a):
    lg = LG(a)
    for c in range(3):
        a('s_waitcnt vmcnt(%d)' % (9, 5, 0)[c])
        a('s_barrier')
        def rd(j):
            s_ = O2_A + 12 * (j % 2)
            for t in range(3): lg.issue('ds_read_b128 %s, v%d offset:%d' % (vr(s_ + 4 * t, 4), 11 if j < 9 else 9, (j if j < 9 else j - 9) * 6144 + t * 1024), [('a', j, t)])
        if c == 0: a('v_add_u32 v9, %d, v11' % (9 * 6144))
        j0 = 6 * c
        rd(j0)
        for j in range(j0, j0 + 6):
            if j + 1 < j0 + 6: rd(j + 1)
            s_ = O2_A + 12 * (j % 2)
            for t in range(3):
                lg.wait([('a', j, t)])
                a('v_mfma_f32_16x16x32_bf16 %s, %s, %s, %s' % (vr(O2_ACC + 4 * t, 4), vr(s_ + 4 * t, 4), vr(O2_P + 4 * j, 4), vr(O2_ACC + 4 * t, 4) if j else '0'))

O2_STG = 110592 + 1024
def out2_epilogue(a, st_flags=''):
    for t in range(3):
        a('v_cvt_pk_bf16_f32 v%d, v%d, v%d' % (80 + 2 * t, O2_ACC + 4 * t, O2_ACC + 4 * t + 1))
        a('v_cvt_pk_bf16_f32 v%d, v%d, v%d' % (81 + 2 * t, O2_ACC + 4 * t + 2, O2_ACC + 4 * t + 3))
    for r in (14, 16, 18): a('v_add_u32 v%d, %d, v%d' % (r, O2_STG + 4096, r))
    for t in range(3): a('ds_write_b64 v14, %s offset:%d' % (vr(80 + 2 * t, 2), 32 * t))
    a('s_waitcnt lgkmcnt(0)')
    a('s_barrier')
    a('ds_read_b128 v[88:91], v16')
    skip = a.newlabel('Lout'); a('s_cmp_ge_u32 s%d, 4' % S_WAVE); a('s_cbranch_scc1 %s' % skip)
    a('ds_read_b128 v[92:95], v18')
    a('s_waitcnt lgkmcnt(0)')
    a('buffer_store_dwordx4 v[92:95], v19, s[52:55], s47 offen %s' % st_flags)
    a.label(skip)
    a('s_waitcnt lgkmcnt(0)')
    a('buffer_store_dwordx4 v[88:91], v17, s[52:55], s47 offen %s' % st_flags)
LDS_OUT2 = O2_STG + 4096 + 64 * OUT_PITCH
```

```python
import sys
from common import *
import common, gemm1, w2out, bpart

S_NONCE = 70
S_X, S_SLOT = 71, 72
F_U, F_KV, F_PN, F_W2, F_Y = 0, 64, 192, 256, 320
ST = 'sc1'; LD = 'sc1'
SPIN_MAX = 100000
PREFETCH = True
ROT = True
OUTV2 = False
OUTST = ''
MAINONLY = NOQ = NOB = False
IDLEPF = False
ROTMODE = 'full'
CODE_END = 'Lcode_end'
SRD_F = 64

def nonce_publish(a):
    l = a.newlabel('Lnpub')
    a('s_or_b32 s68, s2, s%d' % S_WAVE); a('s_cmp_eq_u32 s68, 0'); a('s_cbranch_scc0 %s' % l)
    srd(a, 60, P_DBG, 256)
    a('s_memrealtime s[68:69]'); a('v_mov_b32 v240, 0'); a('s_waitcnt lgkmcnt(0)')
    a('s_or_b32 s68, s68, 1')
    a('v_mov_b32 v241, s68')
    a('s_mov_b64 s[68:69], exec'); a('s_mov_b64 exec, 1')
    a('buffer_store_dword v241, v240, s[60:63], 0 offen sc1')
    a('s_mov_b64 exec, s[68:69]')
    a.label(l)

def nonce_issue(a):
    l = a.newlabel('Lni')
    a('s_cmp_eq_u32 s%d, 0' % S_WAVE); a('s_cbranch_scc0 %s' % l)
    srd(a, 60, P_DBG, 256)
    a('v_mov_b32 v240, 0')
    a('buffer_load_dword v239, v240, s[60:63], 0 offen sc1')
    a.label(l)

def nonce_finish(a):
    l = a.newlabel('Lnf'); p = a.newlabel('Lnq')
    a('s_cmp_eq_u32 s%d, 0' % S_WAVE); a('s_cbranch_scc0 %s' % l)
    srd(a, 60, P_DBG, 256)
    a('s_mov_b32 s69, 0'); a('v_mov_b32 v240, 0')
    a('s_waitcnt vmcnt(0)')
    a('v_readfirstlane_b32 s%d, v239' % S_NONCE)
    a('s_cmp_lg_u32 s%d, 0' % S_NONCE); a('s_cbranch_scc1 %s' % l)
    a.label(p)
    a('buffer_load_dword v239, v240, s[60:63], 0 offen sc1')
    a('s_add_u32 s69, s69, 1')
    a('s_waitcnt vmcnt(0)')
    a('v_readfirstlane_b32 s%d, v239' % S_NONCE)
    a('s_cmp_ge_u32 s69, %d' % SPIN_MAX); a('s_cbranch_scc1 %s' % l)
    a('s_cmp_eq_u32 s%d, 0' % S_NONCE)
    a('s_cbranch_scc1 %s' % p)
    a.label(l)

def nonce_issue_all(a):
    srd(a, 60, P_DBG, 256)
    a('v_mov_b32 v240, 0')
    a('buffer_load_dword v239, v240, s[60:63], 0 offen sc1')

def nonce_finish_all(a):
    l = a.newlabel('Lnf'); p = a.newlabel('Lnq')
    a('s_waitcnt vmcnt(0)')
    a('v_readfirstlane_b32 s%d, v239' % S_NONCE)
    a('s_cmp_lg_u32 s%d, 0' % S_NONCE); a('s_cbranch_scc1 %s' % l)
    srd(a, 60, P_DBG, 256)
    a('s_mov_b32 s69, 0'); a('v_mov_b32 v240, 0')
    a.label(p)
    a('buffer_load_dword v239, v240, s[60:63], 0 offen sc1')
    a('s_add_u32 s69, s69, 1')
    a('s_waitcnt vmcnt(0)')
    a('v_readfirstlane_b32 s%d, v239' % S_NONCE)
    a('s_cmp_ge_u32 s69, %d' % SPIN_MAX); a('s_cbranch_scc1 %s' % l)
    a('s_cmp_eq_u32 s%d, 0' % S_NONCE)
    a('s_cbranch_scc1 %s' % p)
    a.label(l)

def tag_ready(a):
    l = a.newlabel('Ltr')
    a('v_readfirstlane_b32 s%d, v239' % S_NONCE)
    a('s_cmp_lg_u32 s%d, 0' % S_NONCE); a('s_cbranch_scc1 %s' % l)
    nonce_issue_all(a); nonce_finish_all(a)
    a.label(l)
    a('s_mul_i32 s92, s%d, 0x9E3779B1' % S_NONCE)

def hint(a, idx_sgpr_expr):
    l = a.newlabel('Lhint')
    a('s_cmp_eq_u32 s%d, 0' % S_WAVE); a('s_cbranch_scc0 %s' % l)
    idx_sgpr_expr(a)
    a('s_lshl_b32 s68, s68, 7'); a('s_add_u32 s68, s68, %d' % WS_FLAG)
    a('v_mov_b32 v240, 0'); a('v_mov_b32 v241, s%d' % S_NONCE)
    a('s_mov_b64 exec, 1')
    a('buffer_store_dword v241, v240, s[%d:%d], s68 offen sc1' % (SRD_F, SRD_F + 3))
    a('s_mov_b64 exec, -1')
    a.label(l)

def wave_wait_flags(a, lane_idx):
    l = a.newlabel('Lwf'); p = a.newlabel('Lwp')
    lane_idx(a)
    a('v_lshlrev_b32 v242, 7, v242'); a('v_add_u32 v242, %d, v242' % WS_FLAG)
    a('s_mov_b32 s69, 0')
    a.label(p)
    a('buffer_load_dword v243, v242, s[%d:%d], 0 offen sc1' % (SRD_F, SRD_F + 3))
    a('s_add_u32 s69, s69, 1')
    a('s_waitcnt vmcnt(0)')
    a('v_cmp_ne_u32 vcc, s%d, v243' % S_NONCE)
    a('s_cmp_ge_u32 s69, %d' % SPIN_MAX); a('s_cbranch_scc1 %s' % l)
    a('s_cmp_lg_u64 vcc, 0')
    a('s_cbranch_scc1 %s' % p)
    a.label(l)

PF = 238
def prefetch0(a):
    l_d = a.newlabel('Lpfd'); l_e = a.newlabel('Lpfe')
    a('s_and_b32 s56, s%d, 15' % S_SLOT); a('s_cmp_eq_u32 s56, 0'); a('s_cbranch_scc1 %s' % l_d)
    a('v_mov_b32 v3, 0'); a('buffer_load_dword v%d, v3, s[32:35], 0 offen' % PF)
    a('s_branch %s' % l_e)
    a.label(l_d)
    a('s_getpc_b64 s[56:57]')
    pcl = a.newlabel('Lpc'); a.label(pcl)
    a('s_lshl_b32 s59, s%d, 13' % S_WAVE)
    a('v_lshlrev_b32 v2, 7, v0'); a('v_add_u32 v2, s59, v2')
    a('v_min_u32 v2, %s - %s, v2' % (CODE_END, pcl))
    a('v_mov_b32 v5, s57'); a('v_add_co_u32 v4, vcc, s56, v2'); a('v_addc_co_u32 v5, vcc, 0, v5, vcc')
    a('global_load_dword v%d, v[4:5], off' % PF)
    a.label(l_e)
for q in range(7680): assert (q * 34953) >> 19 == q // 15
for q in range(15): assert (q * 13108) >> 16 == q // 5

def prefetch1(a, iskv):
    nonce_issue_all(a)

def idle_prefetch(a):
    a('s_sub_u32 s56, s73, 36'); a('s_lshl_b32 s56, s56, 3'); a('s_add_u32 s56, s56, s%d' % S_WAVE)
    a('v_and_b32 v3, 7, v0'); a('v_lshlrev_b32 v3, 21, v3')
    a('v_min_u32 v4, %d, v3' % (WS_END - 4))
    a('buffer_load_dword v%d, v4, s[%d:%d], 0 offen' % (PF, SRD_F, SRD_F + 3))
    srd(a, 60, P_OUT, S * 1152 * 2)
    a('v_min_u32 v4, %d, v3' % (S * 1152 * 2 - 4))
    a('buffer_load_dword v%d, v4, s[60:63], 0 offen' % PF)
    a('v_lshlrev_b32 v3, 7, v0')
    for ptr, nb, n in ((P_H, D * S * 2, 288), (P_WO, D * D * 2, 81), (P_Q, S * D * 2, 288)):
        srd(a, 60, ptr, nb)
        for k in range((n + 223) // 224):
            a('s_add_u32 s57, s56, %d' % (224 * k)); a('s_lshl_b32 s57, s57, 13')
            a('buffer_load_dword v%d, v3, s[60:63], s57 offen' % PF)

def publish(a, idx_sgpr_expr, lgkm=False):
    a('s_waitcnt vmcnt(0) lgkmcnt(0)' if lgkm else 's_waitcnt vmcnt(0)')
    a('s_barrier')
    l = a.newlabel('Lpub')
    a('s_cmp_eq_u32 s%d, 0' % S_WAVE); a('s_cbranch_scc0 %s' % l)
    idx_sgpr_expr(a)
    a('s_lshl_b32 s68, s68, 7'); a('s_add_u32 s68, s68, %d' % WS_FLAG)
    a('v_mov_b32 v240, 0'); a('v_mov_b32 v241, s%d' % S_NONCE)
    a('s_mov_b64 s[74:75], exec'); a('s_mov_b64 exec, 1')
    a('buffer_store_dword v241, v240, s[%d:%d], s68 offen sc1' % (SRD_F, SRD_F + 3))
    a('s_mov_b64 exec, s[74:75]')
    a.label(l)

def wait_flags(a, lane_idx):
    l = a.newlabel('Lwf'); p = a.newlabel('Lwp')
    a('s_cmp_eq_u32 s%d, 0' % S_WAVE); a('s_cbranch_scc0 %s' % l)
    lane_idx(a)
    a('v_lshlrev_b32 v242, 7, v242'); a('v_add_u32 v242, %d, v242' % WS_FLAG)
    a('s_mov_b32 s69, 0')
    a.label(p)
    a('buffer_load_dword v243, v242, s[%d:%d], 0 offen sc1' % (SRD_F, SRD_F + 3))
    a('s_add_u32 s69, s69, 1')
    a('s_waitcnt vmcnt(0)')
    a('v_cmp_ne_u32 vcc, s%d, v243' % S_NONCE)
    a('s_cmp_ge_u32 s69, %d' % SPIN_MAX); a('s_cbranch_scc1 %s' % l)
    a('s_cmp_lg_u64 vcc, 0')
    a('s_cbranch_scc1 %s' % p)
    a.label(l)
    a('s_barrier')

def rot_override(a):
    if not ROT or ROTMODE == 'none': a('s_mov_b32 s41, 0')
    elif ROTMODE == 'r3':
        a('s_and_b32 s41, s29, 3'); a('s_and_b32 s42, s30, 3'); a('s_add_u32 s41, s41, s42')
        a('s_cmp_ge_u32 s41, 3'); a('s_cselect_b32 s42, 3, 0'); a('s_sub_u32 s41, s41, s42')
        a('s_cmp_ge_u32 s41, 3'); a('s_cselect_b32 s42, 3, 0'); a('s_sub_u32 s41, s41, s42'); a('s_mul_i32 s41, s41, 3')
    elif ROTMODE == 'r2':
        a('s_and_b32 s41, s29, 1'); a('s_lshl_b32 s41, s41, 2')
    elif ROTMODE == 'rt':
        a('s_and_b32 s41, s29, 3'); a('s_lshl_b32 s41, s41, 1')

def k_persist(name):
    a = Asm()
    a('s_cmp_ge_u32 s2, 256'); a('s_cbranch_scc1 %s_end' % name)
    a('s_load_dwordx16 s[4:19], s[0:1], 0')
    a('s_load_dwordx8 s[20:27], s[0:1], 64')
    a('v_lshrrev_b32 v1, 6, v0')
    a('v_and_b32 v0, 63, v0')
    a('s_and_b32 s%d, s2, 7' % S_X); a('s_lshr_b32 s%d, s2, 3' % S_SLOT)
    a('v_readfirstlane_b32 s%d, v1' % S_WAVE)
    def kernarg_ready():
        a('s_waitcnt lgkmcnt(0)')
        stamp_init(a); stamp(a, 0)
        srd(a, SRD_F, P_WS, WS_END)
    L_Q, L_B, L_OUT, L_B3, L_END = [name + s_ for s_ in ('_q', '_b', '_out', '_b3', '_fin')]
    a('s_cmp_ge_u32 s%d, 24' % S_SLOT); a('s_cbranch_scc1 %s' % L_B)
    a('s_cmp_ge_u32 s%d, 16' % S_SLOT); a('s_cbranch_scc1 %s' % L_Q)
    EX = 3 if PREFETCH else 0
    a('s_and_b32 s41, s%d, 3' % S_X); a('s_lshl_b32 s41, s41, 2'); a('s_and_b32 s29, s%d, 3' % S_SLOT); a('s_add_u32 s29, s29, s41')
    a('s_lshr_b32 s41, s%d, 2' % S_X); a('s_lshl_b32 s41, s41, 2'); a('s_lshr_b32 s30, s%d, 2' % S_SLOT); a('s_add_u32 s30, s30, s41')
    a('s_and_b32 s41, s29, 3'); a('s_lshl_b32 s41, s41, 1'); a('s_and_b32 s42, s30, 3'); a('s_mul_i32 s42, s42, 3'); a('s_add_u32 s41, s41, s42')
    a('s_cmp_ge_u32 s41, 9'); a('s_cselect_b32 s42, 9, 0'); a('s_sub_u32 s41, s41, s42')
    rot_override(a)
    gemm1.gemm1_rot(a, 41)
    gemm1.gemm1_lanes(a, False)
    kernarg_ready()
    gemm1.gemm1_srds(a)
    L_KVNEXT = name + '_kvnext'; L_CONVMAIN = name + '_convmain'
    def idx_kv(a): a('s_lshl_b32 s68, s30, 4'); a('s_add_u32 s68, s68, s91'); a('s_add_u32 s68, s68, %d' % F_KV)
    def u_flag_lane(a):
        a('v_and_b32 v242, 3, v0'); a('s_lshr_b32 s68, s93, 4'); a('s_lshl_b32 s68, s68, 2'); a('s_add_u32 s68, s68, %d' % F_U); a('v_add_u32 v242, s68, v242')
    def kv_shadow(a):
        def c0():
            a('s_lshl_b32 s73, s%d, 3' % S_SLOT); a('s_add_u32 s73, s73, s%d' % S_X)
            a('s_mov_b32 s91, s29')
            tag_ready(a)
        def c1():
            a('s_min_u32 s93, s73, 115'); a('s_add_u32 s93, s93, 28'); a('s_mov_b32 s29, s93')
            u_flag_lane(a)
            a('v_lshlrev_b32 v242, 7, v242'); a('v_add_u32 v242, %d, v242' % WS_FLAG)
            a('buffer_load_dword v243, v242, s[%d:%d], 0 offen sc1' % (SRD_F, SRD_F + 3))
        def c2():
            bpart.conv_issue(a)
            a('s_mov_b32 s29, s91')
        def c3():
            gemm1.kv_epi_setup(a)
        return [c0, c1, c2, c3]
    gemm1.gemm1_main(a, False, hook0=prefetch0, n0=1, hook1=lambda a: prefetch1(a, True), n1=1, hook_after_issue=nonce_publish, hook2=kv_shadow)
    stamp(a, 1)
    if MAINONLY: a('s_branch %s' % L_END)
    if getattr(common, 'DIAG_LOOP', False): common.stamp_raw(a, 6)
    lno = name + '_kvnoconv'; learly = a.newlabel('Learly'); llate = a.newlabel('Llate'); ljoin = a.newlabel('Ljoin')
    a('s_cmp_ge_u32 s73, 116'); a('s_cbranch_scc1 %s' % lno)
    a('s_waitcnt vmcnt(5)')
    a('v_cmp_ne_u32 vcc, s%d, v243' % S_NONCE)
    a('s_cmp_eq_u64 vcc, 0'); a('s_cselect_b32 s95, 1, 0'); a('s_cbranch_scc0 %s' % llate)
    bpart.conv_u_dma(a, LD)
    a.label(llate)
    gemm1.kv_epilogue2(a, st_flags=ST, stampf=(lambda a, i: common.stamp_raw(a, i)) if getattr(common, 'DIAG2', False) else None)
    hint(a, idx_kv)
    if getattr(common, 'DIAG2', False): common.stamp_raw(a, 5)
    a('s_cmp_eq_u32 s95, 1'); a('s_cbranch_scc1 %s' % learly)
    wave_wait_flags(a, u_flag_lane)
    bpart.conv_u_dma(a, LD)
    bpart.conv_copies(a, 0, waited=True)
    a('s_waitcnt vmcnt(0) lgkmcnt(0)')
    a('s_branch %s' % ljoin)
    a.label(learly)
    a('s_waitcnt vmcnt(4)')
    bpart.conv_copies(a, 0, waited=True)
    a('s_waitcnt vmcnt(2) lgkmcnt(0)')
    a.label(ljoin)
    a('s_barrier')
    if getattr(common, 'DIAG2', False): common.stamp_raw(a, 8)
    stamp(a, 2)
    a('s_branch %s' % L_CONVMAIN)
    a.label(lno)
    gemm1.kv_epilogue2(a, st_flags=ST)
    hint(a, idx_kv)
    a('s_barrier')
    stamp(a, 2)
    a.label(L_KVNEXT)
    a('s_cmp_ge_u32 s73, 64'); a('s_cbranch_scc1 %s' % L_B3)
    a('s_mov_b32 s59, s%d' % S_SLOT)
    a('s_branch %s' % L_OUT)
    a.label(L_Q)
    if NOQ: a('s_endpgm')
    a('s_and_b32 s41, s%d, 3' % S_X); a('s_lshl_b32 s41, s41, 2'); a('s_and_b32 s29, s%d, 3' % S_SLOT); a('s_add_u32 s29, s29, s41')
    a('s_lshr_b32 s41, s%d, 2' % S_X); a('s_lshl_b32 s41, s41, 1'); a('s_bfe_u32 s30, s%d, 0x10002' % S_SLOT); a('s_add_u32 s30, s30, s41')
    a('s_and_b32 s41, s29, 3'); a('s_lshl_b32 s41, s41, 1'); a('s_and_b32 s42, s30, 1'); a('s_lshl_b32 s42, s42, 2'); a('s_add_u32 s41, s41, s42'); a('s_add_u32 s41, s41, 1')
    a('s_cmp_ge_u32 s41, 9'); a('s_cselect_b32 s42, 9, 0'); a('s_sub_u32 s41, s41, s42')
    rot_override(a)
    gemm1.gemm1_rot(a, 41)
    gemm1.gemm1_lanes(a, True)
    kernarg_ready()
    gemm1.gemm1_srds(a)
    if PREFETCH: gemm1.gemm1_main(a, True, hook0=prefetch0, n0=1, hook1=lambda a: prefetch1(a, False), n1=1)
    else: gemm1.gemm1_main(a, True)
    stamp(a, 1)
    if MAINONLY: a('s_branch %s' % L_END)
    if getattr(common, 'DIAG_LOOP', False): common.stamp_raw(a, 6)
    tag_ready(a)
    def idx_pn(a): a('s_lshl_b32 s68, s29, 2'); a('s_add_u32 s68, s68, s30'); a('s_add_u32 s68, s68, %d' % F_PN)
    def wz(a):
        def li(a):
            a('v_and_b32 v242, 31, v0'); a('s_lshl_b32 s68, s30, 5'); a('s_add_u32 s68, s68, %d' % F_KV); a('v_add_u32 v242, s68, v242')
        stamp(a, 2)
        wait_flags(a, li)
        stamp(a, 3)
    if OUTV2:
        gemm1.q_epilogue2(a, ST, LD, lambda a: publish(a, idx_pn), wz, SPIN_MAX, stampf=(lambda a, i: common.stamp_raw(a, i)) if getattr(common, 'DIAG3', False) else None)
    else:
        gemm1.q_epilogue(a, st_flags=ST, ld_flags=LD, wait_z=wz, tagged=True, spin_max=SPIN_MAX)
        publish(a, idx_pn)
    stamp(a, 4)
    a('s_sub_u32 s59, s%d, 8' % S_SLOT)
    a('s_branch %s' % L_OUT)
    a.label(L_B)
    if NOB: a('s_endpgm')
    a('s_sub_u32 s73, s%d, 24' % S_SLOT); a('s_lshl_b32 s73, s73, 3'); a('s_add_u32 s73, s73, s%d' % S_X)
    kernarg_ready()
    L_NOB1 = name + '_nob1'
    a('s_cmp_ge_u32 s73, 36'); a('s_cbranch_scc1 %s' % L_NOB1)
    a('s_mul_i32 s29, s73, 7282'); a('s_lshr_b32 s29, s29, 16'); a('s_mul_i32 s30, s29, 9'); a('s_sub_u32 s30, s73, s30')
    a('s_mov_b32 s58, s29')
    a('s_lshl_b32 s29, s29, 3'); a('s_add_u32 s29, s29, s%d' % S_WAVE)
    bpart.b1_tile(a, st_flags=ST, hook_after_issue=nonce_issue_all)
    tag_ready(a)
    def idx_u(a): a('s_lshl_b32 s68, s30, 2'); a('s_add_u32 s68, s68, s58'); a('s_add_u32 s68, s68, %d' % F_U)
    publish(a, idx_u)
    stamp(a, 1)
    a('s_mov_b32 s29, s73')
    w2out.w2_prefetch(a)
    def wkv(a):
        def li(a):
            a('v_and_b32 v242, 15, v0'); a('v_bfe_u32 v241, v0, 4, 1')
            a('s_cmp_eq_u32 s31, 4'); a('s_cselect_b32 s68, 16, 0')
            a('v_mul_u32_u24 v241, s68, v241'); a('v_add_u32 v242, v242, v241')
            a('s_lshl_b32 s68, s30, 4'); a('s_add_u32 s68, s68, %d' % F_KV); a('v_add_u32 v242, s68, v242')
        stamp(a, 2)
        wait_flags(a, li)
        stamp(a, 3)
    w2out.w2_main(a, st_flags=ST, ld_flags=LD, wait_kv=wkv, tagged=True, spin_max=SPIN_MAX, stampf=(lambda a, i: common.stamp_raw(a, i)) if getattr(common, 'DIAG3', False) else None)
    if getattr(common, 'DIAG3', False): common.stamp_raw(a, 8)
    def idx_w2(a): a('s_add_u32 s68, s73, %d' % F_W2)
    publish(a, idx_w2)
    stamp(a, 6)
    if getattr(common, 'DIAG3', False): common.stamp_raw(a, 6)
    a('s_sub_u32 s59, s%d, 8' % S_SLOT)
    a('s_branch %s' % L_OUT)
    a.label(L_NOB1)
    if IDLEPF: idle_prefetch(a)
    nonce_issue_all(a)
    a('s_sub_u32 s93, s73, 36'); a('s_mov_b32 s29, s93')
    bpart.conv_issue(a)
    nonce_finish_all(a)
    a('s_mul_i32 s92, s%d, 0x9E3779B1' % S_NONCE)
    bpart.conv_copies(a, 0, waited=False)
    stamp(a, 4)
    wave_wait_flags(a, u_flag_lane)
    stamp(a, 5)
    bpart.conv_u_dma(a, LD)
    a('s_waitcnt vmcnt(0) lgkmcnt(0)'); a('s_barrier')
    a.label(L_CONVMAIN)
    bpart.conv_main(a, st_flags=ST)
    def idx_y(a): a('s_add_u32 s68, s93, %d' % F_Y)
    publish(a, idx_y)
    stamp(a, 6)
    a('s_cmp_lt_u32 s%d, 16' % S_SLOT); a('s_cbranch_scc1 %s' % L_KVNEXT)
    a('s_sub_u32 s59, s%d, 8' % S_SLOT)
    a.label(L_OUT)
    a('s_lshl_b32 s29, s%d, 2' % S_X); a('s_and_b32 s41, s59, 3'); a('s_add_u32 s29, s29, s41'); a('s_lshr_b32 s30, s59, 2')
    a('s_barrier')
    if OUTV2:
        w2out.out2_setup(a)
        def wpq(a):
            def li(a):
                a('s_lshr_b32 s68, s29, 1'); a('s_lshl_b32 s68, s68, 2'); a('s_add_u32 s68, s68, %d' % F_PN)
                a('v_and_b32 v242, 3, v0'); a('v_add_u32 v242, s68, v242')
            wait_flags(a, li)
            stamp(a, 5)
        def w2_lane(a):
            a('v_min_u32 v242, 35, v0'); a('v_add_u32 v242, %d, v242' % F_W2)
        sc, mg = w2out.out2_pre(a, LD, wpq, SPIN_MAX)
        stamp(a, 7)
        w2out.out2_scale(a, sc, mg)
        wait_flags(a, w2_lane)
        stamp(a, 8)
        w2out.out2_w2_dma(a, LD)
        w2out.out2_main(a)
        stamp(a, 9)
        w2out.out2_epilogue(a)
        a('s_branch %s' % L_END)
    else:
        w2out.out_setup(a)
        def wo_(a):
            def li(a):
                a('s_lshr_b32 s68, s29, 1'); a('s_lshl_b32 s68, s68, 2'); a('s_add_u32 s68, s68, %d' % F_PN)
                a('v_add_u32 v242, s68, v0')
                a('v_add_u32 v241, %d, v0' % (F_W2 - 4))
                a('v_cmp_le_u32 vcc, 4, v0'); a('v_cndmask_b32 v242, v242, v241, vcc')
                a('v_mov_b32 v241, s68')
                a('v_cmp_le_u32 vcc, 40, v0'); a('v_cndmask_b32 v242, v242, v241, vcc')
            stamp(a, 7)
            wait_flags(a, li)
            stamp(a, 8)
        w2out.out_main(a, ld_flags=LD, wait_in=wo_)
        stamp(a, 9)
        w2out.out_epilogue(a, st_flags=OUTST)
        a('s_branch %s' % L_END)
    a.label(L_B3)
    a('s_sub_u32 s58, s73, 64'); a('s_cmp_ge_u32 s58, 36'); a('s_cbranch_scc1 %s' % L_END)
    a('s_mul_i32 s29, s58, 7282'); a('s_lshr_b32 s29, s29, 16'); a('s_mul_i32 s30, s29, 9'); a('s_sub_u32 s30, s58, s30')
    a('s_lshl_b32 s29, s29, 3'); a('s_add_u32 s29, s29, s%d' % S_WAVE)
    a('s_barrier')
    def wy(a):
        def li(a):
            a('v_and_b32 v242, 15, v0'); a('s_lshl_b32 s68, s30, 4'); a('s_add_u32 s68, s68, %d' % F_Y); a('v_add_u32 v242, s68, v242')
        stamp(a, 7)
        wait_flags(a, li)
        stamp(a, 8)
    bpart.b3_tile(a, ld_flags=LD, st_flags=OUTST, wait_y=wy)
    a.label(L_END)
    if common.STAMPS:
        a('s_waitcnt vmcnt(0)'); stamp(a, 10); stamp_flush(a, 0)
    a.label(name + '_end'); a('s_endpgm')
    a.label(CODE_END)
    return a

NAME = 'concat_heads__linear_attn_block__ssm_conv_h3__prompt_kernel'
def build():
    lds = max(gemm1.LDS_GEMM1, w2out.LDS_W2, w2out.LDS_OUT, w2out.LDS_OUT2, bpart.LDS_CONV, bpart.LDS_B3, bpart.LDS_B1)
    assert lds <= 163840
    a = k_persist(NAME)
    lines = fix_hazards(a.lines, verbose=True)
    hdr = '; concat_heads / linear attention block + H3 ssm conv : single persistent kernel (generated by gen/persist.py)\n'
    hdr += '; @launch grid=(256,1,1) block=(512,1,1) lds=%d\n' % lds
    return hdr + '.amdgcn_target "amdgcn-amd-amdhsa--gfx950"\n.text\n' + kernel_header(NAME) + '\n'.join(lines) + '\n' + kernel_desc(NAME)
if __name__ == '__main__':
    if 'nopf' in sys.argv: PREFETCH = False
    if 'norot' in sys.argv: ROT = False
    if 'v2' in sys.argv: OUTV2 = True
    if 'osc1' in sys.argv: OUTST = 'sc1'
    if 'ont' in sys.argv: OUTST = 'nt'
    if 'osc01' in sys.argv: OUTST = 'sc0 sc1'
    if 'mainonly' in sys.argv: MAINONLY = True
    if 'noq' in sys.argv: NOQ = True
    if 'nob' in sys.argv: NOB = True
    if 'noidle' in sys.argv: IDLEPF = False
    if 'idle' in sys.argv: IDLEPF = True
    for m_ in ('r3', 'r2', 'rt', 'none'):
        if m_ in sys.argv: ROTMODE = m_
    if 'diag' in sys.argv: common.DIAG_LOOP = True
    if 'diag2' in sys.argv: common.DIAG2 = True
    if 'diag3' in sys.argv: common.DIAG3 = True
    if len(sys.argv) > 2 and sys.argv[2] in ('rt', 'cyc'):
        common.STAMPS = True
        if sys.argv[2] == 'cyc': common.STAMP_OP = 's_memtime'
    open(sys.argv[1], 'w').write(build())
```

```python
from common import *
S_T0, S_T1, S_T2 = 41, 42, 43

LDS_B1 = 8 * 8192
def b1_tile(a, st_flags='', hook_after_issue=None, stampf=None):
    KR, VR, SK = 64, 108, 140
    a('v_and_b32 v2, 7, v0'); a('v_lshrrev_b32 v3, 3, v0')
    a('s_lshl_b32 s%d, s29, 6' % S_T0); a('v_lshlrev_b32 v4, 3, v3'); a('v_add_u32 v4, s%d, v4' % S_T0)
    a('v_mul_u32_u24 v4, 1152, v4'); a('v_lshlrev_b32 v5, 4, v2'); a('v_add_u32 v4, v4, v5')
    a('s_lshl_b32 s%d, s30, 7' % S_T0); a('v_add_u32 v4, s%d, v4' % S_T0)
    a('v_subrev_u32 v6, %d, v4' % (3 * 1152))
    a('s_lshl_b32 s%d, s30, 9' % S_T0); a('v_lshlrev_b32 v7, 6, v2'); a('v_add_u32 v7, s%d, v7' % S_T0)
    srd(a, 32, P_K, S * D * 2)
    for j in range(11):
        if j < 3:
            a('v_add_u32 v8, %d, v6' % (j * 1152))
            a('buffer_load_dwordx4 %s, v8, s[32:35], 0 offen' % vr(KR + 4 * j, 4))
        else:
            a('s_movk_i32 s%d, %d' % (S_T0, (j - 3) * 1152))
            a('buffer_load_dwordx4 %s, v4, s[32:35], s%d offen' % (vr(KR + 4 * j, 4), S_T0))
    srd(a, 52, P_SK, D * 8)
    for k in range(4): a('buffer_load_dwordx4 %s, v7, s[52:55], 0 offen offset:%d' % (vr(SK + 4 * k, 4), 16 * k))
    srd(a, 36, P_V, S * D * 2)
    for j in range(8):
        a('s_movk_i32 s%d, %d' % (S_T0, j * 1152))
        a('buffer_load_dwordx4 %s, v4, s[36:39], s%d offen' % (vr(VR + 4 * j, 4), S_T0))
    nh = 0
    if hook_after_issue: hook_after_issue(a); nh = 1
    a('s_mov_b32 s44, 0xffff0000')
    a('v_xor_b32 v9, v2, v3'); a('v_lshlrev_b32 v9, 4, v9'); a('v_lshl_add_u32 v9, v3, 7, v9')
    a('s_lshl_b32 s45, s%d, 13' % S_WAVE); a('v_add_u32 v9, s45, v9')
    a('v_lshlrev_b32 v10, 10, v3'); a('v_lshl_add_u32 v10, v2, 7, v10'); a('v_add_u32 v10, s45, v10')
    a('v_lshlrev_b32 v11, 12, v3'); a('v_lshl_add_u32 v11, v2, 4, v11')
    a('s_lshl_b32 s%d, s30, 18' % S_T0); a('s_lshl_b32 s%d, s29, 7' % S_T1); a('s_add_u32 s%d, s%d, s%d' % (S_T0, S_T0, S_T1)); a('s_add_u32 s46, s%d, %d' % (S_T0, WS_UT))
    T = 160
    TP, KP, KS, U = T, T + 8, T + 30, T + 46
    a('s_waitcnt vmcnt(%d)' % (8 + nh))
    if stampf: stampf(a, 2)
    for d in range(4):
        s0_, s1_, s2_, s3_ = SK + 4 * d, SK + 4 * d + 1, SK + 4 * d + 2, SK + 4 * d + 3
        a('v_lshlrev_b32 v%d, 16, v%d' % (TP + 0, s0_)); a('v_lshlrev_b32 v%d, 16, v%d' % (TP + 1, s2_))
        a('v_and_b32 v%d, s44, v%d' % (TP + 2, s0_)); a('v_and_b32 v%d, s44, v%d' % (TP + 3, s2_))
        a('v_lshlrev_b32 v%d, 16, v%d' % (TP + 4, s1_)); a('v_lshlrev_b32 v%d, 16, v%d' % (TP + 5, s3_))
        a('v_and_b32 v%d, s44, v%d' % (TP + 6, s1_)); a('v_and_b32 v%d, s44, v%d' % (TP + 7, s3_))
        for j in range(11):
            a('v_lshlrev_b32 v%d, 16, v%d' % (KP + 2 * j, KR + 4 * j + d)); a('v_and_b32 v%d, s44, v%d' % (KP + 2 * j + 1, KR + 4 * j + d))
        for i in range(8): a('v_pk_mul_f32 %s, %s, %s' % (vr(KS + 2 * i, 2), vr(KP + 2 * i, 2), vr(TP + 6, 2)))
        for i in range(8): a('v_pk_fma_f32 %s, %s, %s, %s' % (vr(KS + 2 * i, 2), vr(KP + 2 * i + 2, 2), vr(TP + 4, 2), vr(KS + 2 * i, 2)))
        for i in range(8): a('v_pk_fma_f32 %s, %s, %s, %s' % (vr(KS + 2 * i, 2), vr(KP + 2 * i + 4, 2), vr(TP + 2, 2), vr(KS + 2 * i, 2)))
        for i in range(8): a('v_pk_fma_f32 %s, %s, %s, %s' % (vr(KS + 2 * i, 2), vr(KP + 2 * i + 6, 2), vr(TP + 0, 2), vr(KS + 2 * i, 2)))
        if d == 0: a('s_waitcnt vmcnt(%d)' % nh)
        for i in range(8):
            a('v_lshlrev_b32 v%d, 16, v%d' % (KP + 2 * i, VR + 4 * i + d)); a('v_and_b32 v%d, s44, v%d' % (KP + 2 * i + 1, VR + 4 * i + d))
        for i in range(8): a('v_pk_mul_f32 %s, %s, %s' % (vr(KS + 2 * i, 2), vr(KS + 2 * i, 2), vr(KP + 2 * i, 2)))
        for hi in range(2):
            for i in range(4): a('v_cvt_pk_bf16_f32 v%d, v%d, v%d' % (U + 4 * hi + i, KS + 4 * i + hi, KS + 4 * i + 2 + hi))
            a('ds_write_b128 v9, %s offset:%d' % (vr(U + 4 * hi, 4), (2 * d + hi) * 1024))
    if stampf: stampf(a, 3)
    a('s_waitcnt lgkmcnt(0)')
    for cc in range(8):
        a('v_xor_b32 v12, %d, v2' % cc); a('v_lshl_add_u32 v12, v12, 4, v10')
        a('ds_read_b128 %s, v12' % vr(64 + 4 * cc, 4))
    for cc in range(8):
        a('s_waitcnt lgkmcnt(%d)' % (7 - cc))
        a('s_add_u32 s%d, s46, %d' % (S_T1, cc * 8 * 4096))
        a('buffer_store_dwordx4 %s, v11, s[64:67], s%d offen %s' % (vr(64 + 4 * cc, 4), S_T1, st_flags))
    if stampf: stampf(a, 4)

HP = 4160
CH_H = 4 * HP
CH_U = 4576
CH_SZ = CH_H + CH_U
CONV_BASE = 36864
CONV_U = CONV_BASE
CONV_H = CONV_U + 4 * CH_U
LDS_CONV = CONV_H + 4 * CH_H
S_CH, S_P, S_LB, S_LU = 88, 89, 90, 94
V_H = 24
V_D = 40
def conv_issue(a):
    a('s_lshr_b32 s%d, s%d, 1' % (S_T0, S_WAVE)); a('s_and_b32 s%d, s%d, 1' % (S_P, S_WAVE))
    a('s_lshl_b32 s%d, s29, 2' % S_CH); a('s_add_u32 s%d, s%d, s%d' % (S_CH, S_CH, S_T0))
    a('s_mul_i32 s%d, s%d, %d' % (S_LB, S_T0, CH_H)); a('s_add_u32 s%d, s%d, %d' % (S_LB, S_LB, CONV_H))
    a('s_mul_i32 s%d, s%d, %d' % (S_LU, S_T0, CH_U)); a('s_add_u32 s%d, s%d, %d' % (S_LU, S_LU, CONV_U))
    a('s_lshl_b32 s%d, s%d, 12' % (S_T1, S_CH))
    srd(a, 32, P_H, 4096, 's%d' % S_T1)
    srd(a, 36, P_D, D * 2)
    a('v_lshlrev_b32 v41, 4, v0')
    a('s_lshl_b32 s%d, s%d, 11' % (S_T0, S_P)); a('v_add_u32 v42, s%d, v41' % S_T0)
    for k in range(2):
        if k: a('v_add_u32 v42, 1024, v42')
        a('buffer_load_dwordx4 %s, v42, s[32:35], 0 offen' % vr(V_H + 8 * k + 4, 4))
        a('v_subrev_u32 v43, 8, v42')
        a('buffer_load_dwordx2 %s, v43, s[32:35], 0 offen' % vr(V_H + 8 * k, 2))
    a('s_lshl_b32 s%d, s%d, 1' % (S_T0, S_CH)); a('v_mov_b32 v43, s%d' % S_T0)
    a('buffer_load_ushort v%d, v43, s[36:39], 0 offen' % V_D)

def conv_u_dma(a, ld_flags):
    a('v_lshlrev_b32 v41, 4, v0')
    a('s_lshl_b32 s%d, s%d, 12' % (S_T0, S_CH)); a('s_lshl_b32 s%d, s%d, 11' % (S_T1, S_P)); a('s_add_u32 s%d, s%d, s%d' % (S_T0, S_T0, S_T1)); a('s_add_u32 s%d, s%d, %d' % (S_T0, S_T0, WS_UT))
    a('s_add_u32 s%d, s%d, s%d' % (S_T1, S_T1, S_LU))
    for k in range(2):
        a('s_add_u32 m0, s%d, %d' % (S_T1, 480 + k * 1024))
        a('s_add_u32 s%d, s%d, %d' % (S_T2, S_T0, k * 1024))
        a('buffer_load_dwordx4 v41, s[64:67], s%d offen %s lds' % (S_T2, ld_flags))

def conv_copies(a, nyounger, waited=False):
    for k in range(4): a('v_mov_b32 v%d, 0' % (44 + k))
    a('v_lshlrev_b32 v41, 4, v0')
    a('s_mov_b64 s[52:53], exec')
    zl = a.newlabel('Lcz'); ze = a.newlabel('Lce')
    a('s_cmp_eq_u32 s%d, 0' % S_P); a('s_cbranch_scc0 %s' % zl)
    a('v_lshrrev_b32 v42, 2, v0'); a('v_mul_u32_u24 v42, %d, v42' % HP); a('v_and_b32 v43, 3, v0'); a('v_lshl_add_u32 v42, v43, 4, v42'); a('v_add_u32 v42, s%d, v42' % S_LB)
    a('s_mov_b64 exec, 0xffff')
    a('ds_write_b128 v42, v[44:47]')
    a('s_branch %s' % ze)
    a.label(zl)
    a('v_add_u32 v42, s%d, v41' % S_LU)
    a('s_mov_b64 exec, 0x3fffffff')
    a('ds_write_b128 v42, v[44:47]')
    a.label(ze)
    a('s_mov_b64 exec, s[52:53]')
    a('s_lshl_b32 s%d, s%d, 11' % (S_T0, S_P)); a('s_add_u32 s%d, s%d, s%d' % (S_T0, S_T0, S_LB)); a('v_add_u32 v42, s%d, v41' % S_T0)
    if not waited: a('s_waitcnt vmcnt(%d)' % (1 + nyounger))
    for k in range(2):
        pm2, pm1 = V_H + 8 * k, V_H + 8 * k + 1
        h = V_H + 8 * k + 4
        o = 64 + k * 1024
        c1, c2, c3 = 44 + 0, 48, 52
        a('ds_write_b128 v42, %s offset:%d' % (vr(h, 4), o))
        a('v_mov_b32 v48, v%d' % pm1); a('v_mov_b32 v49, v%d' % h); a('v_mov_b32 v50, v%d' % (h + 1)); a('v_mov_b32 v51, v%d' % (h + 2))
        a('ds_write_b128 v42, v[48:51] offset:%d' % (o + 2 * HP))
        a('v_alignbit_b32 v52, v%d, v%d, 16' % (pm1, pm2))
        a('v_alignbit_b32 v53, v%d, v%d, 16' % (h, pm1))
        a('v_alignbit_b32 v54, v%d, v%d, 16' % (h + 1, h))
        a('v_alignbit_b32 v55, v%d, v%d, 16' % (h + 2, h + 1))
        a('ds_write_b128 v42, v[52:55] offset:%d' % (o + 3 * HP))
        a('v_mov_b32 v56, v53'); a('v_mov_b32 v57, v54'); a('v_mov_b32 v58, v55')
        a('v_alignbit_b32 v59, v%d, v%d, 16' % (h + 3, h + 2))
        a('ds_write_b128 v42, v[56:59] offset:%d' % (o + HP))
    a('v_lshrrev_b32 v7, 4, v0'); a('v_bfe_u32 v8, v0, 2, 2'); a('v_and_b32 v9, 3, v0')
    a('v_mul_u32_u24 v10, %d, v8' % HP); a('v_lshl_add_u32 v10, v9, 3, v10'); a('v_lshlrev_b32 v11, 4, v7'); a('v_sub_u32 v10, v10, v11')
    a('s_lshl_b32 s%d, s%d, 8' % (S_T0, S_P)); a('s_add_u32 s%d, s%d, s%d' % (S_T0, S_T0, S_LB)); a('s_add_u32 s%d, s%d, %d' % (S_T0, S_T0, 64 + 32 - 8))
    a('v_add_u32 v10, s%d, v10' % S_T0)
    a('v_and_b32 v11, 15, v0'); a('v_lshlrev_b32 v11, 5, v11'); a('v_lshl_add_u32 v11, v7, 4, v11')
    a('s_lshl_b32 s%d, s%d, 8' % (S_T0, S_P)); a('s_sub_u32 s%d, s%d, s%d' % (S_T0, S_LU, S_T0))
    a('v_add_u32 v11, s%d, v11' % S_T0)

def conv_main(a, st_flags=''):
    ACC = 64
    AF, BF = 96, 160
    lg = LG(a)
    def rdlist(cc):
        s_ = cc & 1
        out = []
        for pp in range(8):
            out.append(('ds_read_b128 %s, v11 offset:%d' % (vr(BF + 32 * s_ + 4 * pp, 4), 448 + 512 * pp - 64 * cc), [('B', cc, pp)]))
            for q in range(2):
                out.append(('ds_read_b64_tr_b16 %s, v10 offset:%d' % (vr(AF + 32 * s_ + 4 * pp + 2 * q, 2), 64 * cc + 512 * pp + (8 if q == 0 else 0)), [('A', cc, pp, q)]))
        return out
    for txt, tg in rdlist(0): lg.issue(txt, tg)
    first = set()
    for cc in range(4):
        s_ = cc & 1
        pend = rdlist(cc + 1) if cc < 3 else []
        pairs = sorted([(p, m_) for p in range(8) for m_ in range(8) if p + m_ <= 7], key=lambda x: (max(x), x[0]))
        n = 0
        for (p, m_) in pairs:
            lg.wait([('A', cc, p, 0), ('A', cc, p, 1), ('B', cc, m_)])
            T = p + m_
            a('v_mfma_f32_16x16x32_bf16 %s, %s, %s, %s' % (vr(ACC + 4 * T, 4), vr(AF + 32 * s_ + 4 * p, 4), vr(BF + 32 * s_ + 4 * m_, 4), vr(ACC + 4 * T, 4) if T in first else '0'))
            first.add(T)
            n += 1
            if n >= 8 and pend:
                txt, tg = pend.pop(0); lg.issue(txt, tg)
        while pend:
            txt, tg = pend.pop(0); lg.issue(txt, tg)
    a('v_lshlrev_b32 v2, 4, v0')
    a('s_lshl_b32 s%d, s%d, 12' % (S_T0, S_P)); a('s_add_u32 s%d, s%d, s%d' % (S_T0, S_T0, S_LB)); a('v_add_u32 v6, s%d, v2' % S_T0)
    a('s_xor_b32 s%d, s%d, 1' % (S_T1, S_P)); a('s_lshl_b32 s%d, s%d, 12' % (S_T1, S_T1)); a('s_add_u32 s%d, s%d, s%d' % (S_T1, S_T1, S_LB)); a('v_add_u32 v7, s%d, v2' % S_T1)
    a('v_and_b32 v8, 15, v0'); a('v_lshlrev_b32 v8, 5, v8'); a('v_lshrrev_b32 v9, 4, v0'); a('v_lshl_add_u32 v8, v9, 3, v8')
    a('s_lshl_b32 s%d, s%d, 11' % (S_T0, S_P)); a('s_add_u32 s%d, s%d, s%d' % (S_T0, S_T0, S_LU)); a('s_add_u32 s%d, s%d, %d' % (S_T0, S_T0, 480))
    a('v_add_u32 v8, s%d, v8' % S_T0); a('v_add_u32 v9, s%d, v2' % S_T0)
    for t in range(4): a('ds_read_b64 %s, v8 offset:%d' % (vr(112 + 2 * t, 2), t * 512))
    a('v_lshlrev_b32 v%d, 16, v%d' % (V_D, V_D))
    a('s_mov_b32 s45, 0xffff0000')
    a('s_barrier')
    l1 = a.newlabel('Lcx'); l2 = a.newlabel('Lcy')
    a('s_cmp_eq_u32 s%d, 0' % S_P); a('s_cbranch_scc0 %s' % l1)
    for t in range(4): a('ds_write_b128 v6, %s offset:%d' % (vr(ACC + 16 + 4 * t, 4), t * 1024))
    a('s_branch %s' % l2)
    a.label(l1)
    for t in range(4): a('ds_write_b128 v6, %s offset:%d' % (vr(ACC + 4 * t, 4), t * 1024))
    a('s_nop 1')
    for r in range(16): a('v_mov_b32 v%d, v%d' % (ACC + r, ACC + 16 + r))
    a.label(l2)
    a('s_waitcnt lgkmcnt(4)')
    for t in range(4):
        a('v_lshlrev_b32 v120, 16, v%d' % (112 + 2 * t)); a('v_and_b32 v121, s45, v%d' % (112 + 2 * t))
        a('v_lshlrev_b32 v122, 16, v%d' % (113 + 2 * t)); a('v_and_b32 v123, s45, v%d' % (113 + 2 * t))
        for r in range(4): a('v_fmac_f32 v%d, v%d, v%d' % (ACC + 4 * t + r, 120 + r, V_D))
    a('s_waitcnt lgkmcnt(0)')
    a('s_barrier')
    for t in range(4): a('ds_read_b128 %s, v7 offset:%d' % (vr(96 + 4 * t, 4), t * 1024))
    for t in range(4):
        a('s_waitcnt lgkmcnt(%d)' % (3 - t))
        for r in range(0, 4, 2): a('v_pk_add_f32 %s, %s, %s' % (vr(ACC + 4 * t + r, 2), vr(ACC + 4 * t + r, 2), vr(96 + 4 * t + r, 2)))
        a('v_cvt_pk_bf16_f32 v%d, v%d, v%d' % (124 + 2 * t, ACC + 4 * t, ACC + 4 * t + 1))
        a('v_cvt_pk_bf16_f32 v%d, v%d, v%d' % (125 + 2 * t, ACC + 4 * t + 2, ACC + 4 * t + 3))
        a('ds_write_b64 v8, %s offset:%d' % (vr(124 + 2 * t, 2), t * 512))
    a('s_lshl_b32 s%d, s%d, 12' % (S_T0, S_CH)); a('s_lshl_b32 s%d, s%d, 11' % (S_T1, S_P)); a('s_add_u32 s%d, s%d, s%d' % (S_T0, S_T0, S_T1)); a('s_add_u32 s%d, s%d, %d' % (S_T0, S_T0, WS_YT))
    a('s_waitcnt lgkmcnt(0)')
    for k in range(2): a('ds_read_b128 %s, v9 offset:%d' % (vr(132 + 4 * k, 4), k * 1024))
    for k in range(2):
        a('s_waitcnt lgkmcnt(%d)' % (1 - k))
        a('s_add_u32 s%d, s%d, %d' % (S_T1, S_T0, k * 1024))
        a('buffer_store_dwordx4 %s, v2, s[64:67], s%d offen %s' % (vr(132 + 4 * k, 4), S_T1, st_flags))

LDS_B3 = 8 * 17408
def b3_tile(a, ld_flags='', st_flags='', wait_y=None):
    S_LB = 44
    srd(a, 32, P_Q, S * D * 2); srd(a, 52, P_OUT, S * 1152 * 2)
    a('s_mul_i32 s%d, s%d, 17408' % (S_LB, S_WAVE))
    a('v_and_b32 v2, 7, v0'); a('v_lshrrev_b32 v3, 3, v0')
    a('s_lshl_b32 s%d, s29, 6' % S_T0); a('v_add_u32 v4, s%d, v3' % S_T0); a('v_mul_u32_u24 v4, 1152, v4'); a('v_lshl_add_u32 v4, v2, 4, v4')
    a('s_lshl_b32 s%d, s30, 7' % S_T0); a('v_add_u32 v4, s%d, v4' % S_T0)
    Q = 64
    for j in range(8):
        a('s_mov_b32 s%d, %d' % (S_T0, j * 8 * 1152))
        a('buffer_load_dwordx4 %s, v4, s[32:35], s%d offen' % (vr(Q + 4 * j, 4), S_T0))
    if wait_y: wait_y(a)
    a('v_lshrrev_b32 v5, 1, v2'); a('v_and_b32 v6, 3, v3'); a('v_xor_b32 v5, v5, v6'); a('v_lshlrev_b32 v5, 1, v5'); a('v_and_b32 v6, 1, v2'); a('v_or_b32 v5, v5, v6')
    a('v_lshlrev_b32 v6, 12, v3'); a('v_lshl_add_u32 v6, v5, 4, v6')
    a('s_lshl_b32 s%d, s30, 18' % S_T0); a('s_lshl_b32 s%d, s29, 7' % S_T1); a('s_add_u32 s%d, s%d, s%d' % (S_T0, S_T0, S_T1)); a('s_add_u32 s%d, s%d, %d' % (S_T0, S_T0, WS_YT))
    for j in range(8):
        a('s_add_u32 m0, s%d, %d' % (S_LB, j * 1024))
        a('s_add_u32 s%d, s%d, %d' % (S_T1, S_T0, j * 8 * 4096))
        a('buffer_load_dwordx4 v6, s[64:67], s%d offen %s lds' % (S_T1, ld_flags))
    a('v_lshrrev_b32 v7, 4, v0'); a('v_bfe_u32 v8, v0, 2, 2'); a('v_and_b32 v9, 3, v0')
    a('v_xor_b32 v10, v7, v8'); a('v_lshlrev_b32 v10, 5, v10'); a('v_lshl_add_u32 v10, v8, 7, v10'); a('v_lshl_add_u32 v10, v9, 3, v10'); a('v_add_u32 v10, s%d, v10' % S_LB)
    a('v_mul_u32_u24 v11, 144, v0'); a('s_add_u32 s%d, s%d, 8192' % (S_T0, S_LB)); a('v_add_u32 v11, s%d, v11' % S_T0)
    a('s_waitcnt vmcnt(0)')
    Y = 96
    for chq in range(16): a('ds_read_b64_tr_b16 %s, v10 offset:%d' % (vr(Y + 2 * chq, 2), chq * 512))
    for chq in range(16):
        a('s_waitcnt lgkmcnt(%d)' % min(15, 15 - chq) if chq else 's_waitcnt lgkmcnt(15)')
        a('ds_write_b64 v11, %s offset:%d' % (vr(Y + 2 * chq, 2), chq * 8))
    a('v_mul_u32_u24 v12, 144, v3'); a('v_lshl_add_u32 v12, v2, 4, v12'); a('v_add_u32 v12, s%d, v12' % S_T0)
    a('s_waitcnt lgkmcnt(0)')
    for j in range(8): a('ds_read_b128 %s, v12 offset:%d' % (vr(Y + 4 * j, 4), j * 8 * 144))
    a('s_mov_b32 s45, 0xffff0000')
    a('s_lshl_b32 s%d, s29, 6' % S_T0); a('v_add_u32 v4, s%d, v3' % S_T0); a('v_mul_u32_u24 v4, 2304, v4'); a('v_lshl_add_u32 v4, v2, 4, v4')
    a('s_lshl_b32 s%d, s30, 7' % S_T0); a('s_add_u32 s%d, s%d, 1152' % (S_T0, S_T0)); a('v_add_u32 v4, s%d, v4' % S_T0)
    for j in range(8):
        a('s_waitcnt lgkmcnt(%d)' % (7 - j))
        for d in range(4):
            q_, y_ = Q + 4 * j + d, Y + 4 * j + d
            a('v_lshlrev_b32 v140, 16, v%d' % q_); a('v_and_b32 v141, s45, v%d' % q_)
            a('v_lshlrev_b32 v142, 16, v%d' % y_); a('v_and_b32 v143, s45, v%d' % y_)
            a('v_mul_f32 v140, v140, v142'); a('v_mul_f32 v141, v141, v143')
            a('v_cvt_pk_bf16_f32 v%d, v140, v141' % q_)
        a('s_mov_b32 s%d, %d' % (S_T0, j * 8 * 2304))
        a('buffer_store_dwordx4 %s, v4, s[52:55], s%d offen %s' % (vr(Q + 4 * j, 4), S_T0, st_flags))
```

```python
from common import *
S_T0, S_T1, S_T2 = 41, 42, 43
S_TASK = 29

W2_PITCH = 1184
LDS_W2_RED = 0
LDS_W2_AF = 32768
LDS_W2_WO = 34816
LDS_W2 = LDS_W2_WO + 81920
PIDX = {pr: p for p, pr in enumerate(KV_PAIRS)}

def w2_prefetch(a):
    srd(a, 32, P_WO, D * D * 2)
    a('s_cmp_lt_u32 s%d, 32' % S_TASK)
    lm = a.newlabel('Lw2m'); le = a.newlabel('Lw2e')
    a('s_cbranch_scc0 %s' % lm)
    a('s_lshr_b32 s30, s%d, 2' % S_TASK); a('s_and_b32 s31, s%d, 3' % S_TASK)
    a('s_max_u32 s%d, s31, 1' % S_T0); a('s_sub_u32 s%d, s%d, 1' % (S_T0, S_T0)); a('s_lshl_b32 s%d, s%d, 4' % (S_T0, S_T0))
    a('s_mul_i32 s%d, s30, 72' % S_T1); a('s_add_u32 s%d, s%d, s%d' % (S_T0, S_T0, S_T1))
    a('s_mov_b32 s%d, 0' % S_T1)
    a('s_branch %s' % le)
    a.label(lm)
    a('s_sub_u32 s30, s%d, 32' % S_TASK); a('s_lshl_b32 s30, s30, 1'); a('s_mov_b32 s31, 4')
    a('s_mul_i32 s%d, s30, 72' % S_T0); a('s_add_u32 s%d, s%d, 48' % (S_T0, S_T0))
    a('s_mov_b32 s%d, 40' % S_T1)
    a.label(le)
    a('s_lshl_b32 s%d, s%d, 6' % (S_T2, S_WAVE))
    a('s_lshl_b32 s44, s%d, 10' % S_WAVE)
    for k in range(10):
        a('v_add_u32 v2, s%d, v0' % S_T2)
        if k: a('v_add_u32 v2, %d, v2' % (512 * k))
        a('v_mul_u32_u24 v3, 3543, v2')
        a('v_lshrrev_b32 v3, 18, v3')
        a('v_mul_u32_u24 v4, 74, v3')
        a('v_sub_u32 v4, v2, v4')
        a('v_min_u32 v4, 71, v4')
        a('v_cmp_le_u32 vcc, 32, v3')
        a('v_mov_b32 v5, s%d' % S_T1)
        a('v_cndmask_b32 v5, 0, v5, vcc')
        a('v_add3_u32 v3, v3, v5, s%d' % S_T0)
        a('v_mul_u32_u24 v3, 1152, v3')
        a('v_lshl_add_u32 v3, v4, 4, v3')
        a('s_add_u32 m0, s44, %d' % (LDS_W2_WO + k * 8192))
        a('s_nop 0')
        a('buffer_load_dwordx4 v3, s[32:35], 0 offen lds')
for q in range(5120): assert (q * 3543) >> 18 == q // 74, q

def w2_main(a, st_flags='', ld_flags='', wait_kv=None, tagged=False, spin_max=100000, stampf=None):
    end = a.newlabel('Lw2end')
    a('v_lshlrev_b32 v2, 4, v0')
    a('v_and_b32 v6, 15, v0'); a('v_lshrrev_b32 v7, 4, v0')
    a('v_bfe_u32 v14, v0, 2, 2'); a('v_lshl_add_u32 v14, v7, 2, v14'); a('v_mul_u32_u24 v14, %d, v14' % W2_PITCH)
    a('v_and_b32 v9, 3, v0'); a('v_lshl_add_u32 v14, v9, 3, v14')
    a('s_lshl_b32 s%d, s%d, 5' % (S_T0, S_WAVE)); a('s_add_u32 s%d, s%d, %d' % (S_T0, S_T0, LDS_W2_WO)); a('v_add_u32 v14, s%d, v14' % S_T0)
    lm = a.newlabel('Lw2j'); le = a.newlabel('Lw2k')
    a('s_cmp_lt_u32 s31, 4'); a('s_cbranch_scc0 %s' % lm)
    a('s_lshl_b32 s%d, s30, 1' % S_T0); a('s_lshr_b32 s%d, s31, 1' % S_T1); a('s_add_u32 s%d, s%d, s%d' % (S_T0, S_T0, S_T1)); a('s_and_b32 s%d, s31, 1' % S_T1)
    a('s_branch %s' % le)
    a.label(lm)
    a('s_lshr_b32 s%d, s30, 2' % S_T0); a('s_add_u32 s%d, s%d, 16' % (S_T0, S_T0)); a('s_lshr_b32 s%d, s30, 1' % S_T1); a('s_and_b32 s%d, s%d, 1' % (S_T1, S_T1))
    a.label(le)
    a('s_lshl_b32 s%d, s%d, 10' % (S_T0, S_T0)); a('s_lshl_b32 s%d, s%d, 3' % (S_T1, S_T1)); a('s_add_u32 s%d, s%d, s%d' % (S_T0, S_T0, S_T1))
    a('s_mul_i32 s%d, s%d, %d' % (S_T1, S_WAVE, 18 * 1024)); a('s_add_u32 s%d, s%d, s%d' % (S_T0, S_T0, S_T1)); a('s_add_u32 s46, s%d, %d' % (S_T0, WS_W2T))
    a('s_lshl_b32 s%d, s30, 4' % S_T0); a('s_lshl_b32 s%d, s%d, 1' % (S_T1, S_WAVE)); a('s_add_u32 s%d, s%d, s%d' % (S_T0, S_T0, S_T1))
    a('s_mul_i32 s%d, s%d, %d' % (S_T0, S_T0, KVP_BLK)); a('s_add_u32 s47, s%d, %d' % (S_T0, WS_KVP))
    a('s_lshl_b32 s%d, s%d, 12' % (S_T0, S_WAVE)); a('v_add_u32 v9, s%d, v2' % S_T0)
    a('s_lshl_b32 s%d, s%d, 10' % (S_T0, S_WAVE)); a('v_add_u32 v10, s%d, v2' % S_T0)
    a('s_lshr_b32 s%d, s%d, 1' % (S_T0, S_WAVE)); a('s_lshl_b32 s%d, s%d, 10' % (S_T0, S_T0))
    a('s_and_b32 s%d, s%d, 1' % (S_T1, S_WAVE)); a('s_lshl_b32 s%d, s%d, 3' % (S_T1, S_T1)); a('s_add_u32 s%d, s%d, s%d' % (S_T0, S_T0, S_T1))
    a('v_add_u32 v11, s%d, v2' % S_T0)
    for var in range(5):
        nxt = a.newlabel('Lw2v')
        a('s_cmp_eq_u32 s31, %d' % var); a('s_cbranch_scc0 %s' % nxt)
        if var == 0: tiles = [(0, 0, 0), (0, 1, 0)]
        elif var == 1: tiles = [(0, 0, 1), (0, 1, 1), (0, 2, 1)]
        elif var == 2: tiles = [(0, 1, 2), (0, 2, 2), (0, 3, 2)]
        elif var == 3: tiles = [(0, 2, 3), (0, 3, 3), (0, 4, 3)]
        else: tiles = [(0, 3, 4), (0, 4, 4), (1, 3, 4), (1, 4, 4)]
        if var == 4:
            a('v_cmp_le_u32 vcc, 8, v6')
            a('v_subrev_u32 v8, 128, v2')
            a('v_cndmask_b32 v8, v2, v8, vcc')
        a_ = tiles[0][2]
        if var == 4:
            a('s_cmp_ge_u32 s%d, 2' % S_WAVE); a('s_cselect_b32 s%d, 8, 0' % S_T1)
            a('v_subrev_u32 v12, s%d, v6' % S_T1)
            a('v_cmp_gt_u32 vcc, 8, v12')
            a('v_mov_b32 v13, 54'); a('v_mov_b32 v15, 0x10000')
            a('v_cndmask_b32 v13, v15, v13, vcc')
        else:
            a('v_add_u32 v12, %d, v6' % (16 * a_))
            a('v_mul_u32_u24 v13, 3641, v12'); a('v_lshrrev_b32 v13, 16, v13'); a('v_mul_u32_u24 v13, 18, v13')
        bl = [t_[1] for t_ in tiles] + [0] * (4 - len(tiles))
        a('s_mov_b32 s%d, 0x%x' % (S_T1, sum(b << (8 * k) for k, b in enumerate(bl))))
        a('s_and_b32 s%d, s%d, 3' % (S_T2, S_WAVE)); a('s_lshl_b32 s%d, s%d, 3' % (S_T2, S_T2)); a('s_lshr_b32 s%d, s%d, s%d' % (S_T1, S_T1, S_T2)); a('s_and_b32 s%d, s%d, 0xff' % (S_T1, S_T1))
        a('s_lshl_b32 s%d, s%d, 4' % (S_T1, S_T1))
        a('v_lshlrev_b32 v12, 2, v7'); a('v_add_u32 v12, s%d, v12' % S_T1); a('v_sub_u32 v12, v12, v13')
        for r in range(4):
            a('v_add_u32 v13, %d, v12' % r)
            a('v_cmp_gt_u32 vcc, 18, v13')
            a('v_cndmask_b32 v%d, 0, 1.0, vcc' % (16 + r))
        a('s_cmp_lt_u32 s%d, %d' % (S_WAVE, len(tiles))); a('s_cselect_b32 s%d, 1.0, 0' % S_T1)
        for r in range(4): a('v_mul_f32 v%d, s%d, v%d' % (16 + r, S_T1, 16 + r))
        if wait_kv: wait_kv(a)
        lp = a.newlabel('Lwp'); lo_ = a.newlabel('Lwo')
        if tagged:
            a('s_mov_b32 s69, 0')
            for r in range(4): a('v_bfe_u32 v%d, s92, %d, 8' % (100 + r, 8 * r))
        a.label(lp)
        for q, (dh, b, a_) in enumerate(tiles):
            for rr in range(2):
                off = dh * 16 * KVP_BLK + rr * KVP_BLK + PIDX[(b, a_)] * 1024
                a('s_add_u32 s%d, s47, %d' % (S_T1, off))
                va = 8 if (var == 4 and dh == 1) else 2
                a('buffer_load_dwordx4 %s, v%d, s[64:67], s%d offen %s' % (vr(64 + 8 * q + 4 * rr, 4), va, S_T1, ld_flags))
        if tagged:
            a('s_add_u32 s69, s69, 1')
            n = 2 * len(tiles)
            for c in range(n):
                a('s_waitcnt vmcnt(%d)' % (n - 1 - c))
                for r in range(4): a('v_xor_b32 v%d, v%d, v%d' % (104 + r, 64 + 4 * c + r, 100 + r))
                if c == 0:
                    a('v_or3_b32 v108, v104, v105, v106'); a('v_or_b32 v108, v108, v107')
                else:
                    a('v_or3_b32 v108, v108, v104, v105'); a('v_or3_b32 v108, v108, v106, v107')
            a('v_and_b32 v108, 0xff, v108')
            a('v_cmp_ne_u32 vcc, 0, v108')
            a('s_cmp_ge_u32 s69, %d' % spin_max); a('s_cbranch_scc1 %s' % lo_)
            a('s_cmp_lg_u64 vcc, 0'); a('s_cbranch_scc1 %s' % lp)
            a.label(lo_)
            if stampf:
                stampf(a, 4); a('s_mov_b32 s85, s69')
        for q in range(len(tiles)):
            if not tagged: a('s_waitcnt vmcnt(%d)' % (2 * (len(tiles) - 1 - q)))
            for k in range(0, 4, 2): a('v_pk_add_f32 %s, %s, %s' % (vr(64 + 8 * q + k, 2), vr(64 + 8 * q + k, 2), vr(64 + 8 * q + 4 + k, 2)))
            a('ds_write_b128 v9, %s offset:%d' % (vr(64 + 8 * q, 4), LDS_W2_RED + q * 1024))
        a('s_branch %s' % end)
        a.label(nxt)
    a.label(end)
    a('s_waitcnt lgkmcnt(0)')
    a('s_barrier')
    if stampf: stampf(a, 5)
    skip = a.newlabel('Lw2skip')
    a('s_cmp_ge_u32 s%d, 4' % S_WAVE); a('s_cbranch_scc1 %s' % skip)
    for w in range(8): a('ds_read_b128 %s, v10 offset:%d' % (vr(64 + 4 * w, 4), LDS_W2_RED + w * 4096))
    for w in range(1, 8):
        a('s_waitcnt lgkmcnt(%d)' % (7 - w))
        for k in range(0, 4, 2): a('v_pk_add_f32 %s, %s, %s' % (vr(64 + k, 2), vr(64 + k, 2), vr(64 + 4 * w + k, 2)))
    for r in range(4):
        a('v_cmp_neq_f32 vcc, 0, v%d' % (16 + r))
        a('v_cndmask_b32 v%d, 0, v%d, vcc' % (64 + r, 64 + r))
    a('v_cvt_pk_bf16_f32 v68, v64, v65'); a('v_cvt_pk_bf16_f32 v69, v66, v67')
    a('ds_write_b64 v11, v[68:69] offset:%d' % LDS_W2_AF)
    a.label(skip)
    a('s_waitcnt vmcnt(0) lgkmcnt(0)')
    a('s_barrier')
    if stampf: stampf(a, 7)
    a('ds_read_b128 v[64:67], v2 offset:%d' % LDS_W2_AF)
    a('ds_read_b128 v[68:71], v2 offset:%d' % (LDS_W2_AF + 1024))
    for k in range(5):
        for u in range(2):
            for h in range(2):
                a('ds_read_b64_tr_b16 %s, v14 offset:%d' % (vr(72 + 8 * k + 4 * u + 2 * h, 2), (u * 32 + h * 16) * W2_PITCH + 256 * k))
    for k in range(5):
        if k == 4:
            skip = a.newlabel('Lw2t'); a('s_cmp_ge_u32 s%d, 4' % S_WAVE); a('s_cbranch_scc1 %s' % skip)
        a('s_waitcnt lgkmcnt(%d)' % min(15, 4 * (4 - k) + 2))
        a('v_mfma_f32_16x16x32_bf16 %s, v[64:67], %s, 0' % (vr(120 + 4 * k, 4), vr(72 + 8 * k, 4)))
        a('s_waitcnt lgkmcnt(%d)' % min(15, 4 * (4 - k)))
        a('v_mfma_f32_16x16x32_bf16 %s, v[68:71], %s, %s' % (vr(120 + 4 * k, 4), vr(76 + 8 * k, 4), vr(120 + 4 * k, 4)))
        if k == 4: a.label(skip)
    for k in range(5):
        if k == 4:
            skip = a.newlabel('Lw2s'); a('s_cmp_ge_u32 s%d, 4' % S_WAVE); a('s_cbranch_scc1 %s' % skip)
        a('v_cvt_pk_bf16_f32 v%d, v%d, v%d' % (140 + 2 * k, 120 + 4 * k, 121 + 4 * k)); a('v_cvt_pk_bf16_f32 v%d, v%d, v%d' % (141 + 2 * k, 122 + 4 * k, 123 + 4 * k))
        a('s_add_u32 s%d, s46, %d' % (S_T1, k * 8 * 18 * 1024))
        a('buffer_store_dwordx2 %s, v2, s[64:67], s%d offen %s' % (vr(140 + 2 * k, 2), S_T1, st_flags))
        if k == 4: a.label(skip)

OUT_STG = 30720
OUT_NSLOT = 5
OUT_DUM = OUT_STG * OUT_NSLOT
LDS_OUT = OUT_DUM + 1024
def out_setup(a):
    for k in range(4):
        a('s_add_u32 s%d, s%d, %d' % (S_T0, S_WAVE, 8 * k))
        a('s_min_u32 s%d, s%d, 29' % (S_T0, S_T0))
        a('s_mul_i32 s%d, s%d, 6554' % (S_T1, S_T0)); a('s_lshr_b32 s%d, s%d, 16' % (S_T1, S_T1))
        a('s_mul_i32 s%d, s%d, 10' % (S_T2, S_T1)); a('s_sub_u32 s%d, s%d, s%d' % (S_T2, S_T0, S_T2))
        a('s_lshl_b32 s44, s29, 2'); a('s_add_u32 s44, s44, s%d' % S_T2); a('s_mul_i32 s44, s44, 18432'); a('s_add_u32 s44, s44, %d' % WS_PN)
        a('s_mul_i32 s45, s30, 6'); a('s_add_u32 s45, s45, s%d' % S_T2); a('s_mul_i32 s45, s45, 18432'); a('s_add_u32 s45, s45, %d' % (WS_W2T - 4 * 18432))
        a('s_cmp_lt_u32 s%d, 4' % S_T2); a('s_cselect_b32 s44, s44, s45')
        a('s_lshl_b32 s%d, s%d, 10' % (S_T1, S_T1)); a('s_add_u32 s%d, s44, s%d' % (60 + k, S_T1))
    a('v_lshlrev_b32 v2, 4, v0')
    a('s_lshl_b32 s44, s%d, 10' % S_WAVE)
    a('s_cmp_ge_u32 s%d, 6' % S_WAVE); a('s_cselect_b32 s45, 1, 0')
    a('s_and_b32 s%d, s%d, 3' % (S_T0, S_WAVE)); a('s_lshl_b32 s%d, s%d, 10' % (S_T0, S_T0)); a('v_add_u32 v10, s%d, v2' % S_T0)
    a('s_lshr_b32 s%d, s%d, 2' % (S_T0, S_WAVE)); a('s_mul_i32 s%d, s%d, 3072' % (S_T0, S_T0)); a('s_add_u32 s%d, s%d, 4096' % (S_T0, S_T0)); a('v_add_u32 v11, s%d, v2' % S_T0)
    srd(a, 52, P_OUT, S * 1152 * 2)
    a('v_and_b32 v3, 15, v0'); a('v_lshrrev_b32 v4, 4, v0')
    a('s_and_b32 s%d, s%d, 3' % (S_T0, S_WAVE)); a('s_lshl_b32 s%d, s%d, 4' % (S_T0, S_T0)); a('v_add_u32 v3, s%d, v3' % S_T0)
    a('v_mul_u32_u24 v3, %d, v3' % OUT_PITCH); a('v_lshl_add_u32 v3, v4, 3, v3')
    a('s_lshr_b32 s%d, s%d, 2' % (S_T0, S_WAVE)); a('s_mul_i32 s%d, s%d, 96' % (S_T0, S_T0)); a('v_add_u32 v14, s%d, v3' % S_T0)
    for k in range(2):
        a('s_lshl_b32 s%d, s%d, 6' % (S_T0, S_WAVE)); a('s_add_u32 s%d, s%d, %d' % (S_T0, S_T0, 512 * k))
        a('v_add_u32 v5, s%d, v0' % S_T0)
        a('v_mul_u32_u24 v6, 5462, v5'); a('v_lshrrev_b32 v6, 16, v6')
        a('v_mul_u32_u24 v7, 12, v6'); a('v_sub_u32 v7, v5, v7')
        a('v_mul_u32_u24 v8, %d, v6' % OUT_PITCH); a('v_lshl_add_u32 v%d, v7, 4, v8' % (16 + 2 * k))
        a('s_lshl_b32 s%d, s29, 6' % S_T0); a('v_add_u32 v6, s%d, v6' % S_T0)
        a('v_mul_u32_u24 v6, 2304, v6'); a('v_lshl_add_u32 v%d, v7, 4, v6' % (17 + 2 * k))
    a('s_mul_i32 s46, s30, 192')

def out_dma(a, st, ld_flags):
    slot = (st % OUT_NSLOT) * OUT_STG
    for k in range(4):
        if k < 3:
            a('s_add_u32 m0, s44, %d' % (slot + k * 8192))
        else:
            a('s_add_u32 m0, s44, %d' % (slot + k * 8192))
            a('s_cmp_eq_u32 s45, 0'); a('s_cselect_b32 m0, m0, %d' % OUT_DUM)
        a('s_add_u32 s%d, s%d, %d' % (S_T0, 60 + k, st * 3072))
        a('buffer_load_dwordx4 v2, s[64:67], s%d offen %s lds' % (S_T0, ld_flags))

def out_main(a, ld_flags='', wait_in=None, stampf=None):
    NST = 6
    ACC = 64
    if wait_in: wait_in(a)
    out_dma(a, 0, ld_flags); a('s_barrier')
    out_dma(a, 1, ld_flags); a('s_barrier')
    out_dma(a, 2, ld_flags)
    if stampf: stampf(a, 1)
    issued = 3
    lg = LG(a)
    F = 80
    for st in range(NST):
        a('s_waitcnt vmcnt(%d)' % (4 * (issued - 1 - st)))
        a('s_barrier')
        if stampf and st in (0, 1, 3, 5): stampf(a, {0: 2, 1: 3, 3: 4, 5: 5}[st]); lg.done = lg.n
        slot = (st % OUT_NSLOT) * OUT_STG
        a('v_add_u32 v12, %d, v10' % slot); a('v_add_u32 v13, %d, v11' % slot)
        def rd(kk):
            s_ = F + 16 * (kk % 2)
            lg.issue('ds_read_b128 %s, v12 offset:%d' % (vr(s_, 4), kk * 10240), [('b', st, kk)])
            for t in range(3): lg.issue('ds_read_b128 %s, v13 offset:%d' % (vr(s_ + 4 + 4 * t, 4), kk * 10240 + t * 1024), [('a', st, kk, t)])
        rd(0); rd(1)
        if issued < NST:
            out_dma(a, issued, ld_flags); issued += 1
        for kk in range(3):
            s_ = F + 16 * (kk % 2)
            for t in range(3):
                lg.wait([('b', st, kk), ('a', st, kk, t)])
                a('v_mfma_f32_16x16x32_bf16 %s, %s, %s, %s' % (vr(ACC + 4 * t, 4), vr(s_ + 4 + 4 * t, 4), vr(s_, 4), vr(ACC + 4 * t, 4) if (st or kk) else '0'))
            if kk == 0: rd(2)
        lg.waitall()

OUT_PITCH = 208
def out_epilogue(a, st_flags=''):
    ACC = 64
    for t in range(3):
        a('v_cvt_pk_bf16_f32 v%d, v%d, v%d' % (80 + 2 * t, ACC + 4 * t, ACC + 4 * t + 1))
        a('v_cvt_pk_bf16_f32 v%d, v%d, v%d' % (81 + 2 * t, ACC + 4 * t + 2, ACC + 4 * t + 3))
    for t in range(3): a('ds_write_b64 v14, %s offset:%d' % (vr(80 + 2 * t, 2), 2 * OUT_STG + 32 * t))
    a('s_waitcnt lgkmcnt(0)')
    a('s_barrier')
    a('ds_read_b128 v[88:91], v16 offset:%d' % (2 * OUT_STG))
    skip = a.newlabel('Lout'); a('s_cmp_ge_u32 s%d, 4' % S_WAVE); a('s_cbranch_scc1 %s' % skip)
    a('ds_read_b128 v[92:95], v18 offset:%d' % (2 * OUT_STG))
    a('s_waitcnt lgkmcnt(0)')
    a('buffer_store_dwordx4 v[92:95], v19, s[52:55], s46 offen %s' % st_flags)
    a.label(skip)
    a('s_waitcnt lgkmcnt(0)')
    a('buffer_store_dwordx4 v[88:91], v17, s[52:55], s46 offen %s' % st_flags)
for q in range(768): assert (q * 5462) >> 16 == q // 12
for f in range(30): assert (f * 6554) >> 16 == f // 10


O2_P = 64
O2_R = 136
O2_ACC = 24
O2_A = 40
O2_S = 168
LDS_OUT2 = 108 * 1024 + 4 * 1024
def out2_setup(a):
    a('v_lshlrev_b32 v2, 4, v0')
    a('s_lshl_b32 s44, s%d, 10' % S_WAVE)
    a('s_mul_i32 s45, s29, %d' % (4 * 18432)); a('s_add_u32 s45, s45, s44'); a('s_add_u32 s45, s45, %d' % WS_PN)
    a('s_and_b32 s%d, s%d, 3' % (S_T0, S_WAVE)); a('s_mul_i32 s%d, s%d, 18432' % (S_T1, S_T0)); a('v_add_u32 v10, s%d, v2' % S_T1)
    a('s_lshl_b32 s%d, s29, 6' % S_T1); a('s_lshl_b32 s%d, s%d, 4' % (S_T0, S_T0)); a('s_add_u32 s%d, s%d, s%d' % (S_T0, S_T0, S_T1))
    a('v_and_b32 v3, 15, v0'); a('v_add_u32 v3, s%d, v3' % S_T0); a('v_lshlrev_b32 v12, 4, v3'); a('v_add_u32 v12, %d, v12' % WS_RD)
    a('s_mul_i32 s46, s30, %d' % (6 * 18432)); a('s_add_u32 s46, s46, %d' % WS_W2T)
    a('s_lshr_b32 s%d, s%d, 2' % (S_T0, S_WAVE)); a('s_mul_i32 s%d, s%d, 3072' % (S_T0, S_T0)); a('v_add_u32 v11, s%d, v2' % S_T0)
    srd(a, 52, P_OUT, S * 1152 * 2)
    a('v_and_b32 v3, 15, v0'); a('v_lshrrev_b32 v4, 4, v0')
    a('s_and_b32 s%d, s%d, 3' % (S_T0, S_WAVE)); a('s_lshl_b32 s%d, s%d, 4' % (S_T0, S_T0)); a('v_add_u32 v3, s%d, v3' % S_T0)
    a('v_mul_u32_u24 v3, %d, v3' % OUT_PITCH); a('v_lshl_add_u32 v3, v4, 3, v3')
    a('s_lshr_b32 s%d, s%d, 2' % (S_T0, S_WAVE)); a('s_mul_i32 s%d, s%d, 96' % (S_T0, S_T0)); a('v_add_u32 v14, s%d, v3' % S_T0)
    for k in range(2):
        a('s_lshl_b32 s%d, s%d, 6' % (S_T0, S_WAVE)); a('s_add_u32 s%d, s%d, %d' % (S_T0, S_T0, 512 * k))
        a('v_add_u32 v5, s%d, v0' % S_T0)
        a('v_mul_u32_u24 v6, 5462, v5'); a('v_lshrrev_b32 v6, 16, v6')
        a('v_mul_u32_u24 v7, 12, v6'); a('v_sub_u32 v7, v5, v7')
        a('v_mul_u32_u24 v8, %d, v6' % OUT_PITCH); a('v_lshl_add_u32 v%d, v7, 4, v8' % (16 + 2 * k))
        a('s_lshl_b32 s%d, s29, 6' % S_T0); a('v_add_u32 v6, s%d, v6' % S_T0)
        a('v_mul_u32_u24 v6, 2304, v6'); a('v_lshl_add_u32 v%d, v7, 4, v6' % (17 + 2 * k))
    a('s_mul_i32 s47, s30, 192')
    for r in range(4): a('v_bfe_u32 v%d, s92, %d, 8' % (20 + r, 8 * r))

def out2_w2_dma(a, ld_flags):
    for k in range(14):
        a('s_add_u32 s%d, s%d, %d' % (S_T0, S_WAVE, 8 * k))
        if k == 13: a('s_min_u32 s%d, s%d, 107' % (S_T0, S_T0))
        a('s_mul_i32 s%d, s%d, 10923' % (S_T1, S_T0)); a('s_lshr_b32 s%d, s%d, 16' % (S_T1, S_T1))
        a('s_mul_i32 s%d, s%d, 6' % (S_T2, S_T1)); a('s_sub_u32 s%d, s%d, s%d' % (S_T2, S_T0, S_T2))
        a('s_mul_i32 s%d, s%d, 18' % (S_T2, S_T2)); a('s_add_u32 s%d, s%d, s%d' % (S_T2, S_T2, S_T1)); a('s_lshl_b32 s%d, s%d, 10' % (S_T2, S_T2))
        a('s_add_u32 s%d, s%d, s46' % (S_T2, S_T2))
        a('s_add_u32 m0, s44, %d' % (k * 8192))
        a('s_nop 0')
        a('buffer_load_dwordx4 v2, s[64:67], s%d offen %s lds' % (S_T2, ld_flags))
for f in range(112): assert (f * 10923) >> 16 == f // 6

def out2_pre(a, ld_flags, wait_pq, spin_max, stampf=None):
    wait_pq(a)
    for k in range(9):
        a('s_add_u32 m0, s44, %d' % (k * 8192))
        a('s_add_u32 s%d, s45, %d' % (S_T0, k * 8192))
        a('buffer_load_dwordx4 v2, s[64:67], s%d offen %s lds' % (S_T0, ld_flags))
    lp = a.newlabel('Lrp'); lo_ = a.newlabel('Lro')
    a('s_mov_b32 s69, 0')
    a.label(lp)
    for h in range(8):
        a('s_mov_b32 s%d, %d' % (S_T0, h * 32768))
        a('buffer_load_dwordx4 %s, v12, s[64:67], s%d offen %s' % (vr(O2_R + 4 * h, 4), S_T0, ld_flags))
    a('s_add_u32 s69, s69, 1')
    for h in range(8):
        a('s_waitcnt vmcnt(%d)' % (7 - h))
        for r in range(4): a('v_xor_b32 v%d, v%d, v%d' % (4 + r, O2_R + 4 * h + r, 20 + r))
        if h == 0:
            a('v_or3_b32 v8, v4, v5, v6'); a('v_or_b32 v8, v8, v7')
        else:
            a('v_or3_b32 v8, v8, v4, v5'); a('v_or3_b32 v8, v8, v6, v7')
    a('v_and_b32 v8, 0xff, v8')
    a('v_cmp_ne_u32 vcc, 0, v8')
    a('s_cmp_ge_u32 s69, %d' % spin_max); a('s_cbranch_scc1 %s' % lo_)
    a('s_cmp_lg_u64 vcc, 0'); a('s_cbranch_scc1 %s' % lp)
    a.label(lo_)
    if stampf: stampf(a, 5)
    a('s_barrier')
    for j in range(18): a('ds_read_b128 %s, v10 offset:%d' % (vr(O2_P + 4 * j, 4), j * 1024))
    a('s_mov_b64 s[48:49], 0xffff'); a('s_mov_b32 s50, -1'); a('s_mov_b32 s51, 0')
    def R(h): return O2_R + h
    sc = {}
    n = O2_S
    for hg in range(8):
        h0, h1, h2, h3 = (R(4 * hg + i) for i in range(4))
        a('v_cndmask_b32 v%d, v%d, v%d, s[48:49]' % (n + 0, h1, h0))
        a('v_cndmask_b32 v%d, v%d, v%d, s[48:49]' % (n + 1, h2, h1))
        a('v_cndmask_b32 v%d, v%d, v%d, s[50:51]' % (n + 2, h3, h2))
        a('v_cndmask_b32 v%d, v%d, v%d, s[48:49]' % (n + 3, h3, h2))
        sc[(hg, 0)] = [h0, h0, n + 0, h1]
        sc[(hg, 1)] = [n + 1, n + 1, n + 2, n + 3]
        n += 4
    mg = {}
    for G in range(4):
        a('v_cndmask_b32 v%d, v%d, v%d, s[50:51]' % (n, R(4 * (2 * G + 1) + 3), R(4 * (2 * G) + 3)))
        mg[G] = n; n += 1
    assert n <= 204
    a('s_waitcnt lgkmcnt(0)')
    a('s_barrier')
    return sc, mg

def out2_scale(a, sc, mg):
    a('s_mov_b32 s58, 0xffff0000')
    T = 206
    for j in range(18):
        if j < 16:
            G = j >> 2; nw = (j >> 1) & 1; s4 = sc[(2 * G + nw, j & 1)]
        else:
            G0 = 2 * (j - 16); s4 = [mg[G0], mg[G0], mg[G0 + 1], mg[G0 + 1]]
        for d in range(4):
            p = O2_P + 4 * j + d; t = T + 2 * d
            a('v_lshlrev_b32 v%d, 16, v%d' % (t, p)); a('v_and_b32 v%d, s58, v%d' % (t + 1, p))
        for d in range(4):
            t = T + 2 * d; sreg = s4[d]
            if sreg % 2 == 0: a('v_pk_mul_f32 %s, %s, %s op_sel_hi:[1,0]' % (vr(t, 2), vr(t, 2), vr(sreg, 2)))
            else: a('v_pk_mul_f32 %s, %s, %s op_sel:[0,1] op_sel_hi:[1,1]' % (vr(t, 2), vr(t, 2), vr(sreg - 1, 2)))
        for d in range(4):
            p = O2_P + 4 * j + d; t = T + 2 * d
            a('v_cvt_pk_bf16_f32 v%d, v%d, v%d' % (p, t, t + 1))

def out2_main(a):
    lg = LG(a)
    for c in range(3):
        a('s_waitcnt vmcnt(%d)' % (9, 5, 0)[c])
        a('s_barrier')
        def rd(j):
            s_ = O2_A + 12 * (j % 2)
            for t in range(3): lg.issue('ds_read_b128 %s, v%d offset:%d' % (vr(s_ + 4 * t, 4), 11 if j < 9 else 9, (j if j < 9 else j - 9) * 6144 + t * 1024), [('a', j, t)])
        if c == 0: a('v_add_u32 v9, %d, v11' % (9 * 6144))
        j0 = 6 * c
        rd(j0)
        for j in range(j0, j0 + 6):
            if j + 1 < j0 + 6: rd(j + 1)
            s_ = O2_A + 12 * (j % 2)
            for t in range(3):
                lg.wait([('a', j, t)])
                a('v_mfma_f32_16x16x32_bf16 %s, %s, %s, %s' % (vr(O2_ACC + 4 * t, 4), vr(s_ + 4 * t, 4), vr(O2_P + 4 * j, 4), vr(O2_ACC + 4 * t, 4) if j else '0'))

O2_STG = 110592 + 1024
def out2_epilogue(a, st_flags=''):
    for t in range(3):
        a('v_cvt_pk_bf16_f32 v%d, v%d, v%d' % (80 + 2 * t, O2_ACC + 4 * t, O2_ACC + 4 * t + 1))
        a('v_cvt_pk_bf16_f32 v%d, v%d, v%d' % (81 + 2 * t, O2_ACC + 4 * t + 2, O2_ACC + 4 * t + 3))
    for r in (14, 16, 18): a('v_add_u32 v%d, %d, v%d' % (r, O2_STG + 4096, r))
    for t in range(3): a('ds_write_b64 v14, %s offset:%d' % (vr(80 + 2 * t, 2), 32 * t))
    a('s_waitcnt lgkmcnt(0)')
    a('s_barrier')
    a('ds_read_b128 v[88:91], v16')
    skip = a.newlabel('Lout'); a('s_cmp_ge_u32 s%d, 4' % S_WAVE); a('s_cbranch_scc1 %s' % skip)
    a('ds_read_b128 v[92:95], v18')
    a('s_waitcnt lgkmcnt(0)')
    a('buffer_store_dwordx4 v[92:95], v19, s[52:55], s47 offen %s' % st_flags)
    a.label(skip)
    a('s_waitcnt lgkmcnt(0)')
    a('buffer_store_dwordx4 v[88:91], v17, s[52:55], s47 offen %s' % st_flags)
LDS_OUT2 = O2_STG + 4096 + 64 * OUT_PITCH
```

```python
import sys
from common import *
import common, gemm1, w2out, bpart

S_NONCE = 70
S_X, S_SLOT = 71, 72
F_U, F_KV, F_PN, F_W2, F_Y = 0, 64, 192, 256, 320
ST = 'sc1'; LD = 'sc1'
SPIN_MAX = 100000
PREFETCH = True
ROT = True
OUTV2 = False
OUTST = 'sc1'
MAINONLY = NOQ = NOB = False
IDLEPF = False
ROTMODE = 'full'
CODE_END = 'Lcode_end'
SRD_F = 64

def nonce_publish(a):
    l = a.newlabel('Lnpub')
    a('s_or_b32 s68, s2, s%d' % S_WAVE); a('s_cmp_eq_u32 s68, 0'); a('s_cbranch_scc0 %s' % l)
    srd(a, 60, P_DBG, 256)
    a('s_memrealtime s[68:69]'); a('v_mov_b32 v240, 0'); a('s_waitcnt lgkmcnt(0)')
    a('s_or_b32 s68, s68, 1')
    a('v_mov_b32 v241, s68')
    a('s_mov_b64 s[68:69], exec'); a('s_mov_b64 exec, 1')
    a('buffer_store_dword v241, v240, s[60:63], 0 offen sc1')
    a('s_mov_b64 exec, s[68:69]')
    a.label(l)

def nonce_issue(a):
    l = a.newlabel('Lni')
    a('s_cmp_eq_u32 s%d, 0' % S_WAVE); a('s_cbranch_scc0 %s' % l)
    srd(a, 60, P_DBG, 256)
    a('v_mov_b32 v240, 0')
    a('buffer_load_dword v239, v240, s[60:63], 0 offen sc1')
    a.label(l)

def nonce_finish(a):
    l = a.newlabel('Lnf'); p = a.newlabel('Lnq')
    a('s_cmp_eq_u32 s%d, 0' % S_WAVE); a('s_cbranch_scc0 %s' % l)
    srd(a, 60, P_DBG, 256)
    a('s_mov_b32 s69, 0'); a('v_mov_b32 v240, 0')
    a('s_waitcnt vmcnt(0)')
    a('v_readfirstlane_b32 s%d, v239' % S_NONCE)
    a('s_cmp_lg_u32 s%d, 0' % S_NONCE); a('s_cbranch_scc1 %s' % l)
    a.label(p)
    a('buffer_load_dword v239, v240, s[60:63], 0 offen sc1')
    a('s_add_u32 s69, s69, 1')
    a('s_waitcnt vmcnt(0)')
    a('v_readfirstlane_b32 s%d, v239' % S_NONCE)
    a('s_cmp_ge_u32 s69, %d' % SPIN_MAX); a('s_cbranch_scc1 %s' % l)
    a('s_cmp_eq_u32 s%d, 0' % S_NONCE)
    a('s_cbranch_scc1 %s' % p)
    a.label(l)

def nonce_issue_all(a):
    srd(a, 60, P_DBG, 256)
    a('v_mov_b32 v240, 0')
    a('buffer_load_dword v239, v240, s[60:63], 0 offen sc1')

def nonce_finish_all(a):
    l = a.newlabel('Lnf'); p = a.newlabel('Lnq')
    a('s_waitcnt vmcnt(0)')
    a('v_readfirstlane_b32 s%d, v239' % S_NONCE)
    a('s_cmp_lg_u32 s%d, 0' % S_NONCE); a('s_cbranch_scc1 %s' % l)
    srd(a, 60, P_DBG, 256)
    a('s_mov_b32 s69, 0'); a('v_mov_b32 v240, 0')
    a.label(p)
    a('buffer_load_dword v239, v240, s[60:63], 0 offen sc1')
    a('s_add_u32 s69, s69, 1')
    a('s_waitcnt vmcnt(0)')
    a('v_readfirstlane_b32 s%d, v239' % S_NONCE)
    a('s_cmp_ge_u32 s69, %d' % SPIN_MAX); a('s_cbranch_scc1 %s' % l)
    a('s_cmp_eq_u32 s%d, 0' % S_NONCE)
    a('s_cbranch_scc1 %s' % p)
    a.label(l)

def tag_ready(a):
    l = a.newlabel('Ltr')
    a('v_readfirstlane_b32 s%d, v239' % S_NONCE)
    a('s_cmp_lg_u32 s%d, 0' % S_NONCE); a('s_cbranch_scc1 %s' % l)
    nonce_issue_all(a); nonce_finish_all(a)
    a.label(l)
    a('s_mul_i32 s92, s%d, 0x9E3779B1' % S_NONCE)

def hint(a, idx_sgpr_expr):
    l = a.newlabel('Lhint')
    a('s_cmp_eq_u32 s%d, 0' % S_WAVE); a('s_cbranch_scc0 %s' % l)
    idx_sgpr_expr(a)
    a('s_lshl_b32 s68, s68, 7'); a('s_add_u32 s68, s68, %d' % WS_FLAG)
    a('v_mov_b32 v240, 0'); a('v_mov_b32 v241, s%d' % S_NONCE)
    a('s_mov_b64 exec, 1')
    a('buffer_store_dword v241, v240, s[%d:%d], s68 offen sc1' % (SRD_F, SRD_F + 3))
    a('s_mov_b64 exec, -1')
    a.label(l)

def wave_wait_flags(a, lane_idx):
    l = a.newlabel('Lwf'); p = a.newlabel('Lwp')
    lane_idx(a)
    a('v_lshlrev_b32 v242, 7, v242'); a('v_add_u32 v242, %d, v242' % WS_FLAG)
    a('s_mov_b32 s69, 0')
    a.label(p)
    a('buffer_load_dword v243, v242, s[%d:%d], 0 offen sc1' % (SRD_F, SRD_F + 3))
    a('s_add_u32 s69, s69, 1')
    a('s_waitcnt vmcnt(0)')
    a('v_cmp_ne_u32 vcc, s%d, v243' % S_NONCE)
    a('s_cmp_ge_u32 s69, %d' % SPIN_MAX); a('s_cbranch_scc1 %s' % l)
    a('s_cmp_lg_u64 vcc, 0')
    a('s_cbranch_scc1 %s' % p)
    a.label(l)

PF = 238
def prefetch0(a):
    l_d = a.newlabel('Lpfd'); l_e = a.newlabel('Lpfe')
    a('s_and_b32 s56, s%d, 15' % S_SLOT); a('s_cmp_eq_u32 s56, 0'); a('s_cbranch_scc1 %s' % l_d)
    a('v_mov_b32 v3, 0'); a('buffer_load_dword v%d, v3, s[32:35], 0 offen' % PF)
    a('s_branch %s' % l_e)
    a.label(l_d)
    a('s_getpc_b64 s[56:57]')
    pcl = a.newlabel('Lpc'); a.label(pcl)
    a('s_lshl_b32 s59, s%d, 13' % S_WAVE)
    a('v_lshlrev_b32 v2, 7, v0'); a('v_add_u32 v2, s59, v2')
    a('v_min_u32 v2, %s - %s, v2' % (CODE_END, pcl))
    a('v_mov_b32 v5, s57'); a('v_add_co_u32 v4, vcc, s56, v2'); a('v_addc_co_u32 v5, vcc, 0, v5, vcc')
    a('global_load_dword v%d, v[4:5], off' % PF)
    a.label(l_e)
for q in range(7680): assert (q * 34953) >> 19 == q // 15
for q in range(15): assert (q * 13108) >> 16 == q // 5

def prefetch1(a, iskv):
    nonce_issue_all(a)

def idle_prefetch(a):
    a('s_sub_u32 s56, s73, 36'); a('s_lshl_b32 s56, s56, 3'); a('s_add_u32 s56, s56, s%d' % S_WAVE)
    a('v_and_b32 v3, 7, v0'); a('v_lshlrev_b32 v3, 21, v3')
    a('v_min_u32 v4, %d, v3' % (WS_END - 4))
    a('buffer_load_dword v%d, v4, s[%d:%d], 0 offen' % (PF, SRD_F, SRD_F + 3))
    srd(a, 60, P_OUT, S * 1152 * 2)
    a('v_min_u32 v4, %d, v3' % (S * 1152 * 2 - 4))
    a('buffer_load_dword v%d, v4, s[60:63], 0 offen' % PF)
    a('v_lshlrev_b32 v3, 7, v0')
    for ptr, nb, n in ((P_H, D * S * 2, 288), (P_WO, D * D * 2, 81), (P_Q, S * D * 2, 288)):
        srd(a, 60, ptr, nb)
        for k in range((n + 223) // 224):
            a('s_add_u32 s57, s56, %d' % (224 * k)); a('s_lshl_b32 s57, s57, 13')
            a('buffer_load_dword v%d, v3, s[60:63], s57 offen' % PF)

def publish(a, idx_sgpr_expr, lgkm=False):
    a('s_waitcnt vmcnt(0) lgkmcnt(0)' if lgkm else 's_waitcnt vmcnt(0)')
    a('s_barrier')
    l = a.newlabel('Lpub')
    a('s_cmp_eq_u32 s%d, 0' % S_WAVE); a('s_cbranch_scc0 %s' % l)
    idx_sgpr_expr(a)
    a('s_lshl_b32 s68, s68, 7'); a('s_add_u32 s68, s68, %d' % WS_FLAG)
    a('v_mov_b32 v240, 0'); a('v_mov_b32 v241, s%d' % S_NONCE)
    a('s_mov_b64 s[74:75], exec'); a('s_mov_b64 exec, 1')
    a('buffer_store_dword v241, v240, s[%d:%d], s68 offen sc1' % (SRD_F, SRD_F + 3))
    a('s_mov_b64 exec, s[74:75]')
    a.label(l)

def wait_flags(a, lane_idx):
    l = a.newlabel('Lwf'); p = a.newlabel('Lwp')
    a('s_cmp_eq_u32 s%d, 0' % S_WAVE); a('s_cbranch_scc0 %s' % l)
    lane_idx(a)
    a('v_lshlrev_b32 v242, 7, v242'); a('v_add_u32 v242, %d, v242' % WS_FLAG)
    a('s_mov_b32 s69, 0')
    a.label(p)
    a('buffer_load_dword v243, v242, s[%d:%d], 0 offen sc1' % (SRD_F, SRD_F + 3))
    a('s_add_u32 s69, s69, 1')
    a('s_waitcnt vmcnt(0)')
    a('v_cmp_ne_u32 vcc, s%d, v243' % S_NONCE)
    a('s_cmp_ge_u32 s69, %d' % SPIN_MAX); a('s_cbranch_scc1 %s' % l)
    a('s_cmp_lg_u64 vcc, 0')
    a('s_cbranch_scc1 %s' % p)
    a.label(l)
    a('s_barrier')

def rot_override(a):
    if not ROT or ROTMODE == 'none': a('s_mov_b32 s41, 0')
    elif ROTMODE == 'r3':
        a('s_and_b32 s41, s29, 3'); a('s_and_b32 s42, s30, 3'); a('s_add_u32 s41, s41, s42')
        a('s_cmp_ge_u32 s41, 3'); a('s_cselect_b32 s42, 3, 0'); a('s_sub_u32 s41, s41, s42')
        a('s_cmp_ge_u32 s41, 3'); a('s_cselect_b32 s42, 3, 0'); a('s_sub_u32 s41, s41, s42'); a('s_mul_i32 s41, s41, 3')
    elif ROTMODE == 'r2':
        a('s_and_b32 s41, s29, 1'); a('s_lshl_b32 s41, s41, 2')
    elif ROTMODE == 'rt':
        a('s_and_b32 s41, s29, 3'); a('s_lshl_b32 s41, s41, 1')

def k_persist(name):
    a = Asm()
    a('s_cmp_ge_u32 s2, 256'); a('s_cbranch_scc1 %s_end' % name)
    a('s_load_dwordx16 s[4:19], s[0:1], 0')
    a('s_load_dwordx8 s[20:27], s[0:1], 64')
    a('v_lshrrev_b32 v1, 6, v0')
    a('v_and_b32 v0, 63, v0')
    a('s_and_b32 s%d, s2, 7' % S_X); a('s_lshr_b32 s%d, s2, 3' % S_SLOT)
    a('v_readfirstlane_b32 s%d, v1' % S_WAVE)
    def kernarg_ready():
        a('s_waitcnt lgkmcnt(0)')
        stamp_init(a); stamp(a, 0)
        srd(a, SRD_F, P_WS, WS_END)
    L_Q, L_B, L_OUT, L_B3, L_END = [name + s_ for s_ in ('_q', '_b', '_out', '_b3', '_fin')]
    a('s_cmp_ge_u32 s%d, 24' % S_SLOT); a('s_cbranch_scc1 %s' % L_B)
    a('s_cmp_ge_u32 s%d, 16' % S_SLOT); a('s_cbranch_scc1 %s' % L_Q)
    EX = 3 if PREFETCH else 0
    a('s_and_b32 s41, s%d, 3' % S_X); a('s_lshl_b32 s41, s41, 2'); a('s_and_b32 s29, s%d, 3' % S_SLOT); a('s_add_u32 s29, s29, s41')
    a('s_lshr_b32 s41, s%d, 2' % S_X); a('s_lshl_b32 s41, s41, 2'); a('s_lshr_b32 s30, s%d, 2' % S_SLOT); a('s_add_u32 s30, s30, s41')
    a('s_and_b32 s41, s29, 3'); a('s_lshl_b32 s41, s41, 1'); a('s_and_b32 s42, s30, 3'); a('s_mul_i32 s42, s42, 3'); a('s_add_u32 s41, s41, s42')
    a('s_cmp_ge_u32 s41, 9'); a('s_cselect_b32 s42, 9, 0'); a('s_sub_u32 s41, s41, s42')
    rot_override(a)
    gemm1.gemm1_rot(a, 41)
    gemm1.gemm1_lanes(a, False)
    kernarg_ready()
    gemm1.gemm1_srds(a)
    L_KVNEXT = name + '_kvnext'; L_CONVMAIN = name + '_convmain'
    def idx_kv(a): a('s_lshl_b32 s68, s30, 4'); a('s_add_u32 s68, s68, s91'); a('s_add_u32 s68, s68, %d' % F_KV)
    def u_flag_lane(a):
        a('v_and_b32 v242, 31, v0'); a('s_bfe_u32 s68, s93, 0x10004'); a('s_lshl_b32 s68, s68, 5'); a('s_add_u32 s68, s68, %d' % F_U); a('v_add_u32 v242, s68, v242')
    def kv_shadow(a):
        def c0():
            a('s_lshl_b32 s73, s%d, 3' % S_SLOT); a('s_add_u32 s73, s73, s%d' % S_X)
            a('s_mov_b32 s91, s29')
            tag_ready(a)
        def c1():
            a('s_min_u32 s93, s73, 115'); a('s_add_u32 s93, s93, 28'); a('s_mov_b32 s29, s93')
            u_flag_lane(a)
            a('v_lshlrev_b32 v242, 7, v242'); a('v_add_u32 v242, %d, v242' % WS_FLAG)
            a('buffer_load_dword v243, v242, s[%d:%d], 0 offen sc1' % (SRD_F, SRD_F + 3))
        def c2():
            bpart.conv_issue(a)
            a('s_mov_b32 s29, s91')
        def c3():
            gemm1.kv_epi_setup(a)
        return [c0, c1, c2, c3]
    gemm1.gemm1_main(a, False, hook0=prefetch0, n0=1, hook1=lambda a: prefetch1(a, True), n1=1, hook_after_issue=nonce_publish, hook2=kv_shadow)
    stamp(a, 1)
    if MAINONLY: a('s_branch %s' % L_END)
    if getattr(common, 'DIAG_LOOP', False): common.stamp_raw(a, 6)
    lno = name + '_kvnoconv'; learly = a.newlabel('Learly'); llate = a.newlabel('Llate'); ljoin = a.newlabel('Ljoin'); lgo = a.newlabel('Lgo')
    a('s_cmp_ge_u32 s73, 116'); a('s_cbranch_scc1 %s' % lno)
    a('s_waitcnt vmcnt(5)')
    a('v_cmp_ne_u32 vcc, s%d, v243' % S_NONCE)
    a('s_cmp_eq_u64 vcc, 0'); a('s_cselect_b32 s95, 1, 0'); a('s_cbranch_scc0 %s' % llate)
    bpart.conv_u_dma(a, LD)
    a('s_branch %s' % lgo)
    a.label(llate)
    a('buffer_load_dword v243, v242, s[%d:%d], 0 offen sc1' % (SRD_F, SRD_F + 3))
    a.label(lgo)
    gemm1.kv_epilogue2(a, st_flags=ST, stampf=(lambda a, i: common.stamp_raw(a, i)) if getattr(common, 'DIAG2', False) else None)
    hint(a, idx_kv)
    if getattr(common, 'DIAG2', False): common.stamp_raw(a, 5)
    a('s_cmp_eq_u32 s95, 1'); a('s_cbranch_scc1 %s' % learly)
    lf2 = a.newlabel('Lf2')
    a('s_waitcnt vmcnt(2)')
    a('v_cmp_ne_u32 vcc, s%d, v243' % S_NONCE)
    a('s_cmp_eq_u64 vcc, 0'); a('s_cbranch_scc1 %s' % lf2)
    wave_wait_flags(a, u_flag_lane)
    a.label(lf2)
    bpart.conv_u_dma(a, LD)
    bpart.conv_copies(a, 0, waited=True)
    a('s_waitcnt vmcnt(0) lgkmcnt(0)')
    a('s_branch %s' % ljoin)
    a.label(learly)
    a('s_waitcnt vmcnt(4)')
    bpart.conv_copies(a, 0, waited=True)
    a('s_waitcnt vmcnt(2) lgkmcnt(0)')
    a.label(ljoin)
    a('s_barrier')
    if getattr(common, 'DIAG2', False): common.stamp_raw(a, 8)
    stamp(a, 2)
    a('s_branch %s' % L_CONVMAIN)
    a.label(lno)
    gemm1.kv_epilogue2(a, st_flags=ST)
    hint(a, idx_kv)
    a('s_barrier')
    stamp(a, 2)
    a.label(L_KVNEXT)
    a('s_cmp_ge_u32 s73, 64'); a('s_cbranch_scc1 %s' % L_B3)
    a('s_mov_b32 s59, s%d' % S_SLOT)
    a('s_branch %s' % L_OUT)
    a.label(L_Q)
    if NOQ: a('s_endpgm')
    a('s_and_b32 s41, s%d, 3' % S_X); a('s_lshl_b32 s41, s41, 2'); a('s_and_b32 s29, s%d, 3' % S_SLOT); a('s_add_u32 s29, s29, s41')
    a('s_lshr_b32 s41, s%d, 2' % S_X); a('s_lshl_b32 s41, s41, 1'); a('s_bfe_u32 s30, s%d, 0x10002' % S_SLOT); a('s_add_u32 s30, s30, s41')
    a('s_and_b32 s41, s29, 3'); a('s_lshl_b32 s41, s41, 1'); a('s_and_b32 s42, s30, 1'); a('s_lshl_b32 s42, s42, 2'); a('s_add_u32 s41, s41, s42'); a('s_add_u32 s41, s41, 1')
    a('s_cmp_ge_u32 s41, 9'); a('s_cselect_b32 s42, 9, 0'); a('s_sub_u32 s41, s41, s42')
    rot_override(a)
    gemm1.gemm1_rot(a, 41)
    gemm1.gemm1_lanes(a, True)
    kernarg_ready()
    gemm1.gemm1_srds(a)
    if PREFETCH: gemm1.gemm1_main(a, True, hook0=prefetch0, n0=1, hook1=lambda a: prefetch1(a, False), n1=1)
    else: gemm1.gemm1_main(a, True)
    stamp(a, 1)
    if MAINONLY: a('s_branch %s' % L_END)
    if getattr(common, 'DIAG_LOOP', False): common.stamp_raw(a, 6)
    tag_ready(a)
    def idx_pn(a): a('s_lshl_b32 s68, s29, 2'); a('s_add_u32 s68, s68, s30'); a('s_add_u32 s68, s68, %d' % F_PN)
    def wz(a):
        def li(a):
            a('v_and_b32 v242, 31, v0'); a('s_lshl_b32 s68, s30, 5'); a('s_add_u32 s68, s68, %d' % F_KV); a('v_add_u32 v242, s68, v242')
        stamp(a, 2)
        wait_flags(a, li)
        stamp(a, 3)
    if OUTV2:
        gemm1.q_epilogue2(a, ST, LD, lambda a: publish(a, idx_pn), wz, SPIN_MAX, stampf=(lambda a, i: common.stamp_raw(a, i)) if getattr(common, 'DIAG3', False) else None)
    else:
        gemm1.q_epilogue(a, st_flags=ST, ld_flags=LD, wait_z=wz, tagged=True, spin_max=SPIN_MAX)
        publish(a, idx_pn)
    stamp(a, 4)
    a('s_sub_u32 s59, s%d, 8' % S_SLOT)
    a('s_branch %s' % L_OUT)
    a.label(L_B)
    if NOB: a('s_endpgm')
    a('s_sub_u32 s73, s%d, 24' % S_SLOT); a('s_lshl_b32 s73, s73, 3'); a('s_add_u32 s73, s73, s%d' % S_X)
    kernarg_ready()
    L_NOB1 = name + '_nob1'; L_B1SKIP = name + '_b1skip'; L_B1JOIN = name + '_b1join'
    a('s_lshl_b32 s41, s%d, 6' % S_WAVE); a('s_add_u32 s41, s41, s73')
    a('s_cmp_ge_u32 s41, 288'); a('s_cbranch_scc1 %s' % L_B1SKIP)
    a('s_and_b32 s29, s41, 31'); a('s_lshr_b32 s30, s41, 5')
    bpart.b1_tile(a, st_flags=ST, hook_after_issue=nonce_issue_all, stampf=(lambda a, i: common.stamp_raw(a, i)) if getattr(common, 'DIAG4', False) else None)
    a('s_waitcnt vmcnt(8)')
    a('s_branch %s' % L_B1JOIN)
    a.label(L_B1SKIP)
    if IDLEPF: idle_prefetch(a)
    nonce_issue_all(a)
    a('s_waitcnt vmcnt(0)')
    a.label(L_B1JOIN)
    tag_ready(a)
    def idx_u(a): a('s_add_u32 s68, s73, %d' % F_U)
    a('s_cmp_ge_u32 s73, 36'); a('s_cbranch_scc1 %s' % L_NOB1)
    publish(a, idx_u)
    stamp(a, 1)
    a('s_mov_b32 s29, s73')
    w2out.w2_prefetch(a)
    def wkv(a):
        def li(a):
            a('v_and_b32 v242, 15, v0'); a('v_bfe_u32 v241, v0, 4, 1')
            a('s_cmp_eq_u32 s31, 4'); a('s_cselect_b32 s68, 16, 0')
            a('v_mul_u32_u24 v241, s68, v241'); a('v_add_u32 v242, v242, v241')
            a('s_lshl_b32 s68, s30, 4'); a('s_add_u32 s68, s68, %d' % F_KV); a('v_add_u32 v242, s68, v242')
        stamp(a, 2)
        wait_flags(a, li)
        stamp(a, 3)
    w2out.w2_main(a, st_flags=ST, ld_flags=LD, wait_kv=wkv, tagged=True, spin_max=SPIN_MAX, stampf=(lambda a, i: common.stamp_raw(a, i)) if getattr(common, 'DIAG3', False) else None)
    if getattr(common, 'DIAG3', False): common.stamp_raw(a, 8)
    def idx_w2(a): a('s_add_u32 s68, s73, %d' % F_W2)
    publish(a, idx_w2)
    stamp(a, 6)
    if getattr(common, 'DIAG3', False): common.stamp_raw(a, 6)
    a('s_sub_u32 s59, s%d, 8' % S_SLOT)
    a('s_branch %s' % L_OUT)
    a.label(L_NOB1)
    a('s_sub_u32 s93, s73, 36'); a('s_mov_b32 s29, s93')
    bpart.conv_issue(a)
    a('s_waitcnt vmcnt(0)')
    a('s_barrier')
    hint(a, idx_u)
    bpart.conv_copies(a, 0, waited=True)
    stamp(a, 4)
    wave_wait_flags(a, u_flag_lane)
    stamp(a, 5)
    bpart.conv_u_dma(a, LD)
    a('s_waitcnt vmcnt(0) lgkmcnt(0)'); a('s_barrier')
    a.label(L_CONVMAIN)
    bpart.conv_main(a, st_flags=ST)
    def idx_y(a): a('s_add_u32 s68, s93, %d' % F_Y)
    publish(a, idx_y)
    stamp(a, 6)
    a('s_cmp_lt_u32 s%d, 16' % S_SLOT); a('s_cbranch_scc1 %s' % L_KVNEXT)
    a('s_sub_u32 s59, s%d, 8' % S_SLOT)
    a.label(L_OUT)
    a('s_lshl_b32 s29, s%d, 2' % S_X); a('s_and_b32 s41, s59, 3'); a('s_add_u32 s29, s29, s41'); a('s_lshr_b32 s30, s59, 2')
    a('s_barrier')
    if OUTV2:
        w2out.out2_setup(a)
        def wpq(a):
            def li(a):
                a('s_lshr_b32 s68, s29, 1'); a('s_lshl_b32 s68, s68, 2'); a('s_add_u32 s68, s68, %d' % F_PN)
                a('v_and_b32 v242, 3, v0'); a('v_add_u32 v242, s68, v242')
            wait_flags(a, li)
            stamp(a, 5)
        def w2_lane(a):
            a('v_min_u32 v242, 35, v0'); a('v_add_u32 v242, %d, v242' % F_W2)
        sc, mg = w2out.out2_pre(a, LD, wpq, SPIN_MAX)
        stamp(a, 7)
        w2out.out2_scale(a, sc, mg)
        wait_flags(a, w2_lane)
        stamp(a, 8)
        w2out.out2_w2_dma(a, LD)
        w2out.out2_main(a)
        stamp(a, 9)
        w2out.out2_epilogue(a)
        a('s_branch %s' % L_END)
    else:
        w2out.out_setup(a)
        def wo_(a):
            def li(a):
                a('s_lshr_b32 s68, s29, 1'); a('s_lshl_b32 s68, s68, 2'); a('s_add_u32 s68, s68, %d' % F_PN)
                a('v_add_u32 v242, s68, v0')
                a('v_add_u32 v241, %d, v0' % (F_W2 - 4))
                a('v_cmp_le_u32 vcc, 4, v0'); a('v_cndmask_b32 v242, v242, v241, vcc')
                a('v_mov_b32 v241, s68')
                a('v_cmp_le_u32 vcc, 40, v0'); a('v_cndmask_b32 v242, v242, v241, vcc')
            stamp(a, 7)
            wait_flags(a, li)
            stamp(a, 8)
        w2out.out_main(a, ld_flags=LD, wait_in=wo_, stampf=(lambda a, i: common.stamp_raw(a, i)) if getattr(common, 'DIAG5', False) else None)
        stamp(a, 9)
        w2out.out_epilogue(a, st_flags=OUTST)
        a('s_branch %s' % L_END)
    a.label(L_B3)
    L_B3SKIP = name + '_b3skip'
    a('s_sub_u32 s58, s73, 64')
    a('s_lshl_b32 s41, s%d, 6' % S_WAVE); a('s_add_u32 s41, s41, s58')
    a('s_and_b32 s29, s41, 31'); a('s_lshr_b32 s30, s41, 5')
    a('s_barrier')
    a('s_cmp_ge_u32 s41, 288'); a('s_cbranch_scc1 %s' % L_END)
    def wy(a):
        def li(a):
            a('v_and_b32 v242, 15, v0'); a('s_lshl_b32 s68, s30, 4'); a('s_add_u32 s68, s68, %d' % F_Y); a('v_add_u32 v242, s68, v242')
        stamp(a, 7)
        wave_wait_flags(a, li)
        stamp(a, 8)
    bpart.b3_tile(a, ld_flags=LD, st_flags=OUTST, wait_y=wy)
    a.label(L_END)
    if common.STAMPS:
        a('s_waitcnt vmcnt(0)'); stamp(a, 10); stamp_flush(a, 0)
    a.label(name + '_end'); a('s_endpgm')
    a.label(CODE_END)
    return a

NAME = 'concat_heads__linear_attn_block__ssm_conv_h3__prompt_kernel'
def build():
    lds = max(gemm1.LDS_GEMM1, w2out.LDS_W2, w2out.LDS_OUT, w2out.LDS_OUT2, bpart.LDS_CONV, bpart.LDS_B3, bpart.LDS_B1)
    assert lds <= 163840
    a = k_persist(NAME)
    lines = fix_hazards(a.lines, verbose=True)
    hdr = '; concat_heads / linear attention block + H3 ssm conv : single persistent kernel (generated by gen/persist.py)\n'
    hdr += '; @launch grid=(256,1,1) block=(512,1,1) lds=%d\n' % lds
    return hdr + '.amdgcn_target "amdgcn-amd-amdhsa--gfx950"\n.text\n' + kernel_header(NAME) + '\n'.join(lines) + '\n' + kernel_desc(NAME)
if __name__ == '__main__':
    if 'nopf' in sys.argv: PREFETCH = False
    if 'norot' in sys.argv: ROT = False
    if 'v2' in sys.argv: OUTV2 = True
    if 'osc1' in sys.argv: OUTST = 'sc1'
    if 'ont' in sys.argv: OUTST = 'nt'
    if 'osc01' in sys.argv: OUTST = 'sc0 sc1'
    if 'mainonly' in sys.argv: MAINONLY = True
    if 'noq' in sys.argv: NOQ = True
    if 'nob' in sys.argv: NOB = True
    if 'noidle' in sys.argv: IDLEPF = False
    if 'idle' in sys.argv: IDLEPF = True
    for m_ in ('r3', 'r2', 'rt', 'none'):
        if m_ in sys.argv: ROTMODE = m_
    if 'diag' in sys.argv: common.DIAG_LOOP = True
    if 'diag2' in sys.argv: common.DIAG2 = True
    if 'diag3' in sys.argv: common.DIAG3 = True
    if 'diag4' in sys.argv: common.DIAG4 = True
    if 'diag5' in sys.argv: common.DIAG5 = True
    if len(sys.argv) > 2 and sys.argv[2] in ('rt', 'cyc'):
        common.STAMPS = True
        if sys.argv[2] == 'cyc': common.STAMP_OP = 's_memtime'
    open(sys.argv[1], 'w').write(build())
```

```python
from common import *
S_T0, S_T1, S_T2 = 41, 42, 43

LDS_B1 = 8 * 8192
def b1_tile(a, st_flags='', hook_after_issue=None, stampf=None):
    KR, VR, SK = 64, 108, 140
    a('v_and_b32 v2, 7, v0'); a('v_lshrrev_b32 v3, 3, v0')
    a('s_lshl_b32 s%d, s29, 6' % S_T0); a('v_lshlrev_b32 v4, 3, v3'); a('v_add_u32 v4, s%d, v4' % S_T0)
    a('v_mul_u32_u24 v4, 1152, v4'); a('v_lshlrev_b32 v5, 4, v2'); a('v_add_u32 v4, v4, v5')
    a('s_lshl_b32 s%d, s30, 7' % S_T0); a('v_add_u32 v4, s%d, v4' % S_T0)
    a('v_subrev_u32 v6, %d, v4' % (3 * 1152))
    a('s_lshl_b32 s%d, s30, 9' % S_T0); a('v_lshlrev_b32 v7, 6, v2'); a('v_add_u32 v7, s%d, v7' % S_T0)
    srd(a, 32, P_K, S * D * 2)
    for j in range(11):
        if j < 3:
            a('v_add_u32 v8, %d, v6' % (j * 1152))
            a('buffer_load_dwordx4 %s, v8, s[32:35], 0 offen' % vr(KR + 4 * j, 4))
        else:
            a('s_movk_i32 s%d, %d' % (S_T0, (j - 3) * 1152))
            a('buffer_load_dwordx4 %s, v4, s[32:35], s%d offen' % (vr(KR + 4 * j, 4), S_T0))
    srd(a, 52, P_SK, D * 8)
    for k in range(4): a('buffer_load_dwordx4 %s, v7, s[52:55], 0 offen offset:%d' % (vr(SK + 4 * k, 4), 16 * k))
    srd(a, 36, P_V, S * D * 2)
    for j in range(8):
        a('s_movk_i32 s%d, %d' % (S_T0, j * 1152))
        a('buffer_load_dwordx4 %s, v4, s[36:39], s%d offen' % (vr(VR + 4 * j, 4), S_T0))
    nh = 0
    if hook_after_issue: hook_after_issue(a); nh = 1
    a('s_mov_b32 s44, 0xffff0000')
    a('v_xor_b32 v9, v2, v3'); a('v_lshlrev_b32 v9, 4, v9'); a('v_lshl_add_u32 v9, v3, 7, v9')
    a('s_lshl_b32 s45, s%d, 13' % S_WAVE); a('v_add_u32 v9, s45, v9')
    a('v_lshlrev_b32 v10, 10, v3'); a('v_lshl_add_u32 v10, v2, 7, v10'); a('v_add_u32 v10, s45, v10')
    a('v_lshlrev_b32 v11, 12, v3'); a('v_lshl_add_u32 v11, v2, 4, v11')
    a('s_lshl_b32 s%d, s30, 18' % S_T0); a('s_lshl_b32 s%d, s29, 7' % S_T1); a('s_add_u32 s%d, s%d, s%d' % (S_T0, S_T0, S_T1)); a('s_add_u32 s46, s%d, %d' % (S_T0, WS_UT))
    T = 160
    TP, KP, KS, U = T, T + 8, T + 30, T + 46
    a('s_waitcnt vmcnt(%d)' % (8 + nh))
    if stampf: stampf(a, 2)
    for d in range(4):
        s0_, s1_, s2_, s3_ = SK + 4 * d, SK + 4 * d + 1, SK + 4 * d + 2, SK + 4 * d + 3
        a('v_lshlrev_b32 v%d, 16, v%d' % (TP + 0, s0_)); a('v_lshlrev_b32 v%d, 16, v%d' % (TP + 1, s2_))
        a('v_and_b32 v%d, s44, v%d' % (TP + 2, s0_)); a('v_and_b32 v%d, s44, v%d' % (TP + 3, s2_))
        a('v_lshlrev_b32 v%d, 16, v%d' % (TP + 4, s1_)); a('v_lshlrev_b32 v%d, 16, v%d' % (TP + 5, s3_))
        a('v_and_b32 v%d, s44, v%d' % (TP + 6, s1_)); a('v_and_b32 v%d, s44, v%d' % (TP + 7, s3_))
        for j in range(11):
            a('v_lshlrev_b32 v%d, 16, v%d' % (KP + 2 * j, KR + 4 * j + d)); a('v_and_b32 v%d, s44, v%d' % (KP + 2 * j + 1, KR + 4 * j + d))
        for i in range(8): a('v_pk_mul_f32 %s, %s, %s' % (vr(KS + 2 * i, 2), vr(KP + 2 * i, 2), vr(TP + 6, 2)))
        for i in range(8): a('v_pk_fma_f32 %s, %s, %s, %s' % (vr(KS + 2 * i, 2), vr(KP + 2 * i + 2, 2), vr(TP + 4, 2), vr(KS + 2 * i, 2)))
        for i in range(8): a('v_pk_fma_f32 %s, %s, %s, %s' % (vr(KS + 2 * i, 2), vr(KP + 2 * i + 4, 2), vr(TP + 2, 2), vr(KS + 2 * i, 2)))
        for i in range(8): a('v_pk_fma_f32 %s, %s, %s, %s' % (vr(KS + 2 * i, 2), vr(KP + 2 * i + 6, 2), vr(TP + 0, 2), vr(KS + 2 * i, 2)))
        if d == 0: a('s_waitcnt vmcnt(%d)' % nh)
        for i in range(8):
            a('v_lshlrev_b32 v%d, 16, v%d' % (KP + 2 * i, VR + 4 * i + d)); a('v_and_b32 v%d, s44, v%d' % (KP + 2 * i + 1, VR + 4 * i + d))
        for i in range(8): a('v_pk_mul_f32 %s, %s, %s' % (vr(KS + 2 * i, 2), vr(KS + 2 * i, 2), vr(KP + 2 * i, 2)))
        for hi in range(2):
            for i in range(4): a('v_cvt_pk_bf16_f32 v%d, v%d, v%d' % (U + 4 * hi + i, KS + 4 * i + hi, KS + 4 * i + 2 + hi))
            a('ds_write_b128 v9, %s offset:%d' % (vr(U + 4 * hi, 4), (2 * d + hi) * 1024))
    if stampf: stampf(a, 3)
    a('s_waitcnt lgkmcnt(0)')
    for cc in range(8):
        a('v_xor_b32 v12, %d, v2' % cc); a('v_lshl_add_u32 v12, v12, 4, v10')
        a('ds_read_b128 %s, v12' % vr(64 + 4 * cc, 4))
    for cc in range(8):
        a('s_waitcnt lgkmcnt(%d)' % (7 - cc))
        a('s_add_u32 s%d, s46, %d' % (S_T1, cc * 8 * 4096))
        a('buffer_store_dwordx4 %s, v11, s[64:67], s%d offen %s' % (vr(64 + 4 * cc, 4), S_T1, st_flags))
    if stampf: stampf(a, 4)

HP = 4160
CH_H = 4 * HP
CH_U = 4576
CH_SZ = CH_H + CH_U
CONV_BASE = 36864
CONV_U = CONV_BASE
CONV_H = CONV_U + 4 * CH_U
LDS_CONV = CONV_H + 4 * CH_H
S_CH, S_P, S_LB, S_LU = 88, 89, 90, 94
V_H = 24
V_D = 40
def conv_issue(a):
    a('s_lshr_b32 s%d, s%d, 1' % (S_T0, S_WAVE)); a('s_and_b32 s%d, s%d, 1' % (S_P, S_WAVE))
    a('s_lshl_b32 s%d, s29, 2' % S_CH); a('s_add_u32 s%d, s%d, s%d' % (S_CH, S_CH, S_T0))
    a('s_mul_i32 s%d, s%d, %d' % (S_LB, S_T0, CH_H)); a('s_add_u32 s%d, s%d, %d' % (S_LB, S_LB, CONV_H))
    a('s_mul_i32 s%d, s%d, %d' % (S_LU, S_T0, CH_U)); a('s_add_u32 s%d, s%d, %d' % (S_LU, S_LU, CONV_U))
    a('s_lshl_b32 s%d, s%d, 12' % (S_T1, S_CH))
    srd(a, 32, P_H, 4096, 's%d' % S_T1)
    srd(a, 36, P_D, D * 2)
    a('v_lshlrev_b32 v41, 4, v0')
    a('s_lshl_b32 s%d, s%d, 11' % (S_T0, S_P)); a('v_add_u32 v42, s%d, v41' % S_T0)
    for k in range(2):
        if k: a('v_add_u32 v42, 1024, v42')
        a('buffer_load_dwordx4 %s, v42, s[32:35], 0 offen' % vr(V_H + 8 * k + 4, 4))
        a('v_subrev_u32 v43, 8, v42')
        a('buffer_load_dwordx2 %s, v43, s[32:35], 0 offen' % vr(V_H + 8 * k, 2))
    a('s_lshl_b32 s%d, s%d, 1' % (S_T0, S_CH)); a('v_mov_b32 v43, s%d' % S_T0)
    a('buffer_load_ushort v%d, v43, s[36:39], 0 offen' % V_D)

def conv_u_dma(a, ld_flags):
    a('v_lshlrev_b32 v41, 4, v0')
    a('s_lshl_b32 s%d, s%d, 12' % (S_T0, S_CH)); a('s_lshl_b32 s%d, s%d, 11' % (S_T1, S_P)); a('s_add_u32 s%d, s%d, s%d' % (S_T0, S_T0, S_T1)); a('s_add_u32 s%d, s%d, %d' % (S_T0, S_T0, WS_UT))
    a('s_add_u32 s%d, s%d, s%d' % (S_T1, S_T1, S_LU))
    for k in range(2):
        a('s_add_u32 m0, s%d, %d' % (S_T1, 480 + k * 1024))
        a('s_add_u32 s%d, s%d, %d' % (S_T2, S_T0, k * 1024))
        a('buffer_load_dwordx4 v41, s[64:67], s%d offen %s lds' % (S_T2, ld_flags))

def conv_copies(a, nyounger, waited=False):
    for k in range(4): a('v_mov_b32 v%d, 0' % (44 + k))
    a('v_lshlrev_b32 v41, 4, v0')
    a('s_mov_b64 s[52:53], exec')
    zl = a.newlabel('Lcz'); ze = a.newlabel('Lce')
    a('s_cmp_eq_u32 s%d, 0' % S_P); a('s_cbranch_scc0 %s' % zl)
    a('v_lshrrev_b32 v42, 2, v0'); a('v_mul_u32_u24 v42, %d, v42' % HP); a('v_and_b32 v43, 3, v0'); a('v_lshl_add_u32 v42, v43, 4, v42'); a('v_add_u32 v42, s%d, v42' % S_LB)
    a('s_mov_b64 exec, 0xffff')
    a('ds_write_b128 v42, v[44:47]')
    a('s_branch %s' % ze)
    a.label(zl)
    a('v_add_u32 v42, s%d, v41' % S_LU)
    a('s_mov_b64 exec, 0x3fffffff')
    a('ds_write_b128 v42, v[44:47]')
    a.label(ze)
    a('s_mov_b64 exec, s[52:53]')
    a('s_lshl_b32 s%d, s%d, 11' % (S_T0, S_P)); a('s_add_u32 s%d, s%d, s%d' % (S_T0, S_T0, S_LB)); a('v_add_u32 v42, s%d, v41' % S_T0)
    if not waited: a('s_waitcnt vmcnt(%d)' % (1 + nyounger))
    for k in range(2):
        pm2, pm1 = V_H + 8 * k, V_H + 8 * k + 1
        h = V_H + 8 * k + 4
        o = 64 + k * 1024
        c1, c2, c3 = 44 + 0, 48, 52
        a('ds_write_b128 v42, %s offset:%d' % (vr(h, 4), o))
        a('v_mov_b32 v48, v%d' % pm1); a('v_mov_b32 v49, v%d' % h); a('v_mov_b32 v50, v%d' % (h + 1)); a('v_mov_b32 v51, v%d' % (h + 2))
        a('ds_write_b128 v42, v[48:51] offset:%d' % (o + 2 * HP))
        a('v_alignbit_b32 v52, v%d, v%d, 16' % (pm1, pm2))
        a('v_alignbit_b32 v53, v%d, v%d, 16' % (h, pm1))
        a('v_alignbit_b32 v54, v%d, v%d, 16' % (h + 1, h))
        a('v_alignbit_b32 v55, v%d, v%d, 16' % (h + 2, h + 1))
        a('ds_write_b128 v42, v[52:55] offset:%d' % (o + 3 * HP))
        a('v_mov_b32 v56, v53'); a('v_mov_b32 v57, v54'); a('v_mov_b32 v58, v55')
        a('v_alignbit_b32 v59, v%d, v%d, 16' % (h + 3, h + 2))
        a('ds_write_b128 v42, v[56:59] offset:%d' % (o + HP))
    a('v_lshrrev_b32 v7, 4, v0'); a('v_bfe_u32 v8, v0, 2, 2'); a('v_and_b32 v9, 3, v0')
    a('v_mul_u32_u24 v10, %d, v8' % HP); a('v_lshl_add_u32 v10, v9, 3, v10'); a('v_lshlrev_b32 v11, 4, v7'); a('v_sub_u32 v10, v10, v11')
    a('s_lshl_b32 s%d, s%d, 8' % (S_T0, S_P)); a('s_add_u32 s%d, s%d, s%d' % (S_T0, S_T0, S_LB)); a('s_add_u32 s%d, s%d, %d' % (S_T0, S_T0, 64 + 32 - 8))
    a('v_add_u32 v10, s%d, v10' % S_T0)
    a('v_and_b32 v11, 15, v0'); a('v_lshlrev_b32 v11, 5, v11'); a('v_lshl_add_u32 v11, v7, 4, v11')
    a('s_lshl_b32 s%d, s%d, 8' % (S_T0, S_P)); a('s_sub_u32 s%d, s%d, s%d' % (S_T0, S_LU, S_T0))
    a('v_add_u32 v11, s%d, v11' % S_T0)

def conv_main(a, st_flags='', stampf=None):
    ACC = 64
    AF, BF = 96, 160
    lg = LG(a)
    def rdlist(cc):
        s_ = cc & 1
        out = []
        for pp in range(8):
            out.append(('ds_read_b128 %s, v11 offset:%d' % (vr(BF + 32 * s_ + 4 * pp, 4), 448 + 512 * pp - 64 * cc), [('B', cc, pp)]))
            for q in range(2):
                out.append(('ds_read_b64_tr_b16 %s, v10 offset:%d' % (vr(AF + 32 * s_ + 4 * pp + 2 * q, 2), 64 * cc + 512 * pp + (8 if q == 0 else 0)), [('A', cc, pp, q)]))
        return out
    if stampf: stampf(a, 3)
    for txt, tg in rdlist(0): lg.issue(txt, tg)
    first = set()
    for cc in range(4):
        s_ = cc & 1
        pend = rdlist(cc + 1) if cc < 3 else []
        pairs = sorted([(p, m_) for p in range(8) for m_ in range(8) if p + m_ <= 7], key=lambda x: (max(x), x[0]))
        n = 0
        for (p, m_) in pairs:
            lg.wait([('A', cc, p, 0), ('A', cc, p, 1), ('B', cc, m_)])
            T = p + m_
            a('v_mfma_f32_16x16x32_bf16 %s, %s, %s, %s' % (vr(ACC + 4 * T, 4), vr(AF + 32 * s_ + 4 * p, 4), vr(BF + 32 * s_ + 4 * m_, 4), vr(ACC + 4 * T, 4) if T in first else '0'))
            first.add(T)
            n += 1
            if n >= 8 and pend:
                txt, tg = pend.pop(0); lg.issue(txt, tg)
        while pend:
            txt, tg = pend.pop(0); lg.issue(txt, tg)
    if stampf: stampf(a, 4)
    a('v_lshlrev_b32 v2, 4, v0')
    a('s_lshl_b32 s%d, s%d, 12' % (S_T0, S_P)); a('s_add_u32 s%d, s%d, s%d' % (S_T0, S_T0, S_LB)); a('v_add_u32 v6, s%d, v2' % S_T0)
    a('s_xor_b32 s%d, s%d, 1' % (S_T1, S_P)); a('s_lshl_b32 s%d, s%d, 12' % (S_T1, S_T1)); a('s_add_u32 s%d, s%d, s%d' % (S_T1, S_T1, S_LB)); a('v_add_u32 v7, s%d, v2' % S_T1)
    a('v_and_b32 v8, 15, v0'); a('v_lshlrev_b32 v8, 5, v8'); a('v_lshrrev_b32 v9, 4, v0'); a('v_lshl_add_u32 v8, v9, 3, v8')
    a('s_lshl_b32 s%d, s%d, 11' % (S_T0, S_P)); a('s_add_u32 s%d, s%d, s%d' % (S_T0, S_T0, S_LU)); a('s_add_u32 s%d, s%d, %d' % (S_T0, S_T0, 480))
    a('v_add_u32 v8, s%d, v8' % S_T0); a('v_add_u32 v9, s%d, v2' % S_T0)
    for t in range(4): a('ds_read_b64 %s, v8 offset:%d' % (vr(112 + 2 * t, 2), t * 512))
    a('v_lshlrev_b32 v%d, 16, v%d' % (V_D, V_D))
    a('s_mov_b32 s45, 0xffff0000')
    a('s_barrier')
    if stampf: stampf(a, 5)
    l1 = a.newlabel('Lcx'); l2 = a.newlabel('Lcy')
    a('s_cmp_eq_u32 s%d, 0' % S_P); a('s_cbranch_scc0 %s' % l1)
    for t in range(4): a('ds_write_b128 v6, %s offset:%d' % (vr(ACC + 16 + 4 * t, 4), t * 1024))
    a('s_branch %s' % l2)
    a.label(l1)
    for t in range(4): a('ds_write_b128 v6, %s offset:%d' % (vr(ACC + 4 * t, 4), t * 1024))
    a('s_nop 1')
    for r in range(16): a('v_mov_b32 v%d, v%d' % (ACC + r, ACC + 16 + r))
    a.label(l2)
    a('s_waitcnt lgkmcnt(4)')
    for t in range(4):
        a('v_lshlrev_b32 v120, 16, v%d' % (112 + 2 * t)); a('v_and_b32 v121, s45, v%d' % (112 + 2 * t))
        a('v_lshlrev_b32 v122, 16, v%d' % (113 + 2 * t)); a('v_and_b32 v123, s45, v%d' % (113 + 2 * t))
        for r in range(4): a('v_fmac_f32 v%d, v%d, v%d' % (ACC + 4 * t + r, 120 + r, V_D))
    a('s_waitcnt lgkmcnt(0)')
    a('s_barrier')
    if stampf: stampf(a, 7)
    for t in range(4): a('ds_read_b128 %s, v7 offset:%d' % (vr(96 + 4 * t, 4), t * 1024))
    for t in range(4):
        a('s_waitcnt lgkmcnt(%d)' % (3 - t))
        for r in range(0, 4, 2): a('v_pk_add_f32 %s, %s, %s' % (vr(ACC + 4 * t + r, 2), vr(ACC + 4 * t + r, 2), vr(96 + 4 * t + r, 2)))
        a('v_cvt_pk_bf16_f32 v%d, v%d, v%d' % (124 + 2 * t, ACC + 4 * t, ACC + 4 * t + 1))
        a('v_cvt_pk_bf16_f32 v%d, v%d, v%d' % (125 + 2 * t, ACC + 4 * t + 2, ACC + 4 * t + 3))
        a('ds_write_b64 v8, %s offset:%d' % (vr(124 + 2 * t, 2), t * 512))
    a('s_lshl_b32 s%d, s%d, 12' % (S_T0, S_CH)); a('s_lshl_b32 s%d, s%d, 11' % (S_T1, S_P)); a('s_add_u32 s%d, s%d, s%d' % (S_T0, S_T0, S_T1)); a('s_add_u32 s%d, s%d, %d' % (S_T0, S_T0, WS_YT))
    a('s_waitcnt lgkmcnt(0)')
    for k in range(2): a('ds_read_b128 %s, v9 offset:%d' % (vr(132 + 4 * k, 4), k * 1024))
    for k in range(2):
        a('s_waitcnt lgkmcnt(%d)' % (1 - k))
        a('s_add_u32 s%d, s%d, %d' % (S_T1, S_T0, k * 1024))
        a('buffer_store_dwordx4 %s, v2, s[64:67], s%d offen %s' % (vr(132 + 4 * k, 4), S_T1, st_flags))

LDS_B3 = 8 * 17408
def b3_tile(a, ld_flags='', st_flags='', wait_y=None):
    S_LB = 44
    srd(a, 32, P_Q, S * D * 2); srd(a, 52, P_OUT, S * 1152 * 2)
    a('s_mul_i32 s%d, s%d, 17408' % (S_LB, S_WAVE))
    a('v_and_b32 v2, 7, v0'); a('v_lshrrev_b32 v3, 3, v0')
    a('s_lshl_b32 s%d, s29, 6' % S_T0); a('v_add_u32 v4, s%d, v3' % S_T0); a('v_mul_u32_u24 v4, 1152, v4'); a('v_lshl_add_u32 v4, v2, 4, v4')
    a('s_lshl_b32 s%d, s30, 7' % S_T0); a('v_add_u32 v4, s%d, v4' % S_T0)
    Q = 64
    for j in range(8):
        a('s_mov_b32 s%d, %d' % (S_T0, j * 8 * 1152))
        a('buffer_load_dwordx4 %s, v4, s[32:35], s%d offen' % (vr(Q + 4 * j, 4), S_T0))
    if wait_y: wait_y(a)
    a('v_lshrrev_b32 v5, 1, v2'); a('v_and_b32 v6, 3, v3'); a('v_xor_b32 v5, v5, v6'); a('v_lshlrev_b32 v5, 1, v5'); a('v_and_b32 v6, 1, v2'); a('v_or_b32 v5, v5, v6')
    a('v_lshlrev_b32 v6, 12, v3'); a('v_lshl_add_u32 v6, v5, 4, v6')
    a('s_lshl_b32 s%d, s30, 18' % S_T0); a('s_lshl_b32 s%d, s29, 7' % S_T1); a('s_add_u32 s%d, s%d, s%d' % (S_T0, S_T0, S_T1)); a('s_add_u32 s%d, s%d, %d' % (S_T0, S_T0, WS_YT))
    for j in range(8):
        a('s_add_u32 m0, s%d, %d' % (S_LB, j * 1024))
        a('s_add_u32 s%d, s%d, %d' % (S_T1, S_T0, j * 8 * 4096))
        a('buffer_load_dwordx4 v6, s[64:67], s%d offen %s lds' % (S_T1, ld_flags))
    a('v_lshrrev_b32 v7, 4, v0'); a('v_bfe_u32 v8, v0, 2, 2'); a('v_and_b32 v9, 3, v0')
    a('v_xor_b32 v10, v7, v8'); a('v_lshlrev_b32 v10, 5, v10'); a('v_lshl_add_u32 v10, v8, 7, v10'); a('v_lshl_add_u32 v10, v9, 3, v10'); a('v_add_u32 v10, s%d, v10' % S_LB)
    a('v_mul_u32_u24 v11, 144, v0'); a('s_add_u32 s%d, s%d, 8192' % (S_T0, S_LB)); a('v_add_u32 v11, s%d, v11' % S_T0)
    a('s_waitcnt vmcnt(0)')
    Y = 96
    for chq in range(16): a('ds_read_b64_tr_b16 %s, v10 offset:%d' % (vr(Y + 2 * chq, 2), chq * 512))
    for chq in range(16):
        a('s_waitcnt lgkmcnt(%d)' % min(15, 15 - chq) if chq else 's_waitcnt lgkmcnt(15)')
        a('ds_write_b64 v11, %s offset:%d' % (vr(Y + 2 * chq, 2), chq * 8))
    a('v_mul_u32_u24 v12, 144, v3'); a('v_lshl_add_u32 v12, v2, 4, v12'); a('v_add_u32 v12, s%d, v12' % S_T0)
    a('s_waitcnt lgkmcnt(0)')
    for j in range(8): a('ds_read_b128 %s, v12 offset:%d' % (vr(Y + 4 * j, 4), j * 8 * 144))
    a('s_mov_b32 s45, 0xffff0000')
    a('s_lshl_b32 s%d, s29, 6' % S_T0); a('v_add_u32 v4, s%d, v3' % S_T0); a('v_mul_u32_u24 v4, 2304, v4'); a('v_lshl_add_u32 v4, v2, 4, v4')
    a('s_lshl_b32 s%d, s30, 7' % S_T0); a('s_add_u32 s%d, s%d, 1152' % (S_T0, S_T0)); a('v_add_u32 v4, s%d, v4' % S_T0)
    for j in range(8):
        a('s_waitcnt lgkmcnt(%d)' % (7 - j))
        for d in range(4):
            q_, y_ = Q + 4 * j + d, Y + 4 * j + d
            a('v_lshlrev_b32 v140, 16, v%d' % q_); a('v_and_b32 v141, s45, v%d' % q_)
            a('v_lshlrev_b32 v142, 16, v%d' % y_); a('v_and_b32 v143, s45, v%d' % y_)
            a('v_mul_f32 v140, v140, v142'); a('v_mul_f32 v141, v141, v143')
            a('v_cvt_pk_bf16_f32 v%d, v140, v141' % q_)
        a('s_mov_b32 s%d, %d' % (S_T0, j * 8 * 2304))
        a('buffer_store_dwordx4 %s, v4, s[52:55], s%d offen %s' % (vr(Q + 4 * j, 4), S_T0, st_flags))
```

```python
from common import *
import common

PRO_BARRIER = True
SLOT = 36864
NSLOT = 4
XOFF, WOFF, DUMOFF = 0, 16384, 35840
LDS_GEMM1 = 163840
V_ACC = 64
V_XF = 104
V_WF = 120
V_XA0, V_XA1, V_WA = 10, 11, 12
V_XT0, V_XT1, V_WT = 13, 14, 15
V_WB, V_WT2 = 20, 21
V_GX, V_GW0, V_GW1, V_GW2 = 16, 17, 18, 19
S_RT, S_CG = 29, 30
SRD_X, SRD_W = 32, 36
S_M3 = 40; S_T0, S_T1, S_T2 = 41, 42, 43
S_MX = 44
S_MW = 45

def acc(t, mt): return V_ACC + (t * 2 + mt) * 4

def gemm1_lanes(a, isq):
    a('v_lshrrev_b32 v2, 3, v0')
    a('v_and_b32 v3, 7, v0')
    a('v_xor_b32 v3, v3, v2')
    a('s_lshl_b32 s%d, s%d, 7' % (S_T0, S_RT))
    a('s_lshl_b32 s%d, s%d, 4' % (S_T1, S_WAVE))
    a('s_add_u32 s%d, s%d, s%d' % (S_T0, S_T0, S_T1))
    a('v_lshlrev_b32 v3, 4, v3')
    a('v_add_u32 v2, s%d, v2' % S_T0)
    a('v_mul_u32_u24 v2, 1152, v2')
    a('v_add_u32 v%d, v2, v3' % V_GX)
    if isq:
        a('s_mul_i32 s%d, s%d, 288' % (S_T1, S_CG))
    else:
        a('s_mul_i32 s%d, s%d, 144' % (S_T1, S_CG))
        a('s_add_u32 s%d, s%d, 1152' % (S_T1, S_T1))
    a('s_lshl_b32 s%d, s%d, 6' % (S_T0, S_WAVE))
    for k, vg in enumerate((V_GW0, V_GW1, V_GW2)):
        a('v_add_u32 v2, s%d, v0' % S_T0)
        if k: a('v_add_u32 v2, %d, v2' % (512 * k))
        a('v_mul_u32_u24 v3, 27595, v2')
        a('v_lshrrev_b32 v3, 22, v3')
        a('v_mul_u32_u24 v4, 152, v3')
        a('v_sub_u32 v4, v2, v4')
        a('v_min_u32 v4, 143, v4')
        a('v_mul_u32_u24 v5, 3641, v4')
        a('v_lshrrev_b32 v5, 16, v5')
        a('v_mul_u32_u24 v6, 18, v5')
        a('v_sub_u32 v6, v4, v6')
        a('v_lshl_add_u32 v5, v3, 3, v5')
        a('v_mul_u32_u24 v5, 3456, v5')
        if not isq:
            a('v_cmp_le_u32 vcc, 9, v6')
            a('v_add_u32 v7, 63, v6')
            a('v_cndmask_b32 v6, v6, v7, vcc')
        a('v_lshl_add_u32 v5, v6, 4, v5')
        a('v_add_u32 v%d, s%d, v5' % (vg, S_T1))
    a('s_cmp_lt_u32 s%d, 3' % S_WAVE)
    a('s_cselect_b32 s%d, -1, 0' % S_T2)
    a('v_and_b32 v%d, s%d, v%d' % (V_GW2, S_T2, V_GW2))
    a('s_lshl_b32 s%d, s%d, 10' % (S_T0, S_WAVE))
    a('s_add_u32 s%d, s%d, %d' % (S_MW, S_T0, WOFF))
    a('s_add_u32 s%d, s%d, %d' % (S_T0, S_T0, WOFF + 16 * 1024))
    a('s_cmp_lt_u32 s%d, 3' % S_WAVE)
    a('s_cselect_b32 s%d, s%d, %d' % (S_M3, S_T0, DUMOFF))
    a('s_lshl_b32 s%d, s%d, 11' % (S_MX, S_WAVE))
    a('s_and_b32 s%d, s%d, 3' % (S_T0, S_WAVE))
    a('s_lshl_b32 s%d, s%d, 12' % (S_T0, S_T0))
    a('v_and_b32 v2, 15, v0')
    a('v_lshrrev_b32 v3, 4, v0')
    a('v_and_b32 v4, 7, v2')
    a('v_xor_b32 v4, v4, v3')
    a('v_lshlrev_b32 v4, 4, v4')
    a('v_lshl_add_u32 v4, v2, 7, v4')
    a('v_add_u32 v%d, s%d, v4' % (V_XA0, S_T0))
    a('v_xor_b32 v%d, 64, v%d' % (V_XA1, V_XA0))
    a('v_mul_u32_u24 v4, 2432, v3')
    a('v_bfe_u32 v5, v0, 2, 2')
    a('v_mul_u32_u24 v5, 288, v5')
    a('v_and_b32 v6, 3, v0')
    a('v_lshlrev_b32 v6, 3, v6')
    a('v_add3_u32 v4, v4, v5, v6')
    a('s_lshr_b32 s%d, s%d, 2' % (S_T0, S_WAVE))
    if isq:
        a('s_mul_i32 s%d, s%d, 144' % (S_T0, S_T0)); a('s_add_u32 s%d, s%d, %d' % (S_T0, S_T0, WOFF))
        a('v_add_u32 v%d, s%d, v4' % (V_WA, S_T0)); a('v_add_u32 v%d, 96, v%d' % (V_WB, V_WA))
    else:
        a('s_cmp_eq_u32 s%d, 0' % S_T0)
        a('s_cselect_b32 s%d, 0, %d' % (S_T1, 144 + 64))
        a('s_cselect_b32 s%d, %d, 0' % (S_T2, 48))
        a('s_add_u32 s%d, s%d, %d' % (S_T1, S_T1, WOFF)); a('s_add_u32 s%d, s%d, %d' % (S_T2, S_T2, WOFF + 96))
        a('v_add_u32 v%d, s%d, v4' % (V_WA, S_T1)); a('v_add_u32 v%d, s%d, v4' % (V_WB, S_T2))

def gemm1_rot(a, rot_sgpr):
    a('s_lshl_b32 s%d, s%d, 7' % (S_KX, rot_sgpr))

def gemm1_srds(a):
    srd(a, SRD_X, P_X, S * D * 2)
    srd(a, SRD_W, P_WQKV, D * 3 * D * 2)

S_KX, S_KW = 46, 47
def dma_stage(a, st):
    slot = (st % NSLOT) * SLOT
    a('s_add_u32 m0, s%d, %d' % (S_MX, slot + XOFF))
    a('s_add_u32 s%d, s%d, %d' % (S_T2, S_KX, 8 * 1152))
    a('buffer_load_dwordx4 v%d, s[%d:%d], s%d offen lds' % (V_GX, SRD_X, SRD_X + 3, S_KX))
    a('s_add_u32 m0, m0, 1024')
    a('s_mul_i32 s%d, s%d, 1728' % (S_KW, S_KX))
    a('buffer_load_dwordx4 v%d, s[%d:%d], s%d offen lds' % (V_GX, SRD_X, SRD_X + 3, S_T2))
    a('s_add_u32 m0, s%d, %d' % (S_MW, slot))
    a('s_add_u32 s%d, s%d, 128' % (S_KX, S_KX))
    a('buffer_load_dwordx4 v%d, s[%d:%d], s%d offen lds' % (V_GW0, SRD_W, SRD_W + 3, S_KW))
    a('s_add_u32 m0, m0, 8192')
    a('s_cmp_eq_u32 s%d, %d' % (S_KX, 9 * 128))
    a('buffer_load_dwordx4 v%d, s[%d:%d], s%d offen lds' % (V_GW1, SRD_W, SRD_W + 3, S_KW))
    a('s_cselect_b32 s%d, 0, s%d' % (S_KX, S_KX))
    a('s_add_u32 m0, s%d, %d' % (S_M3, slot))
    a('s_nop 0')
    a('buffer_load_dwordx4 v%d, s[%d:%d], s%d offen lds' % (V_GW2, SRD_W, SRD_W + 3, S_KW))

def gemm1_main(a, isq, hook0=None, n0=0, hook1=None, n1=0, hook_after_issue=None, hook2=None, n_after=0):
    NST = 9
    vm = []
    def issue(st):
        dma_stage(a, st); vm.extend([st] * 5)
    def wait_stage(st):
        last = max(i for i, o in enumerate(vm) if o == st)
        a('s_waitcnt vmcnt(%d)' % (len(vm) - 1 - last))
    issue(0)
    if PRO_BARRIER: a('s_barrier')
    if hook0: hook0(a); vm.extend(['p'] * n0)
    issue(1)
    if hook_after_issue: hook_after_issue(a); vm.extend(['p'] * n_after)
    lg = LG(a)
    def xf(s_, mt): return V_XF + (s_ * 2 + mt) * 4
    def wf(s_, t): return V_WF + (s_ * 5 + t) * 4
    def set_bases(st):
        slot = (st % NSLOT) * SLOT
        a('v_add_u32 v%d, %d, v%d' % (V_XT0, slot, V_XA0))
        a('v_add_u32 v%d, %d, v%d' % (V_XT1, slot, V_XA1))
        a('v_add_u32 v%d, %d, v%d' % (V_WT, slot, V_WA))
        a('v_add_u32 v%d, %d, v%d' % (V_WT2, slot, V_WB))
    def reads(st, ks):
        L = []
        xa = V_XT0 if ks == 0 else V_XT1
        for mt in range(2):
            L.append(('ds_read_b128 %s, v%d offset:%d' % (vr(xf(ks, mt), 4), xa, mt * 2048), [('x', st, ks, mt)]))
        for t in range(5):
            for q in range(2):
                base, tt = (V_WT, t) if t < 3 else (V_WT2, t - 3)
                L.append(('ds_read_b64_tr_b16 %s, v%d offset:%d' % (vr(wf(ks, t) + 2 * q, 2), base, ks * 9728 + q * 1152 + 32 * tt), [('w', st, ks, t, q)]))
        return L
    def mfmas(st, ks, pending, extra=None):
        pending = list(pending)
        for t in range(5):
            lg.wait([('x', st, ks, 0), ('x', st, ks, 1), ('w', st, ks, t, 0), ('w', st, ks, t, 1)])
            for mt in range(2):
                A, B = (xf(ks, mt), wf(ks, t)) if not isq else (wf(ks, t), xf(ks, mt))
                a('v_mfma_f32_16x16x32_bf16 %s, %s, %s, %s' % (vr(acc(t, mt), 4), vr(A, 4), vr(B, 4), vr(acc(t, mt), 4) if (st or ks) else '0'))
                n = 2 if mt == 0 else 1
                if t == 4 and mt == 1: n = 99
                for _ in range(n):
                    if pending:
                        txt, tags = pending.pop(0); lg.issue(txt, tags)
            if extra and t < len(extra): extra[t]()
    wait_stage(0)
    a('s_barrier')
    if common.STAMPS and getattr(common, 'DIAG_LOOP', False): common.stamp_raw(a, 1)
    set_bases(0)
    for txt, tags in reads(0, 0): lg.issue(txt, tags)
    for st in range(NST):
        ex0 = [lambda: issue(2)] if st == 0 else None
        mfmas(st, 0, reads(st, 1), ex0)
        if st + 1 < NST:
            wait_stage(st + 1)
            a('s_barrier')
            if common.STAMPS and getattr(common, 'DIAG_LOOP', False) and st in (1, 3, 5, 7): common.stamp_raw(a, 2 + st // 2); lg.done = lg.n
            set_bases(st + 1)
            nxt = reads(st + 1, 0)
            ex = None
            if st + 3 < NST:
                def f(s_=st):
                    issue(s_ + 3)
                    if hook1 and s_ == 3: hook1(a); vm.extend(['p'] * n1)
                ex = [f]
            if st == NST - 2 and hook2: ex = hook2(a)
            mfmas(st, 1, nxt, ex)
        else:
            mfmas(st, 1, [])
    lg.waitall()

LOG2E = 0x3fb8aa3b
EPS6 = 0x358637bd
def phi(a, regs, tmp, s_l2e, s_eps):
    for k0 in range(0, len(regs), 8):
        grp = regs[k0:k0 + 8]
        for j, r in enumerate(grp): a('v_mul_f32 v%d, s%d, v%d' % (tmp + j, s_l2e, r))
        for j, r in enumerate(grp): a('v_exp_f32 v%d, v%d clamp' % (tmp + j, tmp + j))
        for j, r in enumerate(grp): a('v_max_f32 v%d, 0, v%d' % (r, r))
        for j, r in enumerate(grp): a('v_add_f32 v%d, s%d, v%d' % (tmp + j, s_eps, tmp + j))
        for j, r in enumerate(grp): a('v_add_f32 v%d, v%d, v%d' % (r, r, tmp + j))

KV_TILES = KV_PAIRS + [(4, 0), (4, 1), (4, 2)]
def phi_pk(a, regs, tmp, s_l2e2, s_eps2):
    assert len(regs) % 2 == 0 and all(regs[i] % 2 == 0 and regs[i + 1] == regs[i] + 1 for i in range(0, len(regs), 2))
    for k0 in range(0, len(regs), 8):
        grp = regs[k0:k0 + 8]
        for j in range(0, len(grp), 2): a('v_pk_mul_f32 %s, %s, %s' % (vr(tmp + j, 2), vr(grp[j], 2), sr(s_l2e2, 2)))
        for j, r in enumerate(grp): a('v_exp_f32 v%d, v%d clamp' % (tmp + j, tmp + j))
        for j, r in enumerate(grp): a('v_max_f32 v%d, 0, v%d' % (r, r))
        for j in range(0, len(grp), 2): a('v_pk_add_f32 %s, %s, %s' % (vr(tmp + j, 2), vr(tmp + j, 2), sr(s_eps2, 2)))
        for j in range(0, len(grp), 2): a('v_pk_add_f32 %s, %s, %s' % (vr(grp[j], 2), vr(grp[j], 2), vr(tmp + j, 2)))

def kv_epilogue(a, st_flags='', stampf=None, get_tag=None):
    S_L2E, S_EPS = 56, 58
    a('s_mov_b32 s56, 0x%x' % LOG2E); a('s_mov_b32 s57, 0x%x' % LOG2E); a('s_mov_b32 s58, 0x%x' % EPS6); a('s_mov_b32 s59, 0x%x' % EPS6)
    EX = 122880
    a('s_and_b32 s%d, s%d, 3' % (S_T0, S_WAVE)); a('s_mul_i32 s%d, s%d, 10240' % (S_T0, S_T0))
    a('s_lshr_b32 s%d, s%d, 2' % (S_T1, S_WAVE)); a('s_mul_i32 s%d, s%d, 5120' % (S_T2, S_T1))
    a('s_add_u32 s%d, s%d, s%d' % (S_T0, S_T0, S_T2)); a('s_add_u32 s%d, s%d, %d' % (S_T0, S_T0, EX))
    a('v_lshlrev_b32 v2, 4, v0')
    a('v_add_u32 v3, s%d, v2' % S_T0)
    lab = a.newlabel('Lkvb'); lab2 = a.newlabel('Lkvc')
    a('s_cmp_eq_u32 s%d, 0' % S_T1); a('s_cbranch_scc0 %s' % lab)
    phi_pk(a, [V_ACC + r for r in range(24)], 104, S_L2E, S_EPS)
    a('s_branch %s' % lab2)
    a.label(lab)
    phi_pk(a, [V_ACC + 24 + r for r in range(16)], 104, S_L2E, S_EPS)
    a.label(lab2)
    if stampf: stampf(a, 2)
    for t in range(5):
        f = 120 + 4 * t
        a('v_cvt_pk_bf16_f32 v%d, v%d, v%d' % (f + 0, acc(t, 0) + 0, acc(t, 0) + 1))
        a('v_cvt_pk_bf16_f32 v%d, v%d, v%d' % (f + 1, acc(t, 0) + 2, acc(t, 0) + 3))
        a('v_cvt_pk_bf16_f32 v%d, v%d, v%d' % (f + 2, acc(t, 1) + 0, acc(t, 1) + 1))
        a('v_cvt_pk_bf16_f32 v%d, v%d, v%d' % (f + 3, acc(t, 1) + 2, acc(t, 1) + 3))
        if t == 2:
            a('s_mov_b32 s%d, 0x01000100' % S_T0)
            a('s_cmp_eq_u32 s%d, 0' % S_T1); a('s_cselect_b32 s60, 0, s%d' % S_T0); a('s_mov_b32 s61, s60')
            a('v_mov_b32 v4, 0x3f803f80')
            for k in range(4): a('v_cndmask_b32 v%d, v%d, v4, s[60:61]' % (f + k, f + k))
        a('ds_write_b128 v3, %s offset:%d' % (vr(f, 4), t * 1024))
    kpos = {0: 0, 1: 1, 2: 2, 3: 5 + 3, 4: 5 + 4}; vpos = {0: 3, 1: 4, 2: 5 + 0, 3: 5 + 1, 4: 5 + 2}
    TA = sum(vpos[b] << (4 * p) for p, (b, a_) in enumerate(KV_TILES)); TB = sum(kpos[a_] << (4 * p) for p, (b, a_) in enumerate(KV_TILES))
    a('s_lshl_b32 s%d, s%d, 2' % (S_T0, S_WAVE))
    for h in range(2):
        ta = (TA >> (32 * h)) & 0xffffffff; tb = (TB >> (32 * h)) & 0xffffffff
        a('s_lshr_b32 s62, 0x%x, s%d' % (ta, S_T0)); a('s_and_b32 s62, s62, 15'); a('s_lshl_b32 s62, s62, 10'); a('s_add_u32 s62, s62, %d' % EX)
        a('s_lshr_b32 s63, 0x%x, s%d' % (tb, S_T0)); a('s_and_b32 s63, s63, 15'); a('s_lshl_b32 s63, s63, 10'); a('s_add_u32 s63, s63, %d' % EX)
        a('v_add_u32 v%d, s62, v2' % (4 + 2 * h)); a('v_add_u32 v%d, s63, v2' % (5 + 2 * h))
    a('s_lshl_b32 s%d, s%d, 4' % (S_T0, S_CG)); a('s_add_u32 s%d, s%d, s%d' % (S_T0, S_T0, S_RT))
    a('s_mul_i32 s%d, s%d, %d' % (S_T0, S_T0, KVP_BLK)); a('s_add_u32 s%d, s%d, %d' % (S_T0, S_T0, WS_KVP))
    a('s_lshl_b32 s%d, s%d, 10' % (S_T1, S_WAVE)); a('s_add_u32 s%d, s%d, s%d' % (S_T1, S_T1, S_T0))
    a('s_waitcnt lgkmcnt(0)')
    if stampf: stampf(a, 3)
    a('s_barrier')
    if stampf: stampf(a, 4)
    lg = LG(a)
    for h in range(2):
        for mw in range(4):
            r0 = 64 + 32 * h + 8 * mw
            lg.issue('ds_read_b128 %s, v%d offset:%d' % (vr(r0, 4), 4 + 2 * h, mw * 10240), [('A', h, mw)])
            lg.issue('ds_read_b128 %s, v%d offset:%d' % (vr(r0 + 4, 4), 5 + 2 * h, mw * 10240), [('B', h, mw)])
    for h in range(2):
        d = 160 + 4 * h
        for mw in range(4):
            r0 = 64 + 32 * h + 8 * mw
            lg.wait([('A', h, mw), ('B', h, mw)])
            a('v_mfma_f32_16x16x32_bf16 %s, %s, %s, %s' % (vr(d, 4), vr(r0, 4), vr(r0 + 4, 4), '0' if mw == 0 else vr(d, 4)))
    if get_tag:
        get_tag(a)
        a('v_mov_b32 v172, 0xffffff00')
        for r in range(4): a('v_bfe_u32 v%d, s92, %d, 8' % (168 + r, 8 * r))
        for k in range(8): a('v_and_or_b32 v%d, v%d, v172, v%d' % (160 + k, 160 + k, 168 + (k & 3)))
    a('buffer_store_dwordx4 v[160:163], v2, s[64:67], s%d offen %s' % (S_T1, st_flags))
    a('s_add_u32 s%d, s%d, 8192' % (S_T1, S_T1))
    a('buffer_store_dwordx4 v[164:167], v2, s[64:67], s%d offen %s' % (S_T1, st_flags))
    zown = {10: 3, 12: 4, 13: 0, 14: 1, 15: 2}
    lz = a.newlabel('Lkvz')
    tbl = 0
    for p, a_ in zown.items(): tbl |= (a_ + 1) << (4 * (p - 8))
    a('s_lshl_b32 s62, s%d, 2' % S_WAVE); a('s_lshr_b32 s62, 0x%x, s62' % tbl); a('s_and_b32 s62, s62, 15')
    a('s_cmp_eq_u32 s62, 0'); a('s_cbranch_scc1 %s' % lz)
    a('s_sub_u32 s62, s62, 1'); a('s_lshl_b32 s62, s62, 6'); a('s_add_u32 s62, s62, s%d' % S_T0); a('s_add_u32 s62, s62, %d' % (16 * 1024 - 128))
    a('v_lshlrev_b32 v3, 2, v0')
    for r in range(4): a('v_mov_b32_dpp v%d, v164 quad_perm:[%d,%d,%d,%d] row_mask:0xf bank_mask:0xf' % (176 + r, r, r, r, r))
    if get_tag:
        for r in range(4): a('v_and_or_b32 v%d, v%d, v172, v%d' % (176 + r, 176 + r, 168 + r))
    a('s_mov_b32 exec_lo, 0'); a('s_mov_b32 exec_hi, 0x1111')
    a('buffer_store_dwordx4 v[176:179], v3, s[64:67], s62 offen %s' % st_flags)
    a('s_mov_b64 exec, -1')
    a.label(lz)

EX = 122880
def kv_epi_setup(a):
    a('s_mov_b32 s56, 0x%x' % LOG2E); a('s_mov_b32 s57, 0x%x' % LOG2E); a('s_mov_b32 s58, 0x%x' % EPS6); a('s_mov_b32 s59, 0x%x' % EPS6)
    a('s_and_b32 s%d, s%d, 3' % (S_T0, S_WAVE)); a('s_mul_i32 s%d, s%d, 10240' % (S_T0, S_T0))
    a('s_lshr_b32 s%d, s%d, 2' % (S_T1, S_WAVE)); a('s_mul_i32 s%d, s%d, 5120' % (S_T2, S_T1))
    a('s_add_u32 s%d, s%d, s%d' % (S_T0, S_T0, S_T2)); a('s_add_u32 s%d, s%d, %d' % (S_T0, S_T0, EX))
    a('v_lshlrev_b32 v2, 4, v0')
    a('v_add_u32 v3, s%d, v2' % S_T0)
    a('s_mov_b32 s48, s%d' % S_T1)
    a('s_mov_b32 s%d, 0x01000100' % S_T0)
    a('s_cmp_eq_u32 s48, 0'); a('s_cselect_b32 s60, 0, s%d' % S_T0); a('s_mov_b32 s61, s60')
    kpos = {0: 0, 1: 1, 2: 2, 3: 5 + 3, 4: 5 + 4}; vpos = {0: 3, 1: 4, 2: 5 + 0, 3: 5 + 1, 4: 5 + 2}
    TA = sum(vpos[b] << (4 * p) for p, (b, a_) in enumerate(KV_TILES)); TB = sum(kpos[a_] << (4 * p) for p, (b, a_) in enumerate(KV_TILES))
    a('s_lshl_b32 s%d, s%d, 2' % (S_T0, S_WAVE))
    for h in range(2):
        ta = (TA >> (32 * h)) & 0xffffffff; tb = (TB >> (32 * h)) & 0xffffffff
        a('s_lshr_b32 s62, 0x%x, s%d' % (ta, S_T0)); a('s_and_b32 s62, s62, 15'); a('s_lshl_b32 s62, s62, 10'); a('s_add_u32 s62, s62, %d' % EX)
        a('s_lshr_b32 s63, 0x%x, s%d' % (tb, S_T0)); a('s_and_b32 s63, s63, 15'); a('s_lshl_b32 s63, s63, 10'); a('s_add_u32 s63, s63, %d' % EX)
        a('v_add_u32 v%d, s62, v2' % (4 + 2 * h)); a('v_add_u32 v%d, s63, v2' % (5 + 2 * h))
    a('s_lshl_b32 s%d, s%d, 4' % (S_T0, S_CG)); a('s_add_u32 s%d, s%d, s91' % (S_T0, S_T0))
    a('s_mul_i32 s%d, s%d, %d' % (S_T0, S_T0, KVP_BLK)); a('s_add_u32 s49, s%d, %d' % (S_T0, WS_KVP))
    a('s_lshl_b32 s%d, s%d, 10' % (S_T1, S_WAVE)); a('s_add_u32 s50, s%d, s49' % S_T1)
    zown = {10: 3, 12: 4, 13: 0, 14: 1, 15: 2}
    tbl = 0
    for p, a_ in zown.items(): tbl |= (a_ + 1) << (4 * (p - 8))
    a('s_lshl_b32 s62, s%d, 2' % S_WAVE); a('s_lshr_b32 s62, 0x%x, s62' % tbl); a('s_and_b32 s51, s62, 15')
    a('s_sub_u32 s62, s51, 1'); a('s_lshl_b32 s62, s62, 6'); a('s_add_u32 s62, s62, s49'); a('s_add_u32 s62, s62, %d' % (16 * 1024 - 128))
    a('v_mov_b32 v172, 0xffffff00')
    for r in range(4): a('v_bfe_u32 v%d, s92, %d, 8' % (168 + r, 8 * r))
    a('v_mov_b32 v8, 0x3f803f80')
    a('v_lshlrev_b32 v9, 2, v0')

def kv_epilogue2(a, st_flags='', stampf=None, after_barrier=None):
    lab = a.newlabel('Lkvb'); lab2 = a.newlabel('Lkvc')
    a('s_cmp_eq_u32 s48, 0'); a('s_cbranch_scc0 %s' % lab)
    phi_pk(a, [V_ACC + r for r in range(24)], 104, 56, 58)
    a('s_branch %s' % lab2)
    a.label(lab)
    phi_pk(a, [V_ACC + 24 + r for r in range(16)], 104, 56, 58)
    a.label(lab2)
    if stampf: stampf(a, 2)
    for t in range(5):
        f = 120 + 4 * t
        a('v_cvt_pk_bf16_f32 v%d, v%d, v%d' % (f + 0, acc(t, 0) + 0, acc(t, 0) + 1))
        a('v_cvt_pk_bf16_f32 v%d, v%d, v%d' % (f + 1, acc(t, 0) + 2, acc(t, 0) + 3))
        a('v_cvt_pk_bf16_f32 v%d, v%d, v%d' % (f + 2, acc(t, 1) + 0, acc(t, 1) + 1))
        a('v_cvt_pk_bf16_f32 v%d, v%d, v%d' % (f + 3, acc(t, 1) + 2, acc(t, 1) + 3))
        if t == 2:
            for k in range(4): a('v_cndmask_b32 v%d, v%d, v8, s[60:61]' % (f + k, f + k))
        a('ds_write_b128 v3, %s offset:%d' % (vr(f, 4), t * 1024))
    a('s_waitcnt lgkmcnt(0)')
    if stampf: stampf(a, 3)
    a('s_barrier')
    if stampf: stampf(a, 4)
    lg = LG(a)
    for h in range(2):
        for mw in range(4):
            r0 = 64 + 32 * h + 8 * mw
            lg.issue('ds_read_b128 %s, v%d offset:%d' % (vr(r0, 4), 4 + 2 * h, mw * 10240), [('A', h, mw)])
            lg.issue('ds_read_b128 %s, v%d offset:%d' % (vr(r0 + 4, 4), 5 + 2 * h, mw * 10240), [('B', h, mw)])
    if after_barrier: after_barrier(a)
    for h in range(2):
        d = 160 + 4 * h
        for mw in range(4):
            r0 = 64 + 32 * h + 8 * mw
            lg.wait([('A', h, mw), ('B', h, mw)])
            a('v_mfma_f32_16x16x32_bf16 %s, %s, %s, %s' % (vr(d, 4), vr(r0, 4), vr(r0 + 4, 4), '0' if mw == 0 else vr(d, 4)))
    for k in range(4): a('v_and_or_b32 v%d, v%d, v172, v%d' % (160 + k, 160 + k, 168 + k))
    a('buffer_store_dwordx4 v[160:163], v2, s[64:67], s50 offen %s' % st_flags)
    for k in range(4): a('v_and_or_b32 v%d, v%d, v172, v%d' % (164 + k, 164 + k, 168 + k))
    a('s_add_u32 s50, s50, 8192')
    a('buffer_store_dwordx4 v[164:167], v2, s[64:67], s50 offen %s' % st_flags)
    lz = a.newlabel('Lkvz')
    a('s_cmp_eq_u32 s51, 0'); a('s_cbranch_scc1 %s' % lz)
    for r in range(4): a('v_mov_b32_dpp v%d, v164 quad_perm:[%d,%d,%d,%d] row_mask:0xf bank_mask:0xf' % (176 + r, r, r, r, r))
    for r in range(4): a('v_and_or_b32 v%d, v%d, v172, v%d' % (176 + r, 176 + r, 168 + r))
    a('s_mov_b32 exec_lo, 0'); a('s_mov_b32 exec_hi, 0x1111')
    a('buffer_store_dwordx4 v[176:179], v9, s[64:67], s62 offen %s' % st_flags)
    a('s_mov_b64 exec, -1')
    a.label(lz)

def q_epilogue(a, st_flags='', ld_flags='', wait_z=None, tagged=False, spin_max=100000, stampf=None):
    a('s_mov_b32 s56, 0x%x' % LOG2E); a('s_mov_b32 s57, 0x%x' % LOG2E); a('s_mov_b32 s58, 0x%x' % EPS6); a('s_mov_b32 s59, 0x%x' % EPS6)
    phi_pk(a, [V_ACC + r for r in range(40)], 104, 56, 58)
    PB = 120
    def pb(mt, j): return PB + (mt * 3 + j) * 4
    for mt in range(2):
        for t in range(5):
            d = pb(mt, t // 2) + 2 * (t % 2)
            a('v_cvt_pk_bf16_f32 v%d, v%d, v%d' % (d, acc(t, mt), acc(t, mt) + 1))
            a('v_cvt_pk_bf16_f32 v%d, v%d, v%d' % (d + 1, acc(t, mt) + 2, acc(t, mt) + 3))
        a('v_mov_b32 v%d, 0' % (pb(mt, 2) + 2)); a('v_mov_b32 v%d, 0' % (pb(mt, 2) + 3))
    Z = 144
    MK = 192
    ZA = 164; DEN = 176; SEL = 184
    a('s_lshr_b32 s%d, s%d, 2' % (S_T0, S_WAVE))
    a('s_lshl_b32 s%d, s%d, 1' % (S_T1, S_CG))
    a('s_add_u32 s%d, s%d, s%d' % (S_T1, S_T1, S_T0))
    a('s_mul_i32 s%d, s%d, %d' % (S_T1, S_T1, 16 * KVP_BLK))
    a('s_add_u32 s48, s%d, %d' % (S_T1, WS_KVP + 16 * 1024))
    a('v_and_b32 v2, 15, v0')
    a('v_lshrrev_b32 v3, 4, v0')
    a('v_mul_u32_u24 v4, %d, v2' % KVP_BLK)
    a('v_lshl_add_u32 v4, v3, 4, v4')
    a('v_and_b32 v5, 3, v2')
    a('v_mul_u32_u24 v5, 18, v5')
    a('v_lshlrev_b32 v6, 2, v3')
    a('v_sub_u32 v5, v6, v5')
    for t in range(5):
        for r in range(4):
            a('v_add_u32 v6, %d, v5' % (16 * t + r))
            a('v_cmp_gt_u32 vcc, 18, v6')
            a('v_cndmask_b32 v%d, 0, 1.0, vcc' % (MK + 4 * t + r))
    a('v_mov_b32 v%d, 0' % (ZA + 10)); a('v_mov_b32 v%d, 0' % (ZA + 11))
    for mt in range(2):
        for k in range(4): a('v_mov_b32 v%d, s58' % (DEN + 4 * mt + k))
    a('s_mov_b64 s[54:55], 0xffff')
    a('s_mov_b32 s56, -1'); a('s_mov_b32 s57, 0')
    a('s_and_b32 s%d, s%d, 3' % (S_T0, S_WAVE)); a('s_lshl_b32 s%d, s%d, 1' % (S_T0, S_T0))
    a('s_lshl_b32 s%d, s%d, 3' % (S_T1, S_RT)); a('s_add_u32 s%d, s%d, s%d' % (S_T0, S_T0, S_T1))
    a('s_mul_i32 s%d, s%d, %d' % (S_T0, S_T0, 18 * 1024)); a('s_add_u32 s%d, s%d, %d' % (S_T0, S_T0, WS_PN))
    a('s_lshr_b32 s%d, s%d, 2' % (S_T1, S_WAVE))
    a('s_lshl_b32 s49, s%d, 2' % S_CG); a('s_lshl_b32 s53, s%d, 1' % S_T1); a('s_add_u32 s49, s49, s53')
    a('s_lshl_b32 s49, s49, 10'); a('s_add_u32 s49, s49, s%d' % S_T0)
    a('s_lshr_b32 s53, s%d, 1' % S_CG); a('s_add_u32 s53, s53, 16'); a('s_lshl_b32 s53, s53, 10'); a('s_add_u32 s53, s53, s%d' % S_T0)
    a('s_and_b32 s52, s%d, 1' % S_CG); a('s_lshl_b32 s52, s52, 3'); a('s_add_u32 s53, s53, s52')
    a('s_lshl_b32 s52, s%d, 9' % S_T1); a('s_add_u32 s53, s53, s52')
    a('v_lshlrev_b32 v2, 4, v0')
    if wait_z: wait_z(a)
    lp = a.newlabel('Lzp'); lo_ = a.newlabel('Lzo')
    if tagged:
        a('s_mov_b32 s69, 0')
        for r in range(4): a('v_bfe_u32 v%d, s92, %d, 8' % (216 + r, 8 * r))
    a.label(lp)
    for t in range(5):
        a('buffer_load_dwordx4 %s, v4, s[64:67], s48 offen offset:%d %s' % (vr(Z + 4 * t, 4), 64 * t, ld_flags))
    if tagged:
        a('s_add_u32 s69, s69, 1')
        for t in range(5):
            a('s_waitcnt vmcnt(%d)' % (4 - t))
            for r in range(4): a('v_xor_b32 v%d, v%d, v%d' % (220 + r, Z + 4 * t + r, 216 + r))
            if t == 0:
                a('v_or3_b32 v224, v220, v221, v222'); a('v_or_b32 v224, v224, v223')
            else:
                a('v_or3_b32 v224, v224, v220, v221'); a('v_or3_b32 v224, v224, v222, v223')
        a('v_and_b32 v224, 0xff, v224')
        a('v_cmp_ne_u32 vcc, 0, v224')
        a('s_cmp_ge_u32 s69, %d' % spin_max); a('s_cbranch_scc1 %s' % lo_)
        a('s_cmp_lg_u64 vcc, 0'); a('s_cbranch_scc1 %s' % lp)
        a.label(lo_)
        if stampf:
            stampf(a, 5); a('s_mov_b32 s85, s69')
    else:
        a('s_waitcnt vmcnt(0)')
    for sh in (8, 4, 2, 1):
        for k in range(20):
            a('v_add_f32_dpp v%d, v%d, v%d row_ror:%d row_mask:0xf bank_mask:0xf' % (Z + k, Z + k, Z + k, sh))
    for k in range(0, 20, 2): a('v_pk_mul_f32 %s, %s, %s' % (vr(Z + k, 2), vr(Z + k, 2), vr(MK + k, 2)))
    for t in range(5):
        d = ZA + 4 * (t // 2) + 2 * (t % 2)
        a('v_cvt_pk_bf16_f32 v%d, v%d, v%d' % (d, Z + 4 * t, Z + 4 * t + 1))
        a('v_cvt_pk_bf16_f32 v%d, v%d, v%d' % (d + 1, Z + 4 * t + 2, Z + 4 * t + 3))
    for j in range(3):
        for mt in range(2):
            a('v_mfma_f32_16x16x32_bf16 %s, %s, %s, %s' % (vr(DEN + 4 * mt, 4), vr(ZA + 4 * j, 4), vr(pb(mt, j), 4), vr(DEN + 4 * mt, 4)))
    if stampf: stampf(a, 6)
    for mt in range(2):
        for k in range(4): a('v_rcp_f32 v%d, v%d' % (DEN + 4 * mt + k, DEN + 4 * mt + k))
    for mt in range(2):
        rd = DEN + 4 * mt; s_ = SEL + 4 * mt
        a('v_cndmask_b32 v%d, v%d, v%d, s[54:55]' % (s_ + 0, rd + 1, rd + 0))
        a('v_cndmask_b32 v%d, v%d, v%d, s[54:55]' % (s_ + 1, rd + 2, rd + 1))
        a('v_cndmask_b32 v%d, v%d, v%d, s[56:57]' % (s_ + 2, rd + 3, rd + 2))
        a('v_cndmask_b32 v%d, v%d, v%d, s[54:55]' % (s_ + 3, rd + 3, rd + 2))
    for mt in range(2):
        rd = DEN + 4 * mt; s_ = SEL + 4 * mt
        for jj in range(3):
            for t in (2 * jj, 2 * jj + 1):
                if t > 4: continue
                for r in range(4):
                    if t == 0: m = rd + 0
                    elif t == 1: m = s_ + 0 if r < 2 else rd + 1
                    elif t == 2: m = s_ + 1
                    elif t == 3: m = s_ + 2 if r < 2 else s_ + 3
                    else: m = rd + 3
                    a('v_mul_f32 v%d, v%d, v%d' % (acc(t, mt) + r, acc(t, mt) + r, m))
                d = pb(mt, t // 2) + 2 * (t % 2)
                a('v_cvt_pk_bf16_f32 v%d, v%d, v%d' % (d, acc(t, mt), acc(t, mt) + 1))
                a('v_cvt_pk_bf16_f32 v%d, v%d, v%d' % (d + 1, acc(t, mt) + 2, acc(t, mt) + 3))
            if jj < 2:
                a('s_add_u32 s52, s49, %d' % (mt * 18 * 1024 + jj * 1024))
                a('buffer_store_dwordx4 %s, v2, s[64:67], s52 offen %s' % (vr(pb(mt, jj), 4), st_flags))
            else:
                a('s_add_u32 s52, s53, %d' % (mt * 18 * 1024))
                a('s_mov_b64 exec, s[56:57]')
                a('buffer_store_dwordx2 %s, v2, s[64:67], s52 offen %s' % (vr(pb(mt, 2), 2), st_flags))
                a('s_mov_b64 exec, -1')


def q_epilogue2(a, st_flags, ld_flags, publish_pq, wait_z, spin_max, stampf=None):
    a('s_mov_b32 s56, 0x%x' % LOG2E); a('s_mov_b32 s57, 0x%x' % LOG2E); a('s_mov_b32 s58, 0x%x' % EPS6); a('s_mov_b32 s59, 0x%x' % EPS6)
    a('s_and_b32 s%d, s%d, 3' % (S_T0, S_WAVE)); a('s_lshl_b32 s%d, s%d, 1' % (S_T0, S_T0))
    a('s_lshl_b32 s%d, s%d, 3' % (S_T1, S_RT)); a('s_add_u32 s%d, s%d, s%d' % (S_T0, S_T0, S_T1))
    a('s_lshl_b32 s50, s%d, 8' % S_T0)
    a('s_mul_i32 s%d, s%d, %d' % (S_T0, S_T0, 18 * 1024)); a('s_add_u32 s%d, s%d, %d' % (S_T0, S_T0, WS_PN))
    a('s_lshr_b32 s%d, s%d, 2' % (S_T1, S_WAVE))
    a('s_lshl_b32 s49, s%d, 2' % S_CG); a('s_lshl_b32 s53, s%d, 1' % S_T1); a('s_add_u32 s49, s49, s53')
    a('s_lshl_b32 s49, s49, 10'); a('s_add_u32 s49, s49, s%d' % S_T0)
    a('s_lshr_b32 s53, s%d, 1' % S_CG); a('s_add_u32 s53, s53, 16'); a('s_lshl_b32 s53, s53, 10'); a('s_add_u32 s53, s53, s%d' % S_T0)
    a('s_and_b32 s52, s%d, 1' % S_CG); a('s_lshl_b32 s52, s52, 3'); a('s_add_u32 s53, s53, s52')
    a('s_lshl_b32 s52, s%d, 9' % S_T1); a('s_add_u32 s53, s53, s52')
    a('s_lshl_b32 s52, s%d, 1' % S_CG); a('s_add_u32 s52, s52, s%d' % S_T1)
    a('s_lshl_b32 s51, s52, 15'); a('s_add_u32 s50, s50, s51'); a('s_add_u32 s50, s50, %d' % WS_RD)
    a('s_mul_i32 s52, s52, %d' % (16 * KVP_BLK)); a('s_add_u32 s48, s52, %d' % (WS_KVP + 16 * 1024))
    a('s_mov_b32 s54, -1'); a('s_mov_b32 s55, 0')
    a('v_lshlrev_b32 v2, 4, v0')
    PB = 120
    def pb(mt, j): return PB + (mt * 3 + j) * 4
    for mt in range(2):
        phi_pk(a, [acc(t, mt) + r for t in range(5) for r in range(4)], 104, 56, 58)
        for t in range(5):
            d = pb(mt, t // 2) + 2 * (t % 2)
            a('v_cvt_pk_bf16_f32 v%d, v%d, v%d' % (d, acc(t, mt), acc(t, mt) + 1))
            a('v_cvt_pk_bf16_f32 v%d, v%d, v%d' % (d + 1, acc(t, mt) + 2, acc(t, mt) + 3))
        for jj in range(2):
            a('s_add_u32 s52, s49, %d' % (mt * 18 * 1024 + jj * 1024))
            a('buffer_store_dwordx4 %s, v2, s[64:67], s52 offen %s' % (vr(pb(mt, jj), 4), st_flags))
        a('s_add_u32 s52, s53, %d' % (mt * 18 * 1024))
        a('s_mov_b64 exec, s[54:55]')
        a('buffer_store_dwordx2 %s, v2, s[64:67], s52 offen %s' % (vr(pb(mt, 2), 2), st_flags))
        a('s_mov_b64 exec, -1')
        a('v_mov_b32 v%d, 0' % (pb(mt, 2) + 2)); a('v_mov_b32 v%d, 0' % (pb(mt, 2) + 3))
    Z = 144; MK = 192; ZA = 164; DEN = 176
    a('v_and_b32 v2, 15, v0')
    a('v_lshrrev_b32 v3, 4, v0')
    a('v_mul_u32_u24 v4, %d, v2' % KVP_BLK)
    a('v_lshl_add_u32 v4, v3, 4, v4')
    a('v_lshlrev_b32 v7, 4, v2')
    a('v_and_b32 v5, 3, v2')
    a('v_mul_u32_u24 v5, 18, v5')
    a('v_lshlrev_b32 v6, 2, v3')
    a('v_sub_u32 v5, v6, v5')
    for t in range(5):
        for r in range(4):
            a('v_add_u32 v6, %d, v5' % (16 * t + r))
            a('v_cmp_gt_u32 vcc, 18, v6')
            a('v_cndmask_b32 v%d, 0, 1.0, vcc' % (MK + 4 * t + r))
    a('v_mov_b32 v%d, 0' % (ZA + 10)); a('v_mov_b32 v%d, 0' % (ZA + 11))
    for mt in range(2):
        for k in range(4): a('v_mov_b32 v%d, s58' % (DEN + 4 * mt + k))
    for r in range(4): a('v_bfe_u32 v%d, s92, %d, 8' % (216 + r, 8 * r))
    a('v_mov_b32 v226, 0xffffff00')
    publish_pq(a)
    wait_z(a)
    lp = a.newlabel('Lzp'); lo_ = a.newlabel('Lzo')
    a('s_mov_b32 s69, 0')
    a.label(lp)
    for t in range(5):
        a('buffer_load_dwordx4 %s, v4, s[64:67], s48 offen offset:%d %s' % (vr(Z + 4 * t, 4), 64 * t, ld_flags))
    a('s_add_u32 s69, s69, 1')
    for t in range(5):
        a('s_waitcnt vmcnt(%d)' % (4 - t))
        for r in range(4): a('v_xor_b32 v%d, v%d, v%d' % (220 + r, Z + 4 * t + r, 216 + r))
        if t == 0:
            a('v_or3_b32 v224, v220, v221, v222'); a('v_or_b32 v224, v224, v223')
        else:
            a('v_or3_b32 v224, v224, v220, v221'); a('v_or3_b32 v224, v224, v222, v223')
    a('v_and_b32 v224, 0xff, v224')
    a('v_cmp_ne_u32 vcc, 0, v224')
    a('s_cmp_ge_u32 s69, %d' % spin_max); a('s_cbranch_scc1 %s' % lo_)
    a('s_cmp_lg_u64 vcc, 0'); a('s_cbranch_scc1 %s' % lp)
    a.label(lo_)
    if stampf: stampf(a, 5)
    for sh in (8, 4, 2, 1):
        for k in range(20):
            a('v_add_f32_dpp v%d, v%d, v%d row_ror:%d row_mask:0xf bank_mask:0xf' % (Z + k, Z + k, Z + k, sh))
    for k in range(0, 20, 2): a('v_pk_mul_f32 %s, %s, %s' % (vr(Z + k, 2), vr(Z + k, 2), vr(MK + k, 2)))
    for t in range(5):
        d = ZA + 4 * (t // 2) + 2 * (t % 2)
        a('v_cvt_pk_bf16_f32 v%d, v%d, v%d' % (d, Z + 4 * t, Z + 4 * t + 1))
        a('v_cvt_pk_bf16_f32 v%d, v%d, v%d' % (d + 1, Z + 4 * t + 2, Z + 4 * t + 3))
    for j in range(3):
        for mt in range(2):
            a('v_mfma_f32_16x16x32_bf16 %s, %s, %s, %s' % (vr(DEN + 4 * mt, 4), vr(ZA + 4 * j, 4), vr(pb(mt, j), 4), vr(DEN + 4 * mt, 4)))
    for mt in range(2):
        for k in range(4): a('v_rcp_f32 v%d, v%d' % (DEN + 4 * mt + k, DEN + 4 * mt + k))
    for mt in range(2):
        for k in range(4): a('v_and_or_b32 v%d, v%d, v226, v%d' % (DEN + 4 * mt + k, DEN + 4 * mt + k, 216 + k))
    a('s_mov_b64 exec, 0xffff')
    for mt in range(2):
        a('s_add_u32 s52, s50, %d' % (mt * 16 * 16))
        a('buffer_store_dwordx4 %s, v7, s[64:67], s52 offen %s' % (vr(DEN + 4 * mt, 4), st_flags))
    a('s_mov_b64 exec, -1')


def q_poison(a, st_flags):
    a('s_and_b32 s%d, s%d, 3' % (S_T0, S_WAVE)); a('s_lshl_b32 s%d, s%d, 1' % (S_T0, S_T0))
    a('s_lshl_b32 s%d, s%d, 3' % (S_T1, S_RT)); a('s_add_u32 s%d, s%d, s%d' % (S_T0, S_T0, S_T1))
    a('s_mul_i32 s%d, s%d, %d' % (S_T0, S_T0, 18 * 1024)); a('s_add_u32 s%d, s%d, %d' % (S_T0, S_T0, WS_PN))
    a('s_lshr_b32 s%d, s%d, 2' % (S_T1, S_WAVE))
    a('s_lshl_b32 s49, s%d, 2' % S_CG); a('s_lshl_b32 s53, s%d, 1' % S_T1); a('s_add_u32 s49, s49, s53')
    a('s_lshl_b32 s49, s49, 10'); a('s_add_u32 s49, s49, s%d' % S_T0)
    a('s_lshr_b32 s53, s%d, 1' % S_CG); a('s_add_u32 s53, s53, 16'); a('s_lshl_b32 s53, s53, 10'); a('s_add_u32 s53, s53, s%d' % S_T0)
    a('s_and_b32 s52, s%d, 1' % S_CG); a('s_lshl_b32 s52, s52, 3'); a('s_add_u32 s53, s53, s52')
    a('s_lshl_b32 s52, s%d, 9' % S_T1); a('s_add_u32 s53, s53, s52')
    a('v_lshlrev_b32 v2, 4, v0')
    for k in range(4): a('v_mov_b32 v%d, -1' % (24 + k))
    for mt in range(2):
        for jj in range(2):
            a('s_add_u32 s52, s49, %d' % (mt * 18 * 1024 + jj * 1024))
            a('buffer_store_dwordx4 v[24:27], v2, s[64:67], s52 offen %s' % st_flags)
        a('s_add_u32 s52, s53, %d' % (mt * 18 * 1024))
        a('s_mov_b32 exec_hi, 0')
        a('buffer_store_dwordx2 v[24:25], v2, s[64:67], s52 offen %s' % st_flags)
        a('s_mov_b32 exec_hi, -1')
```

```python
from common import *
S_T0, S_T1, S_T2 = 41, 42, 43
S_TASK = 29

W2_PITCH = 1184
LDS_W2_RED = 0
LDS_W2_AF = 32768
LDS_W2_WO = 34816
LDS_W2 = LDS_W2_WO + 81920
PIDX = {pr: p for p, pr in enumerate(KV_PAIRS)}

def w2_prefetch(a):
    srd(a, 32, P_WO, D * D * 2)
    a('s_cmp_lt_u32 s%d, 32' % S_TASK)
    lm = a.newlabel('Lw2m'); le = a.newlabel('Lw2e')
    a('s_cbranch_scc0 %s' % lm)
    a('s_lshr_b32 s30, s%d, 2' % S_TASK); a('s_and_b32 s31, s%d, 3' % S_TASK)
    a('s_max_u32 s%d, s31, 1' % S_T0); a('s_sub_u32 s%d, s%d, 1' % (S_T0, S_T0)); a('s_lshl_b32 s%d, s%d, 4' % (S_T0, S_T0))
    a('s_mul_i32 s%d, s30, 72' % S_T1); a('s_add_u32 s%d, s%d, s%d' % (S_T0, S_T0, S_T1))
    a('s_mov_b32 s%d, 0' % S_T1)
    a('s_branch %s' % le)
    a.label(lm)
    a('s_sub_u32 s30, s%d, 32' % S_TASK); a('s_lshl_b32 s30, s30, 1'); a('s_mov_b32 s31, 4')
    a('s_mul_i32 s%d, s30, 72' % S_T0); a('s_add_u32 s%d, s%d, 48' % (S_T0, S_T0))
    a('s_mov_b32 s%d, 40' % S_T1)
    a.label(le)
    a('s_lshl_b32 s%d, s%d, 6' % (S_T2, S_WAVE))
    a('s_lshl_b32 s44, s%d, 10' % S_WAVE)
    for k in range(10):
        a('v_add_u32 v2, s%d, v0' % S_T2)
        if k: a('v_add_u32 v2, %d, v2' % (512 * k))
        a('v_mul_u32_u24 v3, 3543, v2')
        a('v_lshrrev_b32 v3, 18, v3')
        a('v_mul_u32_u24 v4, 74, v3')
        a('v_sub_u32 v4, v2, v4')
        a('v_min_u32 v4, 71, v4')
        a('v_cmp_le_u32 vcc, 32, v3')
        a('v_mov_b32 v5, s%d' % S_T1)
        a('v_cndmask_b32 v5, 0, v5, vcc')
        a('v_add3_u32 v3, v3, v5, s%d' % S_T0)
        a('v_mul_u32_u24 v3, 1152, v3')
        a('v_lshl_add_u32 v3, v4, 4, v3')
        a('s_add_u32 m0, s44, %d' % (LDS_W2_WO + k * 8192))
        a('s_nop 0')
        a('buffer_load_dwordx4 v3, s[32:35], 0 offen lds')
for q in range(5120): assert (q * 3543) >> 18 == q // 74, q

def w2_main(a, st_flags='', ld_flags='', wait_kv=None, tagged=False, spin_max=100000, stampf=None, poison=False):
    end = a.newlabel('Lw2end')
    a('v_lshlrev_b32 v2, 4, v0')
    a('v_and_b32 v6, 15, v0'); a('v_lshrrev_b32 v7, 4, v0')
    a('v_bfe_u32 v14, v0, 2, 2'); a('v_lshl_add_u32 v14, v7, 2, v14'); a('v_mul_u32_u24 v14, %d, v14' % W2_PITCH)
    a('v_and_b32 v9, 3, v0'); a('v_lshl_add_u32 v14, v9, 3, v14')
    a('s_lshl_b32 s%d, s%d, 5' % (S_T0, S_WAVE)); a('s_add_u32 s%d, s%d, %d' % (S_T0, S_T0, LDS_W2_WO)); a('v_add_u32 v14, s%d, v14' % S_T0)
    lm = a.newlabel('Lw2j'); le = a.newlabel('Lw2k')
    a('s_cmp_lt_u32 s31, 4'); a('s_cbranch_scc0 %s' % lm)
    a('s_lshl_b32 s%d, s30, 1' % S_T0); a('s_lshr_b32 s%d, s31, 1' % S_T1); a('s_add_u32 s%d, s%d, s%d' % (S_T0, S_T0, S_T1)); a('s_and_b32 s%d, s31, 1' % S_T1)
    a('s_branch %s' % le)
    a.label(lm)
    a('s_lshr_b32 s%d, s30, 2' % S_T0); a('s_add_u32 s%d, s%d, 16' % (S_T0, S_T0)); a('s_lshr_b32 s%d, s30, 1' % S_T1); a('s_and_b32 s%d, s%d, 1' % (S_T1, S_T1))
    a.label(le)
    a('s_lshl_b32 s%d, s%d, 10' % (S_T0, S_T0)); a('s_lshl_b32 s%d, s%d, 3' % (S_T1, S_T1)); a('s_add_u32 s%d, s%d, s%d' % (S_T0, S_T0, S_T1))
    a('s_mul_i32 s%d, s%d, %d' % (S_T1, S_WAVE, 18 * 1024)); a('s_add_u32 s%d, s%d, s%d' % (S_T0, S_T0, S_T1)); a('s_add_u32 s46, s%d, %d' % (S_T0, WS_W2T))
    a('s_lshl_b32 s%d, s30, 4' % S_T0); a('s_lshl_b32 s%d, s%d, 1' % (S_T1, S_WAVE)); a('s_add_u32 s%d, s%d, s%d' % (S_T0, S_T0, S_T1))
    a('s_mul_i32 s%d, s%d, %d' % (S_T0, S_T0, KVP_BLK)); a('s_add_u32 s47, s%d, %d' % (S_T0, WS_KVP))
    a('s_lshl_b32 s%d, s%d, 12' % (S_T0, S_WAVE)); a('v_add_u32 v9, s%d, v2' % S_T0)
    a('s_lshl_b32 s%d, s%d, 10' % (S_T0, S_WAVE)); a('v_add_u32 v10, s%d, v2' % S_T0)
    a('s_lshr_b32 s%d, s%d, 1' % (S_T0, S_WAVE)); a('s_lshl_b32 s%d, s%d, 10' % (S_T0, S_T0))
    a('s_and_b32 s%d, s%d, 1' % (S_T1, S_WAVE)); a('s_lshl_b32 s%d, s%d, 3' % (S_T1, S_T1)); a('s_add_u32 s%d, s%d, s%d' % (S_T0, S_T0, S_T1))
    a('v_add_u32 v11, s%d, v2' % S_T0)
    if poison:
        a('v_mov_b32 v20, -1'); a('v_mov_b32 v21, -1')
        for k in range(5):
            if k == 4:
                skp = a.newlabel('Lw2p'); a('s_cmp_ge_u32 s%d, 4' % S_WAVE); a('s_cbranch_scc1 %s' % skp)
            a('s_add_u32 s%d, s46, %d' % (S_T1, k * 8 * 18 * 1024))
            a('buffer_store_dwordx2 v[20:21], v2, s[64:67], s%d offen %s' % (S_T1, st_flags))
            if k == 4: a.label(skp)
    for var in range(5):
        nxt = a.newlabel('Lw2v')
        a('s_cmp_eq_u32 s31, %d' % var); a('s_cbranch_scc0 %s' % nxt)
        if var == 0: tiles = [(0, 0, 0), (0, 1, 0)]
        elif var == 1: tiles = [(0, 0, 1), (0, 1, 1), (0, 2, 1)]
        elif var == 2: tiles = [(0, 1, 2), (0, 2, 2), (0, 3, 2)]
        elif var == 3: tiles = [(0, 2, 3), (0, 3, 3), (0, 4, 3)]
        else: tiles = [(0, 3, 4), (0, 4, 4), (1, 3, 4), (1, 4, 4)]
        if var == 4:
            a('v_cmp_le_u32 vcc, 8, v6')
            a('v_subrev_u32 v8, 128, v2')
            a('v_cndmask_b32 v8, v2, v8, vcc')
        a_ = tiles[0][2]
        if var == 4:
            a('s_cmp_ge_u32 s%d, 2' % S_WAVE); a('s_cselect_b32 s%d, 8, 0' % S_T1)
            a('v_subrev_u32 v12, s%d, v6' % S_T1)
            a('v_cmp_gt_u32 vcc, 8, v12')
            a('v_mov_b32 v13, 54'); a('v_mov_b32 v15, 0x10000')
            a('v_cndmask_b32 v13, v15, v13, vcc')
        else:
            a('v_add_u32 v12, %d, v6' % (16 * a_))
            a('v_mul_u32_u24 v13, 3641, v12'); a('v_lshrrev_b32 v13, 16, v13'); a('v_mul_u32_u24 v13, 18, v13')
        bl = [t_[1] for t_ in tiles] + [0] * (4 - len(tiles))
        a('s_mov_b32 s%d, 0x%x' % (S_T1, sum(b << (8 * k) for k, b in enumerate(bl))))
        a('s_and_b32 s%d, s%d, 3' % (S_T2, S_WAVE)); a('s_lshl_b32 s%d, s%d, 3' % (S_T2, S_T2)); a('s_lshr_b32 s%d, s%d, s%d' % (S_T1, S_T1, S_T2)); a('s_and_b32 s%d, s%d, 0xff' % (S_T1, S_T1))
        a('s_lshl_b32 s%d, s%d, 4' % (S_T1, S_T1))
        a('v_lshlrev_b32 v12, 2, v7'); a('v_add_u32 v12, s%d, v12' % S_T1); a('v_sub_u32 v12, v12, v13')
        for r in range(4):
            a('v_add_u32 v13, %d, v12' % r)
            a('v_cmp_gt_u32 vcc, 18, v13')
            a('v_cndmask_b32 v%d, 0, 1.0, vcc' % (16 + r))
        a('s_cmp_lt_u32 s%d, %d' % (S_WAVE, len(tiles))); a('s_cselect_b32 s%d, 1.0, 0' % S_T1)
        for r in range(4): a('v_mul_f32 v%d, s%d, v%d' % (16 + r, S_T1, 16 + r))
        if wait_kv: wait_kv(a)
        lp = a.newlabel('Lwp'); lo_ = a.newlabel('Lwo')
        if tagged:
            a('s_mov_b32 s69, 0')
            for r in range(4): a('v_bfe_u32 v%d, s92, %d, 8' % (100 + r, 8 * r))
        a.label(lp)
        for q, (dh, b, a_) in enumerate(tiles):
            for rr in range(2):
                off = dh * 16 * KVP_BLK + rr * KVP_BLK + PIDX[(b, a_)] * 1024
                a('s_add_u32 s%d, s47, %d' % (S_T1, off))
                va = 8 if (var == 4 and dh == 1) else 2
                a('buffer_load_dwordx4 %s, v%d, s[64:67], s%d offen %s' % (vr(64 + 8 * q + 4 * rr, 4), va, S_T1, ld_flags))
        if tagged:
            a('s_add_u32 s69, s69, 1')
            n = 2 * len(tiles)
            for c in range(n):
                a('s_waitcnt vmcnt(%d)' % (n - 1 - c))
                for r in range(4): a('v_xor_b32 v%d, v%d, v%d' % (104 + r, 64 + 4 * c + r, 100 + r))
                if c == 0:
                    a('v_or3_b32 v108, v104, v105, v106'); a('v_or_b32 v108, v108, v107')
                else:
                    a('v_or3_b32 v108, v108, v104, v105'); a('v_or3_b32 v108, v108, v106, v107')
            a('v_and_b32 v108, 0xff, v108')
            a('v_cmp_ne_u32 vcc, 0, v108')
            a('s_cmp_ge_u32 s69, %d' % spin_max); a('s_cbranch_scc1 %s' % lo_)
            a('s_cmp_lg_u64 vcc, 0'); a('s_cbranch_scc1 %s' % lp)
            a.label(lo_)
            if stampf:
                stampf(a, 4); a('s_mov_b32 s85, s69')
        for q in range(len(tiles)):
            if not tagged: a('s_waitcnt vmcnt(%d)' % (2 * (len(tiles) - 1 - q)))
            for k in range(0, 4, 2): a('v_pk_add_f32 %s, %s, %s' % (vr(64 + 8 * q + k, 2), vr(64 + 8 * q + k, 2), vr(64 + 8 * q + 4 + k, 2)))
            a('ds_write_b128 v9, %s offset:%d' % (vr(64 + 8 * q, 4), LDS_W2_RED + q * 1024))
        a('s_branch %s' % end)
        a.label(nxt)
    a.label(end)
    a('s_waitcnt lgkmcnt(0)')
    a('s_barrier')
    if stampf: stampf(a, 5)
    skip = a.newlabel('Lw2skip')
    a('s_cmp_ge_u32 s%d, 4' % S_WAVE); a('s_cbranch_scc1 %s' % skip)
    for w in range(8): a('ds_read_b128 %s, v10 offset:%d' % (vr(64 + 4 * w, 4), LDS_W2_RED + w * 4096))
    for w in range(1, 8):
        a('s_waitcnt lgkmcnt(%d)' % (7 - w))
        for k in range(0, 4, 2): a('v_pk_add_f32 %s, %s, %s' % (vr(64 + k, 2), vr(64 + k, 2), vr(64 + 4 * w + k, 2)))
    for r in range(4):
        a('v_cmp_neq_f32 vcc, 0, v%d' % (16 + r))
        a('v_cndmask_b32 v%d, 0, v%d, vcc' % (64 + r, 64 + r))
    a('v_cvt_pk_bf16_f32 v68, v64, v65'); a('v_cvt_pk_bf16_f32 v69, v66, v67')
    a('ds_write_b64 v11, v[68:69] offset:%d' % LDS_W2_AF)
    a.label(skip)
    a('s_waitcnt vmcnt(0) lgkmcnt(0)')
    a('s_barrier')
    if stampf: stampf(a, 7)
    a('ds_read_b128 v[64:67], v2 offset:%d' % LDS_W2_AF)
    a('ds_read_b128 v[68:71], v2 offset:%d' % (LDS_W2_AF + 1024))
    for k in range(5):
        for u in range(2):
            for h in range(2):
                a('ds_read_b64_tr_b16 %s, v14 offset:%d' % (vr(72 + 8 * k + 4 * u + 2 * h, 2), (u * 32 + h * 16) * W2_PITCH + 256 * k))
    for k in range(5):
        if k == 4:
            skip = a.newlabel('Lw2t'); a('s_cmp_ge_u32 s%d, 4' % S_WAVE); a('s_cbranch_scc1 %s' % skip)
        a('s_waitcnt lgkmcnt(%d)' % min(15, 4 * (4 - k) + 2))
        a('v_mfma_f32_16x16x32_bf16 %s, v[64:67], %s, 0' % (vr(120 + 4 * k, 4), vr(72 + 8 * k, 4)))
        a('s_waitcnt lgkmcnt(%d)' % min(15, 4 * (4 - k)))
        a('v_mfma_f32_16x16x32_bf16 %s, v[68:71], %s, %s' % (vr(120 + 4 * k, 4), vr(76 + 8 * k, 4), vr(120 + 4 * k, 4)))
        if k == 4: a.label(skip)
    for k in range(5):
        if k == 4:
            skip = a.newlabel('Lw2s'); a('s_cmp_ge_u32 s%d, 4' % S_WAVE); a('s_cbranch_scc1 %s' % skip)
        a('v_cvt_pk_bf16_f32 v%d, v%d, v%d' % (140 + 2 * k, 120 + 4 * k, 121 + 4 * k)); a('v_cvt_pk_bf16_f32 v%d, v%d, v%d' % (141 + 2 * k, 122 + 4 * k, 123 + 4 * k))
        a('s_add_u32 s%d, s46, %d' % (S_T1, k * 8 * 18 * 1024))
        a('buffer_store_dwordx2 %s, v2, s[64:67], s%d offen %s' % (vr(140 + 2 * k, 2), S_T1, st_flags))
        if k == 4: a.label(skip)

OUT_ROT = True
OUT_STG = 30720
OUT_NSLOT = 5
OUT_DUM = OUT_STG * OUT_NSLOT
LDS_OUT = OUT_DUM + 1024
def out_setup(a):
    for k in range(4):
        a('s_add_u32 s%d, s%d, %d' % (S_T0, S_WAVE, 8 * k))
        a('s_min_u32 s%d, s%d, 29' % (S_T0, S_T0))
        a('s_mul_i32 s%d, s%d, 6554' % (S_T1, S_T0)); a('s_lshr_b32 s%d, s%d, 16' % (S_T1, S_T1))
        a('s_mul_i32 s%d, s%d, 10' % (S_T2, S_T1)); a('s_sub_u32 s%d, s%d, s%d' % (S_T2, S_T0, S_T2))
        a('s_lshl_b32 s44, s29, 2'); a('s_add_u32 s44, s44, s%d' % S_T2); a('s_mul_i32 s44, s44, 18432'); a('s_add_u32 s44, s44, %d' % WS_PN)
        a('s_mul_i32 s45, s30, 6'); a('s_add_u32 s45, s45, s%d' % S_T2); a('s_mul_i32 s45, s45, 18432'); a('s_add_u32 s45, s45, %d' % (WS_W2T - 4 * 18432))
        a('s_cmp_lt_u32 s%d, 4' % S_T2); a('s_cselect_b32 s44, s44, s45')
        a('s_lshl_b32 s%d, s%d, 10' % (S_T1, S_T1)); a('s_add_u32 s%d, s44, s%d' % (60 + k, S_T1))
    a('v_lshlrev_b32 v2, 4, v0')
    a('s_lshl_b32 s44, s%d, 10' % S_WAVE)
    a('s_cmp_ge_u32 s%d, 6' % S_WAVE); a('s_cselect_b32 s45, 1, 0')
    a('s_and_b32 s%d, s%d, 3' % (S_T0, S_WAVE)); a('s_lshl_b32 s%d, s%d, 10' % (S_T0, S_T0)); a('v_add_u32 v10, s%d, v2' % S_T0)
    a('s_lshr_b32 s%d, s%d, 2' % (S_T0, S_WAVE)); a('s_mul_i32 s%d, s%d, 3072' % (S_T0, S_T0)); a('s_add_u32 s%d, s%d, 4096' % (S_T0, S_T0)); a('v_add_u32 v11, s%d, v2' % S_T0)
    srd(a, 52, P_OUT, S * 1152 * 2)
    a('v_and_b32 v3, 15, v0'); a('v_lshrrev_b32 v4, 4, v0')
    a('s_and_b32 s%d, s%d, 3' % (S_T0, S_WAVE)); a('s_lshl_b32 s%d, s%d, 4' % (S_T0, S_T0)); a('v_add_u32 v3, s%d, v3' % S_T0)
    a('v_mul_u32_u24 v3, %d, v3' % OUT_PITCH); a('v_lshl_add_u32 v3, v4, 3, v3')
    a('s_lshr_b32 s%d, s%d, 2' % (S_T0, S_WAVE)); a('s_mul_i32 s%d, s%d, 96' % (S_T0, S_T0)); a('v_add_u32 v14, s%d, v3' % S_T0)
    for k in range(2):
        a('s_lshl_b32 s%d, s%d, 6' % (S_T0, S_WAVE)); a('s_add_u32 s%d, s%d, %d' % (S_T0, S_T0, 512 * k))
        a('v_add_u32 v5, s%d, v0' % S_T0)
        a('v_mul_u32_u24 v6, 5462, v5'); a('v_lshrrev_b32 v6, 16, v6')
        a('v_mul_u32_u24 v7, 12, v6'); a('v_sub_u32 v7, v5, v7')
        a('v_mul_u32_u24 v8, %d, v6' % OUT_PITCH); a('v_lshl_add_u32 v%d, v7, 4, v8' % (16 + 2 * k))
        a('s_lshl_b32 s%d, s29, 6' % S_T0); a('v_add_u32 v6, s%d, v6' % S_T0)
        a('v_mul_u32_u24 v6, 2304, v6'); a('v_lshl_add_u32 v%d, v7, 4, v6' % (17 + 2 * k))
    a('s_mul_i32 s46, s30, 192')
    a('s_and_b32 s47, s29, 3'); a('s_add_u32 s47, s47, s30'); a('s_cmp_ge_u32 s47, 6'); a('s_cselect_b32 s48, 6, 0'); a('s_sub_u32 s47, s47, s48')
    if not OUT_ROT: a('s_mov_b32 s47, 0')
    a('s_mul_i32 s47, s47, 3072')

def out_dma(a, st, ld_flags):
    slot = (st % OUT_NSLOT) * OUT_STG
    for k in range(4):
        if k < 3:
            a('s_add_u32 m0, s44, %d' % (slot + k * 8192))
        else:
            a('s_add_u32 m0, s44, %d' % (slot + k * 8192))
            a('s_cmp_eq_u32 s45, 0'); a('s_cselect_b32 m0, m0, %d' % OUT_DUM)
        a('s_add_u32 s%d, s%d, s47' % (S_T0, 60 + k))
        a('buffer_load_dwordx4 v2, s[64:67], s%d offen %s lds' % (S_T0, ld_flags))
    a('s_add_u32 s47, s47, 3072'); a('s_cmp_eq_u32 s47, %d' % (6 * 3072)); a('s_cselect_b32 s47, 0, s47')

OUT_FLAGW = OUT_DUM + 1024
def out_main(a, ld_flags='', wait_in=None, stampf=None, verify=None):
    NST = 6
    ACC = 64
    if wait_in: wait_in(a)
    if verify:
        a('s_mov_b32 s49, 0')
        a.label(verify)
        a('v_mov_b32 v20, 0'); a('v_mov_b32 v21, %d' % OUT_FLAGW)
        a('ds_write_b32 v21, v20'); a('s_waitcnt lgkmcnt(0)')
    out_dma(a, 0, ld_flags); a('s_barrier')
    out_dma(a, 1, ld_flags); a('s_barrier')
    out_dma(a, 2, ld_flags)
    if stampf: stampf(a, 1)
    issued = 3
    lg = LG(a)
    F = 80
    for st in range(NST):
        a('s_waitcnt vmcnt(%d)' % (4 * (issued - 1 - st)))
        a('s_barrier')
        if stampf and st in (0, 1, 3, 5): stampf(a, {0: 2, 1: 3, 3: 4, 5: 5}[st]); lg.done = lg.n
        slot = (st % OUT_NSLOT) * OUT_STG
        a('v_add_u32 v12, %d, v10' % slot); a('v_add_u32 v13, %d, v11' % slot)
        def rd(kk):
            s_ = F + 16 * (kk % 2)
            lg.issue('ds_read_b128 %s, v12 offset:%d' % (vr(s_, 4), kk * 10240), [('b', st, kk)])
            for t in range(3): lg.issue('ds_read_b128 %s, v13 offset:%d' % (vr(s_ + 4 + 4 * t, 4), kk * 10240 + t * 1024), [('a', st, kk, t)])
        rd(0); rd(1)
        if issued < NST:
            out_dma(a, issued, ld_flags); issued += 1
        for kk in range(3):
            s_ = F + 16 * (kk % 2)
            for t in range(3):
                lg.wait([('b', st, kk), ('a', st, kk, t)])
                a('v_mfma_f32_16x16x32_bf16 %s, %s, %s, %s' % (vr(ACC + 4 * t, 4), vr(s_ + 4 + 4 * t, 4), vr(s_, 4), vr(ACC + 4 * t, 4) if (st or kk) else '0'))
                if verify:
                    if t == 0: a('v_max3_u32 v20, v20, v%d, v%d' % (s_, s_ + 2))
                    a('v_max3_u32 v20, v20, v%d, v%d' % (s_ + 4 + 4 * t, s_ + 6 + 4 * t))
            if kk == 0: rd(2)
        lg.waitall()
    if verify:
        l = a.newlabel('Lnp')
        a('v_cmp_eq_u32 vcc, -1, v20'); a('s_cmp_eq_u64 vcc, 0'); a('s_cbranch_scc1 %s' % l)
        a('v_mov_b32 v20, 1'); a('ds_write_b32 v21, v20')
        a.label(l)

OUT_PITCH = 208
def out_epilogue(a, st_flags='', verify=None, retry_max=2000):
    ACC = 64
    for t in range(3):
        a('v_cvt_pk_bf16_f32 v%d, v%d, v%d' % (80 + 2 * t, ACC + 4 * t, ACC + 4 * t + 1))
        a('v_cvt_pk_bf16_f32 v%d, v%d, v%d' % (81 + 2 * t, ACC + 4 * t + 2, ACC + 4 * t + 3))
    for t in range(3): a('ds_write_b64 v14, %s offset:%d' % (vr(80 + 2 * t, 2), 2 * OUT_STG + 32 * t))
    a('s_waitcnt lgkmcnt(0)')
    a('s_barrier')
    if verify: a('ds_read_b32 v22, v21')
    a('ds_read_b128 v[88:91], v16 offset:%d' % (2 * OUT_STG))
    a('ds_read_b128 v[92:95], v18 offset:%d' % (2 * OUT_STG))
    if verify:
        ok = a.newlabel('Lok')
        a('s_waitcnt lgkmcnt(2)')
        a('v_readfirstlane_b32 s48, v22')
        a('s_cmp_eq_u32 s48, 0'); a('s_cbranch_scc1 %s' % ok)
        a('s_add_u32 s49, s49, 1'); a('s_cmp_ge_u32 s49, %d' % retry_max); a('s_cbranch_scc1 %s' % ok)
        a('s_waitcnt lgkmcnt(0)'); a('s_barrier')
        a('s_branch %s' % verify)
        a.label(ok)
    skip = a.newlabel('Lout'); a('s_cmp_ge_u32 s%d, 4' % S_WAVE); a('s_cbranch_scc1 %s' % skip)
    a('s_waitcnt lgkmcnt(0)')
    a('buffer_store_dwordx4 v[92:95], v19, s[52:55], s46 offen %s' % st_flags)
    a.label(skip)
    a('s_waitcnt lgkmcnt(0)')
    a('buffer_store_dwordx4 v[88:91], v17, s[52:55], s46 offen %s' % st_flags)
for q in range(768): assert (q * 5462) >> 16 == q // 12
for f in range(30): assert (f * 6554) >> 16 == f // 10


O2_P = 64
O2_R = 136
O2_ACC = 24
O2_A = 40
O2_S = 168
LDS_OUT2 = 108 * 1024 + 4 * 1024
def out2_setup(a):
    a('v_lshlrev_b32 v2, 4, v0')
    a('s_lshl_b32 s44, s%d, 10' % S_WAVE)
    a('s_mul_i32 s45, s29, %d' % (4 * 18432)); a('s_add_u32 s45, s45, s44'); a('s_add_u32 s45, s45, %d' % WS_PN)
    a('s_and_b32 s%d, s%d, 3' % (S_T0, S_WAVE)); a('s_mul_i32 s%d, s%d, 18432' % (S_T1, S_T0)); a('v_add_u32 v10, s%d, v2' % S_T1)
    a('s_lshl_b32 s%d, s29, 6' % S_T1); a('s_lshl_b32 s%d, s%d, 4' % (S_T0, S_T0)); a('s_add_u32 s%d, s%d, s%d' % (S_T0, S_T0, S_T1))
    a('v_and_b32 v3, 15, v0'); a('v_add_u32 v3, s%d, v3' % S_T0); a('v_lshlrev_b32 v12, 4, v3'); a('v_add_u32 v12, %d, v12' % WS_RD)
    a('s_mul_i32 s46, s30, %d' % (6 * 18432)); a('s_add_u32 s46, s46, %d' % WS_W2T)
    a('s_lshr_b32 s%d, s%d, 2' % (S_T0, S_WAVE)); a('s_mul_i32 s%d, s%d, 3072' % (S_T0, S_T0)); a('v_add_u32 v11, s%d, v2' % S_T0)
    srd(a, 52, P_OUT, S * 1152 * 2)
    a('v_and_b32 v3, 15, v0'); a('v_lshrrev_b32 v4, 4, v0')
    a('s_and_b32 s%d, s%d, 3' % (S_T0, S_WAVE)); a('s_lshl_b32 s%d, s%d, 4' % (S_T0, S_T0)); a('v_add_u32 v3, s%d, v3' % S_T0)
    a('v_mul_u32_u24 v3, %d, v3' % OUT_PITCH); a('v_lshl_add_u32 v3, v4, 3, v3')
    a('s_lshr_b32 s%d, s%d, 2' % (S_T0, S_WAVE)); a('s_mul_i32 s%d, s%d, 96' % (S_T0, S_T0)); a('v_add_u32 v14, s%d, v3' % S_T0)
    for k in range(2):
        a('s_lshl_b32 s%d, s%d, 6' % (S_T0, S_WAVE)); a('s_add_u32 s%d, s%d, %d' % (S_T0, S_T0, 512 * k))
        a('v_add_u32 v5, s%d, v0' % S_T0)
        a('v_mul_u32_u24 v6, 5462, v5'); a('v_lshrrev_b32 v6, 16, v6')
        a('v_mul_u32_u24 v7, 12, v6'); a('v_sub_u32 v7, v5, v7')
        a('v_mul_u32_u24 v8, %d, v6' % OUT_PITCH); a('v_lshl_add_u32 v%d, v7, 4, v8' % (16 + 2 * k))
        a('s_lshl_b32 s%d, s29, 6' % S_T0); a('v_add_u32 v6, s%d, v6' % S_T0)
        a('v_mul_u32_u24 v6, 2304, v6'); a('v_lshl_add_u32 v%d, v7, 4, v6' % (17 + 2 * k))
    a('s_mul_i32 s47, s30, 192')
    for r in range(4): a('v_bfe_u32 v%d, s92, %d, 8' % (20 + r, 8 * r))

def out2_w2_dma(a, ld_flags):
    for k in range(14):
        a('s_add_u32 s%d, s%d, %d' % (S_T0, S_WAVE, 8 * k))
        if k == 13: a('s_min_u32 s%d, s%d, 107' % (S_T0, S_T0))
        a('s_mul_i32 s%d, s%d, 10923' % (S_T1, S_T0)); a('s_lshr_b32 s%d, s%d, 16' % (S_T1, S_T1))
        a('s_mul_i32 s%d, s%d, 6' % (S_T2, S_T1)); a('s_sub_u32 s%d, s%d, s%d' % (S_T2, S_T0, S_T2))
        a('s_mul_i32 s%d, s%d, 18' % (S_T2, S_T2)); a('s_add_u32 s%d, s%d, s%d' % (S_T2, S_T2, S_T1)); a('s_lshl_b32 s%d, s%d, 10' % (S_T2, S_T2))
        a('s_add_u32 s%d, s%d, s46' % (S_T2, S_T2))
        a('s_add_u32 m0, s44, %d' % (k * 8192))
        a('s_nop 0')
        a('buffer_load_dwordx4 v2, s[64:67], s%d offen %s lds' % (S_T2, ld_flags))
for f in range(112): assert (f * 10923) >> 16 == f // 6

def out2_pre(a, ld_flags, wait_pq, spin_max, stampf=None):
    wait_pq(a)
    for k in range(9):
        a('s_add_u32 m0, s44, %d' % (k * 8192))
        a('s_add_u32 s%d, s45, %d' % (S_T0, k * 8192))
        a('buffer_load_dwordx4 v2, s[64:67], s%d offen %s lds' % (S_T0, ld_flags))
    lp = a.newlabel('Lrp'); lo_ = a.newlabel('Lro')
    a('s_mov_b32 s69, 0')
    a.label(lp)
    for h in range(8):
        a('s_mov_b32 s%d, %d' % (S_T0, h * 32768))
        a('buffer_load_dwordx4 %s, v12, s[64:67], s%d offen %s' % (vr(O2_R + 4 * h, 4), S_T0, ld_flags))
    a('s_add_u32 s69, s69, 1')
    for h in range(8):
        a('s_waitcnt vmcnt(%d)' % (7 - h))
        for r in range(4): a('v_xor_b32 v%d, v%d, v%d' % (4 + r, O2_R + 4 * h + r, 20 + r))
        if h == 0:
            a('v_or3_b32 v8, v4, v5, v6'); a('v_or_b32 v8, v8, v7')
        else:
            a('v_or3_b32 v8, v8, v4, v5'); a('v_or3_b32 v8, v8, v6, v7')
    a('v_and_b32 v8, 0xff, v8')
    a('v_cmp_ne_u32 vcc, 0, v8')
    a('s_cmp_ge_u32 s69, %d' % spin_max); a('s_cbranch_scc1 %s' % lo_)
    a('s_cmp_lg_u64 vcc, 0'); a('s_cbranch_scc1 %s' % lp)
    a.label(lo_)
    if stampf: stampf(a, 5)
    a('s_barrier')
    for j in range(18): a('ds_read_b128 %s, v10 offset:%d' % (vr(O2_P + 4 * j, 4), j * 1024))
    a('s_mov_b64 s[48:49], 0xffff'); a('s_mov_b32 s50, -1'); a('s_mov_b32 s51, 0')
    def R(h): return O2_R + h
    sc = {}
    n = O2_S
    for hg in range(8):
        h0, h1, h2, h3 = (R(4 * hg + i) for i in range(4))
        a('v_cndmask_b32 v%d, v%d, v%d, s[48:49]' % (n + 0, h1, h0))
        a('v_cndmask_b32 v%d, v%d, v%d, s[48:49]' % (n + 1, h2, h1))
        a('v_cndmask_b32 v%d, v%d, v%d, s[50:51]' % (n + 2, h3, h2))
        a('v_cndmask_b32 v%d, v%d, v%d, s[48:49]' % (n + 3, h3, h2))
        sc[(hg, 0)] = [h0, h0, n + 0, h1]
        sc[(hg, 1)] = [n + 1, n + 1, n + 2, n + 3]
        n += 4
    mg = {}
    for G in range(4):
        a('v_cndmask_b32 v%d, v%d, v%d, s[50:51]' % (n, R(4 * (2 * G + 1) + 3), R(4 * (2 * G) + 3)))
        mg[G] = n; n += 1
    assert n <= 204
    a('s_waitcnt lgkmcnt(0)')
    a('s_barrier')
    return sc, mg

def out2_scale(a, sc, mg):
    a('s_mov_b32 s58, 0xffff0000')
    T = 206
    for j in range(18):
        if j < 16:
            G = j >> 2; nw = (j >> 1) & 1; s4 = sc[(2 * G + nw, j & 1)]
        else:
            G0 = 2 * (j - 16); s4 = [mg[G0], mg[G0], mg[G0 + 1], mg[G0 + 1]]
        for d in range(4):
            p = O2_P + 4 * j + d; t = T + 2 * d
            a('v_lshlrev_b32 v%d, 16, v%d' % (t, p)); a('v_and_b32 v%d, s58, v%d' % (t + 1, p))
        for d in range(4):
            t = T + 2 * d; sreg = s4[d]
            if sreg % 2 == 0: a('v_pk_mul_f32 %s, %s, %s op_sel_hi:[1,0]' % (vr(t, 2), vr(t, 2), vr(sreg, 2)))
            else: a('v_pk_mul_f32 %s, %s, %s op_sel:[0,1] op_sel_hi:[1,1]' % (vr(t, 2), vr(t, 2), vr(sreg - 1, 2)))
        for d in range(4):
            p = O2_P + 4 * j + d; t = T + 2 * d
            a('v_cvt_pk_bf16_f32 v%d, v%d, v%d' % (p, t, t + 1))

def out2_main(a):
    lg = LG(a)
    for c in range(3):
        a('s_waitcnt vmcnt(%d)' % (9, 5, 0)[c])
        a('s_barrier')
        def rd(j):
            s_ = O2_A + 12 * (j % 2)
            for t in range(3): lg.issue('ds_read_b128 %s, v%d offset:%d' % (vr(s_ + 4 * t, 4), 11 if j < 9 else 9, (j if j < 9 else j - 9) * 6144 + t * 1024), [('a', j, t)])
        if c == 0: a('v_add_u32 v9, %d, v11' % (9 * 6144))
        j0 = 6 * c
        rd(j0)
        for j in range(j0, j0 + 6):
            if j + 1 < j0 + 6: rd(j + 1)
            s_ = O2_A + 12 * (j % 2)
            for t in range(3):
                lg.wait([('a', j, t)])
                a('v_mfma_f32_16x16x32_bf16 %s, %s, %s, %s' % (vr(O2_ACC + 4 * t, 4), vr(s_ + 4 * t, 4), vr(O2_P + 4 * j, 4), vr(O2_ACC + 4 * t, 4) if j else '0'))

O2_STG = 110592 + 1024
def out2_epilogue(a, st_flags=''):
    for t in range(3):
        a('v_cvt_pk_bf16_f32 v%d, v%d, v%d' % (80 + 2 * t, O2_ACC + 4 * t, O2_ACC + 4 * t + 1))
        a('v_cvt_pk_bf16_f32 v%d, v%d, v%d' % (81 + 2 * t, O2_ACC + 4 * t + 2, O2_ACC + 4 * t + 3))
    for r in (14, 16, 18): a('v_add_u32 v%d, %d, v%d' % (r, O2_STG + 4096, r))
    for t in range(3): a('ds_write_b64 v14, %s offset:%d' % (vr(80 + 2 * t, 2), 32 * t))
    a('s_waitcnt lgkmcnt(0)')
    a('s_barrier')
    a('ds_read_b128 v[88:91], v16')
    skip = a.newlabel('Lout'); a('s_cmp_ge_u32 s%d, 4' % S_WAVE); a('s_cbranch_scc1 %s' % skip)
    a('ds_read_b128 v[92:95], v18')
    a('s_waitcnt lgkmcnt(0)')
    a('buffer_store_dwordx4 v[92:95], v19, s[52:55], s47 offen %s' % st_flags)
    a.label(skip)
    a('s_waitcnt lgkmcnt(0)')
    a('buffer_store_dwordx4 v[88:91], v17, s[52:55], s47 offen %s' % st_flags)
LDS_OUT2 = O2_STG + 4096 + 64 * OUT_PITCH


O3_R = 136
O3_S = 168
def out3_rden_issue(a, ld_flags):
    for h in range(8):
        a('s_mov_b32 s%d, %d' % (S_T0, h * 32768))
        a('buffer_load_dwordx4 %s, v23, s[64:67], s%d offen %s' % (vr(O3_R + 4 * h, 4), S_T0, ld_flags))
def out3_setup(a):
    out_setup(a)
    a('s_and_b32 s%d, s%d, 3' % (S_T0, S_WAVE)); a('s_lshl_b32 s%d, s%d, 4' % (S_T0, S_T0)); a('s_lshl_b32 s%d, s29, 6' % S_T1); a('s_add_u32 s%d, s%d, s%d' % (S_T0, S_T0, S_T1))
    a('v_and_b32 v23, 15, v0'); a('v_add_u32 v23, s%d, v23' % S_T0); a('v_lshlrev_b32 v23, 4, v23'); a('v_add_u32 v23, %d, v23' % WS_RD)
    for r in range(4): a('v_bfe_u32 v%d, s92, %d, 8' % (24 + r, 8 * r))
def out3_rden_check(a, ld_flags, spin_max):
    lp = a.newlabel('Lrp'); lo_ = a.newlabel('Lro'); lc = a.newlabel('Lrc')
    a('s_mov_b32 s69, 0')
    a('s_branch %s' % lc)
    a.label(lp)
    out3_rden_issue(a, ld_flags)
    a.label(lc)
    a('s_add_u32 s69, s69, 1')
    for h in range(8):
        a('s_waitcnt vmcnt(%d)' % (7 - h))
        for r in range(4): a('v_xor_b32 v%d, v%d, v%d' % (4 + r, O3_R + 4 * h + r, 24 + r))
        if h == 0:
            a('v_or3_b32 v8, v4, v5, v6'); a('v_or_b32 v8, v8, v7')
        else:
            a('v_or3_b32 v8, v8, v4, v5'); a('v_or3_b32 v8, v8, v6, v7')
    a('v_and_b32 v8, 0xff, v8')
    a('v_cmp_ne_u32 vcc, 0, v8')
    a('s_cmp_ge_u32 s69, %d' % spin_max); a('s_cbranch_scc1 %s' % lo_)
    a('s_cmp_lg_u64 vcc, 0'); a('s_cbranch_scc1 %s' % lp)
    a.label(lo_)
    a('s_mov_b64 s[48:49], 0xffff'); a('s_mov_b32 s50, -1'); a('s_mov_b32 s51, 0')
    def R(h): return O3_R + h
    sc = {}; n = O3_S
    for hg in range(8):
        h0, h1, h2, h3 = (R(4 * hg + i) for i in range(4))
        a('v_cndmask_b32 v%d, v%d, v%d, s[48:49]' % (n + 0, h1, h0))
        a('v_cndmask_b32 v%d, v%d, v%d, s[48:49]' % (n + 1, h2, h1))
        a('v_cndmask_b32 v%d, v%d, v%d, s[50:51]' % (n + 2, h3, h2))
        a('v_cndmask_b32 v%d, v%d, v%d, s[48:49]' % (n + 3, h3, h2))
        sc[(hg, 0)] = [h0, h0, n + 0, h1]; sc[(hg, 1)] = [n + 1, n + 1, n + 2, n + 3]
        n += 4
    mg = {}
    for G in range(4):
        a('v_cndmask_b32 v%d, v%d, v%d, s[50:51]' % (n, R(4 * (2 * G + 1) + 3), R(4 * (2 * G) + 3)))
        mg[G] = n; n += 1
    assert n <= 204
    return sc, mg

def out3_main(a, sc, mg, ld_flags, wait_in, verify, stampf=None):
    NST = 6; ACC = 64
    wait_in(a)
    a('s_mov_b32 s49, 0')
    a.label(verify)
    a('v_mov_b32 v20, 0'); a('v_mov_b32 v21, %d' % OUT_FLAGW)
    a('ds_write_b32 v21, v20'); a('s_waitcnt lgkmcnt(0)')
    a('s_mov_b32 s58, 0xffff0000')
    out_dma(a, 0, ld_flags); a('s_barrier')
    out_dma(a, 1, ld_flags); a('s_barrier')
    out_dma(a, 2, ld_flags)
    if stampf: stampf(a, 1)
    issued = 3
    lg = LG(a)
    F = 80; T = 206; PS = 112
    for st in range(NST):
        a('s_waitcnt vmcnt(%d)' % (4 * (issued - 1 - st)))
        a('s_barrier')
        if stampf and st in (0, 1, 3, 5): stampf(a, {0: 2, 1: 3, 3: 4, 5: 5}[st]); lg.done = lg.n
        slot = (st % OUT_NSLOT) * OUT_STG
        a('v_add_u32 v12, %d, v10' % slot); a('v_add_u32 v13, %d, v11' % slot)
        def rd(kk):
            s_ = F + 16 * (kk % 2)
            lg.issue('ds_read_b128 %s, v12 offset:%d' % (vr(s_, 4), kk * 10240), [('b', st, kk)])
            for t in range(3): lg.issue('ds_read_b128 %s, v13 offset:%d' % (vr(s_ + 4 + 4 * t, 4), kk * 10240 + t * 1024), [('a', st, kk, t)])
        def scale(kk):
            j = 3 * st + kk; s_ = F + 16 * (kk % 2); ps = PS + 4 * (kk % 2)
            if j < 16:
                G = j >> 2; nw = (j >> 1) & 1; s4 = sc[(2 * G + nw, j & 1)]
            else:
                G0 = 2 * (j - 16); s4 = [mg[G0], mg[G0], mg[G0 + 1], mg[G0 + 1]]
            lg.wait([('b', st, kk)])
            for d in range(4):
                t = T + 2 * d
                a('v_lshlrev_b32 v%d, 16, v%d' % (t, s_ + d)); a('v_and_b32 v%d, s58, v%d' % (t + 1, s_ + d))
            for d in range(4):
                t = T + 2 * d; sreg = s4[d]
                a('v_mul_f32 v%d, v%d, v%d' % (t, t, sreg)); a('v_mul_f32 v%d, v%d, v%d' % (t + 1, t + 1, sreg))
            for d in range(4):
                t = T + 2 * d
                a('v_cvt_pk_bf16_f32 v%d, v%d, v%d' % (ps + d, t, t + 1))
        rd(0); rd(1)
        if issued < NST:
            out_dma(a, issued, ld_flags); issued += 1
        scale(0)
        for kk in range(3):
            s_ = F + 16 * (kk % 2); ps = PS + 4 * (kk % 2)
            for t in range(3):
                lg.wait([('a', st, kk, t)])
                a('v_mfma_f32_16x16x32_bf16 %s, %s, %s, %s' % (vr(ACC + 4 * t, 4), vr(s_ + 4 + 4 * t, 4), vr(ps, 4), vr(ACC + 4 * t, 4) if (st or kk) else '0'))
                a('v_max3_u32 v20, v20, v%d, v%d' % (s_ + 4 + 4 * t, s_ + 6 + 4 * t))
                if t == 0 and kk < 2:
                    if kk == 0:
                        scale(1)
                    else:
                        pass
            if kk == 0:
                rd(2)
            if kk == 1:
                scale(2)
        lg.waitall()
    l = a.newlabel('Lnp')
    a('v_cmp_eq_u32 vcc, -1, v20'); a('s_cmp_eq_u64 vcc, 0'); a('s_cbranch_scc1 %s' % l)
    a('v_mov_b32 v20, 1'); a('ds_write_b32 v21, v20')
    a.label(l)
```

```python
import sys
from common import *
import common, gemm1, w2out, bpart

S_NONCE = 70
S_X, S_SLOT = 71, 72
F_U, F_KV, F_PN, F_W2, F_Y = 0, 64, 192, 256, 320
ST = 'sc1'; LD = 'sc1'
SPIN_MAX = 100000
PREFETCH = True
ROT = True
OUTV2 = False
OUTV3 = False
PV = True
ENTRYPF = True
PVQ = False
HINT_EARLY = True
OUTLD = 'sc1'
OUTST = 'sc1'
MAINONLY = NOQ = NOB = False
IDLEPF = False
ROTMODE = 'full'
CODE_END = 'Lcode_end'
SRD_F = 64

def nonce_publish(a):
    l = a.newlabel('Lnpub')
    a('s_or_b32 s68, s2, s%d' % S_WAVE); a('s_cmp_eq_u32 s68, 0'); a('s_cbranch_scc0 %s' % l)
    srd(a, 60, P_DBG, 256)
    a('s_memrealtime s[68:69]'); a('v_mov_b32 v240, 0'); a('s_waitcnt lgkmcnt(0)')
    a('s_or_b32 s68, s68, 1')
    a('v_mov_b32 v241, s68')
    a('s_mov_b64 s[68:69], exec'); a('s_mov_b64 exec, 1')
    a('buffer_store_dword v241, v240, s[60:63], 0 offen sc1')
    a('s_mov_b64 exec, s[68:69]')
    a.label(l)

def nonce_issue(a):
    l = a.newlabel('Lni')
    a('s_cmp_eq_u32 s%d, 0' % S_WAVE); a('s_cbranch_scc0 %s' % l)
    srd(a, 60, P_DBG, 256)
    a('v_mov_b32 v240, 0')
    a('buffer_load_dword v239, v240, s[60:63], 0 offen sc1')
    a.label(l)

def nonce_finish(a):
    l = a.newlabel('Lnf'); p = a.newlabel('Lnq')
    a('s_cmp_eq_u32 s%d, 0' % S_WAVE); a('s_cbranch_scc0 %s' % l)
    srd(a, 60, P_DBG, 256)
    a('s_mov_b32 s69, 0'); a('v_mov_b32 v240, 0')
    a('s_waitcnt vmcnt(0)')
    a('v_readfirstlane_b32 s%d, v239' % S_NONCE)
    a('s_cmp_lg_u32 s%d, 0' % S_NONCE); a('s_cbranch_scc1 %s' % l)
    a.label(p)
    a('buffer_load_dword v239, v240, s[60:63], 0 offen sc1')
    a('s_add_u32 s69, s69, 1')
    a('s_waitcnt vmcnt(0)')
    a('v_readfirstlane_b32 s%d, v239' % S_NONCE)
    a('s_cmp_ge_u32 s69, %d' % SPIN_MAX); a('s_cbranch_scc1 %s' % l)
    a('s_cmp_eq_u32 s%d, 0' % S_NONCE)
    a('s_cbranch_scc1 %s' % p)
    a.label(l)

def nonce_issue_all(a):
    srd(a, 60, P_DBG, 256)
    a('v_mov_b32 v240, 0')
    a('buffer_load_dword v239, v240, s[60:63], 0 offen sc1')

def nonce_finish_all(a):
    l = a.newlabel('Lnf'); p = a.newlabel('Lnq')
    a('s_waitcnt vmcnt(0)')
    a('v_readfirstlane_b32 s%d, v239' % S_NONCE)
    a('s_cmp_lg_u32 s%d, 0' % S_NONCE); a('s_cbranch_scc1 %s' % l)
    srd(a, 60, P_DBG, 256)
    a('s_mov_b32 s69, 0'); a('v_mov_b32 v240, 0')
    a.label(p)
    a('buffer_load_dword v239, v240, s[60:63], 0 offen sc1')
    a('s_add_u32 s69, s69, 1')
    a('s_waitcnt vmcnt(0)')
    a('v_readfirstlane_b32 s%d, v239' % S_NONCE)
    a('s_cmp_ge_u32 s69, %d' % SPIN_MAX); a('s_cbranch_scc1 %s' % l)
    a('s_cmp_eq_u32 s%d, 0' % S_NONCE)
    a('s_cbranch_scc1 %s' % p)
    a.label(l)

def tag_ready(a):
    l = a.newlabel('Ltr')
    a('v_readfirstlane_b32 s%d, v239' % S_NONCE)
    a('s_cmp_lg_u32 s%d, 0' % S_NONCE); a('s_cbranch_scc1 %s' % l)
    nonce_issue_all(a); nonce_finish_all(a)
    a.label(l)
    a('s_mul_i32 s92, s%d, 0x9E3779B1' % S_NONCE)

def hint(a, idx_sgpr_expr):
    l = a.newlabel('Lhint')
    a('s_cmp_eq_u32 s%d, 0' % S_WAVE); a('s_cbranch_scc0 %s' % l)
    idx_sgpr_expr(a)
    a('s_lshl_b32 s68, s68, 7'); a('s_add_u32 s68, s68, %d' % WS_FLAG)
    a('v_mov_b32 v240, 0'); a('v_mov_b32 v241, s%d' % S_NONCE)
    a('s_mov_b64 exec, 1')
    a('buffer_store_dword v241, v240, s[%d:%d], s68 offen sc1' % (SRD_F, SRD_F + 3))
    a('s_mov_b64 exec, -1')
    a.label(l)

def wave_wait_flags(a, lane_idx):
    l = a.newlabel('Lwf'); p = a.newlabel('Lwp')
    lane_idx(a)
    a('v_lshlrev_b32 v242, 7, v242'); a('v_add_u32 v242, %d, v242' % WS_FLAG)
    a('s_mov_b32 s69, 0')
    a.label(p)
    a('buffer_load_dword v243, v242, s[%d:%d], 0 offen sc1' % (SRD_F, SRD_F + 3))
    a('s_add_u32 s69, s69, 1')
    a('s_waitcnt vmcnt(0)')
    a('v_cmp_ne_u32 vcc, s%d, v243' % S_NONCE)
    a('s_cmp_ge_u32 s69, %d' % SPIN_MAX); a('s_cbranch_scc1 %s' % l)
    a('s_cmp_lg_u64 vcc, 0')
    a('s_cbranch_scc1 %s' % p)
    a.label(l)

PF = 238
def prefetch0(a):
    l_d = a.newlabel('Lpfd'); l_e = a.newlabel('Lpfe')
    a('s_and_b32 s56, s%d, 15' % S_SLOT); a('s_cmp_eq_u32 s56, 0'); a('s_cbranch_scc1 %s' % l_d)
    a('v_mov_b32 v3, 0'); a('buffer_load_dword v%d, v3, s[32:35], 0 offen' % PF)
    a('s_branch %s' % l_e)
    a.label(l_d)
    a('s_getpc_b64 s[56:57]')
    pcl = a.newlabel('Lpc'); a.label(pcl)
    a('s_lshl_b32 s59, s%d, 13' % S_WAVE)
    a('v_lshlrev_b32 v2, 7, v0'); a('v_add_u32 v2, s59, v2')
    a('v_min_u32 v2, %s - %s, v2' % (CODE_END, pcl))
    a('v_mov_b32 v5, s57'); a('v_add_co_u32 v4, vcc, s56, v2'); a('v_addc_co_u32 v5, vcc, 0, v5, vcc')
    a('global_load_dword v%d, v[4:5], off' % PF)
    a.label(l_e)
for q in range(7680): assert (q * 34953) >> 19 == q // 15
for q in range(15): assert (q * 13108) >> 16 == q // 5

def prefetch1(a, iskv):
    nonce_issue_all(a)

def idle_prefetch(a):
    a('s_sub_u32 s56, s73, 36'); a('s_lshl_b32 s56, s56, 3'); a('s_add_u32 s56, s56, s%d' % S_WAVE)
    a('v_and_b32 v3, 7, v0'); a('v_lshlrev_b32 v3, 21, v3')
    a('v_min_u32 v4, %d, v3' % (WS_END - 4))
    a('buffer_load_dword v%d, v4, s[%d:%d], 0 offen' % (PF, SRD_F, SRD_F + 3))
    srd(a, 60, P_OUT, S * 1152 * 2)
    a('v_min_u32 v4, %d, v3' % (S * 1152 * 2 - 4))
    a('buffer_load_dword v%d, v4, s[60:63], 0 offen' % PF)
    a('v_lshlrev_b32 v3, 7, v0')
    for ptr, nb, n in ((P_H, D * S * 2, 288), (P_WO, D * D * 2, 81), (P_Q, S * D * 2, 288)):
        srd(a, 60, ptr, nb)
        for k in range((n + 223) // 224):
            a('s_add_u32 s57, s56, %d' % (224 * k)); a('s_lshl_b32 s57, s57, 13')
            a('buffer_load_dword v%d, v3, s[60:63], s57 offen' % PF)

def publish(a, idx_sgpr_expr, lgkm=False):
    a('s_waitcnt vmcnt(0) lgkmcnt(0)' if lgkm else 's_waitcnt vmcnt(0)')
    a('s_barrier')
    l = a.newlabel('Lpub')
    a('s_cmp_eq_u32 s%d, 0' % S_WAVE); a('s_cbranch_scc0 %s' % l)
    idx_sgpr_expr(a)
    a('s_lshl_b32 s68, s68, 7'); a('s_add_u32 s68, s68, %d' % WS_FLAG)
    a('v_mov_b32 v240, 0'); a('v_mov_b32 v241, s%d' % S_NONCE)
    a('s_mov_b64 s[74:75], exec'); a('s_mov_b64 exec, 1')
    a('buffer_store_dword v241, v240, s[%d:%d], s68 offen sc1' % (SRD_F, SRD_F + 3))
    a('s_mov_b64 exec, s[74:75]')
    a.label(l)

def wait_flags(a, lane_idx):
    l = a.newlabel('Lwf'); p = a.newlabel('Lwp')
    a('s_cmp_eq_u32 s%d, 0' % S_WAVE); a('s_cbranch_scc0 %s' % l)
    lane_idx(a)
    a('v_lshlrev_b32 v242, 7, v242'); a('v_add_u32 v242, %d, v242' % WS_FLAG)
    a('s_mov_b32 s69, 0')
    a.label(p)
    a('buffer_load_dword v243, v242, s[%d:%d], 0 offen sc1' % (SRD_F, SRD_F + 3))
    a('s_add_u32 s69, s69, 1')
    a('s_waitcnt vmcnt(0)')
    a('v_cmp_ne_u32 vcc, s%d, v243' % S_NONCE)
    a('s_cmp_ge_u32 s69, %d' % SPIN_MAX); a('s_cbranch_scc1 %s' % l)
    a('s_cmp_lg_u64 vcc, 0')
    a('s_cbranch_scc1 %s' % p)
    a.label(l)
    a('s_barrier')

def rot_override(a):
    if not ROT or ROTMODE == 'none': a('s_mov_b32 s41, 0')
    elif ROTMODE == 'r3':
        a('s_and_b32 s41, s29, 3'); a('s_and_b32 s42, s30, 3'); a('s_add_u32 s41, s41, s42')
        a('s_cmp_ge_u32 s41, 3'); a('s_cselect_b32 s42, 3, 0'); a('s_sub_u32 s41, s41, s42')
        a('s_cmp_ge_u32 s41, 3'); a('s_cselect_b32 s42, 3, 0'); a('s_sub_u32 s41, s41, s42'); a('s_mul_i32 s41, s41, 3')
    elif ROTMODE == 'r2':
        a('s_and_b32 s41, s29, 1'); a('s_lshl_b32 s41, s41, 2')
    elif ROTMODE == 'rt':
        a('s_and_b32 s41, s29, 3'); a('s_lshl_b32 s41, s41, 1')

def k_persist(name):
    a = Asm()
    a('s_cmp_ge_u32 s2, 256'); a('s_cbranch_scc1 %s_end' % name)
    a('s_load_dwordx16 s[4:19], s[0:1], 0')
    a('s_load_dwordx8 s[20:27], s[0:1], 64')
    a('v_lshrrev_b32 v1, 6, v0')
    a('v_and_b32 v0, 63, v0')
    a('s_and_b32 s%d, s2, 7' % S_X); a('s_lshr_b32 s%d, s2, 3' % S_SLOT)
    a('v_readfirstlane_b32 s%d, v1' % S_WAVE)
    a('s_mov_b32 s96, 0')
    if ENTRYPF:
        lpf = a.newlabel('Lentrypf')
        a('s_and_b32 s56, s%d, 7' % S_SLOT); a('s_cmp_eq_u32 s56, 0'); a('s_cbranch_scc0 %s' % lpf)
        a('s_getpc_b64 s[56:57]')
        pcl = a.newlabel('Lpc'); a.label(pcl)
        a('s_lshl_b32 s59, s%d, 13' % S_WAVE)
        a('v_lshlrev_b32 v2, 7, v0'); a('v_add_u32 v2, s59, v2')
        a('v_min_u32 v2, %s - %s, v2' % (CODE_END, pcl))
        a('v_mov_b32 v5, s57'); a('v_add_co_u32 v4, vcc, s56, v2'); a('v_addc_co_u32 v5, vcc, 0, v5, vcc')
        a('global_load_dword v%d, v[4:5], off' % PF)
        a.label(lpf)
    def kernarg_ready():
        a('s_waitcnt lgkmcnt(0)')
        stamp_init(a); stamp(a, 0)
        srd(a, SRD_F, P_WS, WS_END)
    L_Q, L_B, L_OUT, L_B3, L_END = [name + s_ for s_ in ('_q', '_b', '_out', '_b3', '_fin')]
    a('s_cmp_ge_u32 s%d, 24' % S_SLOT); a('s_cbranch_scc1 %s' % L_B)
    a('s_cmp_ge_u32 s%d, 16' % S_SLOT); a('s_cbranch_scc1 %s' % L_Q)
    EX = 3 if PREFETCH else 0
    a('s_and_b32 s41, s%d, 3' % S_X); a('s_lshl_b32 s41, s41, 2'); a('s_and_b32 s29, s%d, 3' % S_SLOT); a('s_add_u32 s29, s29, s41')
    a('s_lshr_b32 s41, s%d, 2' % S_X); a('s_lshl_b32 s41, s41, 2'); a('s_lshr_b32 s30, s%d, 2' % S_SLOT); a('s_add_u32 s30, s30, s41')
    a('s_and_b32 s41, s29, 3'); a('s_lshl_b32 s41, s41, 1'); a('s_and_b32 s42, s30, 3'); a('s_mul_i32 s42, s42, 3'); a('s_add_u32 s41, s41, s42')
    a('s_cmp_ge_u32 s41, 9'); a('s_cselect_b32 s42, 9, 0'); a('s_sub_u32 s41, s41, s42')
    rot_override(a)
    gemm1.gemm1_rot(a, 41)
    gemm1.gemm1_lanes(a, False)
    kernarg_ready()
    gemm1.gemm1_srds(a)
    L_KVNEXT = name + '_kvnext'; L_CONVMAIN = name + '_convmain'
    def idx_kv(a): a('s_lshl_b32 s68, s30, 4'); a('s_add_u32 s68, s68, s91'); a('s_add_u32 s68, s68, %d' % F_KV)
    def u_flag_lane(a):
        a('v_and_b32 v242, 31, v0'); a('s_bfe_u32 s68, s93, 0x10004'); a('s_lshl_b32 s68, s68, 5'); a('s_add_u32 s68, s68, %d' % F_U); a('v_add_u32 v242, s68, v242')
    def kv_shadow(a):
        def c0():
            a('s_lshl_b32 s73, s%d, 3' % S_SLOT); a('s_add_u32 s73, s73, s%d' % S_X)
            a('s_mov_b32 s91, s29')
            tag_ready(a)
        def c1():
            a('s_min_u32 s93, s73, 115'); a('s_add_u32 s93, s93, 28'); a('s_mov_b32 s29, s93')
            u_flag_lane(a)
            a('v_lshlrev_b32 v242, 7, v242'); a('v_add_u32 v242, %d, v242' % WS_FLAG)
            a('buffer_load_dword v243, v242, s[%d:%d], 0 offen sc1' % (SRD_F, SRD_F + 3))
        def c2():
            bpart.conv_issue(a)
            a('s_mov_b32 s29, s91')
        def c3():
            gemm1.kv_epi_setup(a)
        return [c0, c1, c2, c3]
    gemm1.gemm1_main(a, False, hook0=None if ENTRYPF else prefetch0, n0=0 if ENTRYPF else 1, hook1=lambda a: prefetch1(a, True), n1=1, hook_after_issue=nonce_publish, hook2=kv_shadow)
    stamp(a, 1)
    if MAINONLY: a('s_branch %s' % L_END)
    if getattr(common, 'DIAG_LOOP', False): common.stamp_raw(a, 6)
    lno = name + '_kvnoconv'; learly = a.newlabel('Learly'); llate = a.newlabel('Llate'); ljoin = a.newlabel('Ljoin'); lgo = a.newlabel('Lgo')
    a('s_cmp_ge_u32 s73, 116'); a('s_cbranch_scc1 %s' % lno)
    a('s_waitcnt vmcnt(5)')
    a('v_cmp_ne_u32 vcc, s%d, v243' % S_NONCE)
    a('s_cmp_eq_u64 vcc, 0'); a('s_cselect_b32 s95, 1, 0'); a('s_cbranch_scc0 %s' % llate)
    bpart.conv_u_dma(a, LD)
    a('s_branch %s' % lgo)
    a.label(llate)
    a('buffer_load_dword v243, v242, s[%d:%d], 0 offen sc1' % (SRD_F, SRD_F + 3))
    a.label(lgo)
    gemm1.kv_epilogue2(a, st_flags=ST, stampf=(lambda a, i: common.stamp_raw(a, i)) if getattr(common, 'DIAG2', False) else None, after_barrier=(lambda a: hint(a, idx_kv)) if HINT_EARLY else None)
    if not HINT_EARLY: hint(a, idx_kv)
    if getattr(common, 'DIAG2', False): common.stamp_raw(a, 5)
    a('s_cmp_eq_u32 s95, 1'); a('s_cbranch_scc1 %s' % learly)
    lf2 = a.newlabel('Lf2')
    a('s_waitcnt vmcnt(2)')
    a('v_cmp_ne_u32 vcc, s%d, v243' % S_NONCE)
    a('s_cmp_eq_u64 vcc, 0'); a('s_cbranch_scc1 %s' % lf2)
    wave_wait_flags(a, u_flag_lane)
    a.label(lf2)
    bpart.conv_u_dma(a, LD)
    bpart.conv_copies(a, 0, waited=True)
    a('s_waitcnt vmcnt(0) lgkmcnt(0)')
    a('s_branch %s' % ljoin)
    a.label(learly)
    a('s_waitcnt vmcnt(4)')
    bpart.conv_copies(a, 0, waited=True)
    a('s_waitcnt vmcnt(2) lgkmcnt(0)')
    a.label(ljoin)
    a('s_barrier')
    if getattr(common, 'DIAG2', False): common.stamp_raw(a, 8)
    stamp(a, 2)
    a('s_branch %s' % L_CONVMAIN)
    a.label(lno)
    gemm1.kv_epilogue2(a, st_flags=ST, after_barrier=(lambda a: hint(a, idx_kv)) if HINT_EARLY else None)
    if not HINT_EARLY: hint(a, idx_kv)
    a('s_barrier')
    stamp(a, 2)
    a.label(L_KVNEXT)
    a('s_cmp_ge_u32 s73, 64'); a('s_cbranch_scc1 %s' % L_B3)
    a('s_mov_b32 s59, s%d' % S_SLOT)
    a('s_branch %s' % L_OUT)
    a.label(L_Q)
    if NOQ: a('s_endpgm')
    a('s_and_b32 s41, s%d, 3' % S_X); a('s_lshl_b32 s41, s41, 2'); a('s_and_b32 s29, s%d, 3' % S_SLOT); a('s_add_u32 s29, s29, s41')
    a('s_lshr_b32 s41, s%d, 2' % S_X); a('s_lshl_b32 s41, s41, 1'); a('s_bfe_u32 s30, s%d, 0x10002' % S_SLOT); a('s_add_u32 s30, s30, s41')
    a('s_and_b32 s41, s29, 3'); a('s_lshl_b32 s41, s41, 1'); a('s_and_b32 s42, s30, 1'); a('s_lshl_b32 s42, s42, 2'); a('s_add_u32 s41, s41, s42'); a('s_add_u32 s41, s41, 1')
    a('s_cmp_ge_u32 s41, 9'); a('s_cselect_b32 s42, 9, 0'); a('s_sub_u32 s41, s41, s42')
    rot_override(a)
    gemm1.gemm1_rot(a, 41)
    gemm1.gemm1_lanes(a, True)
    kernarg_ready()
    gemm1.gemm1_srds(a)
    if PV and PVQ and not OUTV3: gemm1.gemm1_main(a, True, hook0=prefetch0, n0=1, hook1=lambda a: prefetch1(a, False), n1=1, hook_after_issue=lambda a: gemm1.q_poison(a, ST), n_after=6)
    elif PREFETCH: gemm1.gemm1_main(a, True, hook0=None if ENTRYPF else prefetch0, n0=0 if ENTRYPF else 1, hook1=lambda a: prefetch1(a, False), n1=1)
    else: gemm1.gemm1_main(a, True)
    stamp(a, 1)
    if MAINONLY: a('s_branch %s' % L_END)
    if getattr(common, 'DIAG_LOOP', False): common.stamp_raw(a, 6)
    tag_ready(a)
    def idx_pn(a): a('s_lshl_b32 s68, s29, 2'); a('s_add_u32 s68, s68, s30'); a('s_add_u32 s68, s68, %d' % F_PN)
    def wz(a):
        def li(a):
            a('v_and_b32 v242, 31, v0'); a('s_lshl_b32 s68, s30, 5'); a('s_add_u32 s68, s68, %d' % F_KV); a('v_add_u32 v242, s68, v242')
        stamp(a, 2)
        wait_flags(a, li)
        stamp(a, 3)
    if OUTV2 or OUTV3:
        gemm1.q_epilogue2(a, ST, LD, lambda a: publish(a, idx_pn), wz, SPIN_MAX, stampf=(lambda a, i: common.stamp_raw(a, i)) if getattr(common, 'DIAG3', False) else None)
    else:
        gemm1.q_epilogue(a, st_flags=ST, ld_flags=LD, wait_z=wz, tagged=True, spin_max=SPIN_MAX)
        if PV and PVQ: a('s_barrier'); hint(a, idx_pn)
        else: publish(a, idx_pn)
    stamp(a, 4)
    a('s_sub_u32 s59, s%d, 8' % S_SLOT)
    a('s_branch %s' % L_OUT)
    a.label(L_B)
    if NOB: a('s_endpgm')
    a('s_sub_u32 s73, s%d, 24' % S_SLOT); a('s_lshl_b32 s73, s73, 3'); a('s_add_u32 s73, s73, s%d' % S_X)
    kernarg_ready()
    L_NOB1 = name + '_nob1'; L_B1SKIP = name + '_b1skip'; L_B1JOIN = name + '_b1join'
    a('s_lshl_b32 s41, s%d, 6' % S_WAVE); a('s_add_u32 s41, s41, s73')
    a('s_cmp_ge_u32 s41, 288'); a('s_cbranch_scc1 %s' % L_B1SKIP)
    a('s_and_b32 s29, s41, 31'); a('s_lshr_b32 s30, s41, 5')
    bpart.b1_tile(a, st_flags=ST, hook_after_issue=nonce_issue_all, stampf=(lambda a, i: common.stamp_raw(a, i)) if getattr(common, 'DIAG4', False) else None)
    a('s_waitcnt vmcnt(8)')
    a('s_branch %s' % L_B1JOIN)
    a.label(L_B1SKIP)
    if IDLEPF: idle_prefetch(a)
    nonce_issue_all(a)
    a('s_waitcnt vmcnt(0)')
    a.label(L_B1JOIN)
    tag_ready(a)
    def idx_u(a): a('s_add_u32 s68, s73, %d' % F_U)
    a('s_cmp_ge_u32 s73, 36'); a('s_cbranch_scc1 %s' % L_NOB1)
    publish(a, idx_u)
    stamp(a, 1)
    a('s_mov_b32 s29, s73')
    w2out.w2_prefetch(a)
    def wkv(a):
        def li(a):
            a('v_and_b32 v242, 15, v0'); a('v_bfe_u32 v241, v0, 4, 1')
            a('s_cmp_eq_u32 s31, 4'); a('s_cselect_b32 s68, 16, 0')
            a('v_mul_u32_u24 v241, s68, v241'); a('v_add_u32 v242, v242, v241')
            a('s_lshl_b32 s68, s30, 4'); a('s_add_u32 s68, s68, %d' % F_KV); a('v_add_u32 v242, s68, v242')
        stamp(a, 2)
        wait_flags(a, li)
        stamp(a, 3)
    w2out.w2_main(a, st_flags=ST, ld_flags=LD, wait_kv=wkv, tagged=True, spin_max=SPIN_MAX, stampf=(lambda a, i: common.stamp_raw(a, i)) if getattr(common, 'DIAG3', False) else None, poison=PV)
    if getattr(common, 'DIAG3', False): common.stamp_raw(a, 8)
    def idx_w2(a): a('s_add_u32 s68, s73, %d' % F_W2)
    if PV: a('s_barrier'); hint(a, idx_w2)
    else: publish(a, idx_w2)
    stamp(a, 6)
    if getattr(common, 'DIAG3', False): common.stamp_raw(a, 6)
    a('s_sub_u32 s59, s%d, 8' % S_SLOT)
    a('s_branch %s' % L_OUT)
    a.label(L_NOB1)
    a('s_sub_u32 s93, s73, 36'); a('s_mov_b32 s29, s93')
    bpart.conv_issue(a)
    a('s_waitcnt vmcnt(0)')
    a('s_barrier')
    hint(a, idx_u)
    bpart.conv_copies(a, 0, waited=True)
    stamp(a, 4)
    wave_wait_flags(a, u_flag_lane)
    stamp(a, 5)
    bpart.conv_u_dma(a, LD)
    a('s_waitcnt vmcnt(0) lgkmcnt(0)'); a('s_barrier')
    a.label(L_CONVMAIN)
    bpart.conv_main(a, st_flags=ST, stampf=(lambda a, i: common.stamp_raw(a, i)) if getattr(common, 'DIAG6', False) else None)
    if getattr(common, 'DIAG6', False): common.stamp_raw(a, 8)
    def idx_y(a): a('s_add_u32 s68, s93, %d' % F_Y)
    ldef = a.newlabel('Ldefer')
    a('s_cmp_ge_u32 s%d, 8' % S_SLOT); a('s_cselect_b32 s41, 1, 0'); a('s_cmp_lt_u32 s%d, 16' % S_SLOT); a('s_cselect_b32 s41, s41, 0')
    a('s_cmp_eq_u32 s41, 0'); a('s_cbranch_scc1 %s' % ldef)
    publish(a, idx_y)
    stamp(a, 6)
    a('s_branch %s' % L_B3)
    a.label(ldef)
    a('s_mov_b32 s96, 1')
    stamp(a, 6)
    a('s_sub_u32 s59, s%d, 8' % S_SLOT)
    a('s_cmp_lt_u32 s%d, 16' % S_SLOT); a('s_cselect_b32 s59, s%d, s59' % S_SLOT)
    a.label(L_OUT)
    a('s_lshl_b32 s29, s%d, 2' % S_X); a('s_and_b32 s41, s59, 3'); a('s_add_u32 s29, s29, s41'); a('s_lshr_b32 s30, s59, 2')
    a('s_barrier')
    if OUTV2:
        w2out.out2_setup(a)
        def wpq(a):
            def li(a):
                a('s_lshr_b32 s68, s29, 1'); a('s_lshl_b32 s68, s68, 2'); a('s_add_u32 s68, s68, %d' % F_PN)
                a('v_and_b32 v242, 3, v0'); a('v_add_u32 v242, s68, v242')
            wait_flags(a, li)
            stamp(a, 5)
        def w2_lane(a):
            a('v_min_u32 v242, 35, v0'); a('v_add_u32 v242, %d, v242' % F_W2)
        sc, mg = w2out.out2_pre(a, LD, wpq, SPIN_MAX)
        stamp(a, 7)
        w2out.out2_scale(a, sc, mg)
        wait_flags(a, w2_lane)
        stamp(a, 8)
        w2out.out2_w2_dma(a, LD)
        w2out.out2_main(a)
        stamp(a, 9)
        w2out.out2_epilogue(a)
        a('s_branch %s' % L_END)
    elif OUTV3:
        w2out.OUT_ROT = False
        w2out.out3_setup(a)
        w2out.out3_rden_issue(a, LD)
        sc, mg = w2out.out3_rden_check(a, LD, SPIN_MAX)
        def wo3(a):
            def li(a):
                a('s_lshr_b32 s68, s29, 1'); a('s_lshl_b32 s68, s68, 2'); a('s_add_u32 s68, s68, %d' % F_PN)
                a('v_add_u32 v242, s68, v0')
                a('v_add_u32 v241, %d, v0' % (F_W2 - 4))
                a('v_cmp_le_u32 vcc, 4, v0'); a('v_cndmask_b32 v242, v242, v241, vcc')
                a('v_mov_b32 v241, s68')
                a('v_cmp_le_u32 vcc, 40, v0'); a('v_cndmask_b32 v242, v242, v241, vcc')
            stamp(a, 7)
            wait_flags(a, li)
            stamp(a, 8)
        w2out.out3_main(a, sc, mg, OUTLD, wo3, name + '_outretry', stampf=(lambda a, i: common.stamp_raw(a, i)) if getattr(common, 'DIAG5', False) else None)
        stamp(a, 9)
        w2out.out_epilogue(a, st_flags=OUTST, verify=name + '_outretry')
        a('s_branch %s' % L_END)
    else:
        w2out.out_setup(a)
        lnp = a.newlabel('Lnopend')
        a('s_cmp_eq_u32 s96, 0'); a('s_cbranch_scc1 %s' % lnp)
        publish(a, idx_y)
        a.label(lnp)
        def wo_(a):
            def li(a):
                a('s_lshr_b32 s68, s29, 1'); a('s_lshl_b32 s68, s68, 2'); a('s_add_u32 s68, s68, %d' % F_PN)
                a('v_add_u32 v242, s68, v0')
                a('v_add_u32 v241, %d, v0' % (F_W2 - 4))
                a('v_cmp_le_u32 vcc, 4, v0'); a('v_cndmask_b32 v242, v242, v241, vcc')
                a('v_mov_b32 v241, s68')
                a('v_cmp_le_u32 vcc, 40, v0'); a('v_cndmask_b32 v242, v242, v241, vcc')
            stamp(a, 7)
            wait_flags(a, li)
            stamp(a, 8)
        w2out.out_main(a, ld_flags=OUTLD, wait_in=wo_, stampf=(lambda a, i: common.stamp_raw(a, i)) if getattr(common, 'DIAG5', False) else None, verify=(name + '_outretry') if PV else None)
        stamp(a, 9)
        w2out.out_epilogue(a, st_flags=OUTST, verify=(name + '_outretry') if PV else None)
        a('s_branch %s' % L_END)
    a.label(L_B3)
    L_B3SKIP = name + '_b3skip'
    a('s_sub_u32 s58, s73, 64')
    a('s_lshl_b32 s41, s%d, 6' % S_WAVE); a('s_add_u32 s41, s41, s58')
    a('s_and_b32 s29, s41, 31'); a('s_lshr_b32 s30, s41, 5')
    a('s_barrier')
    a('s_cmp_ge_u32 s41, 288'); a('s_cbranch_scc1 %s' % L_END)
    def wy(a):
        def li(a):
            a('v_and_b32 v242, 15, v0'); a('s_lshl_b32 s68, s30, 4'); a('s_add_u32 s68, s68, %d' % F_Y); a('v_add_u32 v242, s68, v242')
        stamp(a, 7)
        wave_wait_flags(a, li)
        stamp(a, 8)
    bpart.b3_tile(a, ld_flags=LD, st_flags=OUTST, wait_y=wy)
    a.label(L_END)
    if common.STAMPS:
        a('s_waitcnt vmcnt(0)'); stamp(a, 10); stamp_flush(a, 0)
    a.label(name + '_end'); a('s_endpgm')
    a.label(CODE_END)
    return a

NAME = 'concat_heads__linear_attn_block__ssm_conv_h3__prompt_kernel'
def build():
    lds = max(gemm1.LDS_GEMM1, w2out.LDS_W2, w2out.LDS_OUT, w2out.LDS_OUT2, bpart.LDS_CONV, bpart.LDS_B3, bpart.LDS_B1)
    assert lds <= 163840
    a = k_persist(NAME)
    lines = fix_hazards(a.lines, verbose=True)
    hdr = '; concat_heads / linear attention block + H3 ssm conv : single persistent kernel (generated by gen/persist.py)\n'
    hdr += '; @launch grid=(256,1,1) block=(512,1,1) lds=%d\n' % lds
    return hdr + '.amdgcn_target "amdgcn-amd-amdhsa--gfx950"\n.text\n' + kernel_header(NAME) + '\n'.join(lines) + '\n' + kernel_desc(NAME)
if __name__ == '__main__':
    if 'nopf' in sys.argv: PREFETCH = False
    if 'norot' in sys.argv: ROT = False
    if 'v2' in sys.argv: OUTV2 = True
    if 'noentrypf' in sys.argv: ENTRYPF = False
    if 'latehint' in sys.argv: HINT_EARLY = False
    if 'pvq' in sys.argv: PVQ = True
    if 'v3' in sys.argv: OUTV3 = True
    if 'nopv' in sys.argv: PV = False
    if 'outplain' in sys.argv: OUTLD = ''
    if 'outsc0' in sys.argv: OUTLD = 'sc0'
    if 'osc1' in sys.argv: OUTST = 'sc1'
    if 'ont' in sys.argv: OUTST = 'nt'
    if 'osc01' in sys.argv: OUTST = 'sc0 sc1'
    if 'mainonly' in sys.argv: MAINONLY = True
    if 'noq' in sys.argv: NOQ = True
    if 'nob' in sys.argv: NOB = True
    if 'noidle' in sys.argv: IDLEPF = False
    if 'idle' in sys.argv: IDLEPF = True
    for m_ in ('r3', 'r2', 'rt', 'none'):
        if m_ in sys.argv: ROTMODE = m_
    if 'diag' in sys.argv: common.DIAG_LOOP = True
    if 'diag2' in sys.argv: common.DIAG2 = True
    if 'diag3' in sys.argv: common.DIAG3 = True
    if 'diag4' in sys.argv: common.DIAG4 = True
    if 'diag5' in sys.argv: common.DIAG5 = True
    if 'diag6' in sys.argv: common.DIAG6 = True
    if len(sys.argv) > 2 and sys.argv[2] in ('rt', 'cyc'):
        common.STAMPS = True
        if sys.argv[2] == 'cyc': common.STAMP_OP = 's_memtime'
    open(sys.argv[1], 'w').write(build())
```

```python
from common import *
S_T0, S_T1, S_T2 = 41, 42, 43

LDS_B1 = 8 * 8192
def b1_tile(a, st_flags='', hook_after_issue=None, stampf=None):
    KR, VR, SK = 64, 108, 140
    a('v_and_b32 v2, 7, v0'); a('v_lshrrev_b32 v3, 3, v0')
    a('s_lshl_b32 s%d, s29, 6' % S_T0); a('v_lshlrev_b32 v4, 3, v3'); a('v_add_u32 v4, s%d, v4' % S_T0)
    a('v_mul_u32_u24 v4, 1152, v4'); a('v_lshlrev_b32 v5, 4, v2'); a('v_add_u32 v4, v4, v5')
    a('s_lshl_b32 s%d, s30, 7' % S_T0); a('v_add_u32 v4, s%d, v4' % S_T0)
    a('v_subrev_u32 v6, %d, v4' % (3 * 1152))
    a('s_lshl_b32 s%d, s30, 9' % S_T0); a('v_lshlrev_b32 v7, 6, v2'); a('v_add_u32 v7, s%d, v7' % S_T0)
    srd(a, 32, P_K, S * D * 2)
    for j in range(11):
        if j < 3:
            a('v_add_u32 v8, %d, v6' % (j * 1152))
            a('buffer_load_dwordx4 %s, v8, s[32:35], 0 offen' % vr(KR + 4 * j, 4))
        else:
            a('s_movk_i32 s%d, %d' % (S_T0, (j - 3) * 1152))
            a('buffer_load_dwordx4 %s, v4, s[32:35], s%d offen' % (vr(KR + 4 * j, 4), S_T0))
    srd(a, 52, P_SK, D * 8)
    for k in range(4): a('buffer_load_dwordx4 %s, v7, s[52:55], 0 offen offset:%d' % (vr(SK + 4 * k, 4), 16 * k))
    srd(a, 36, P_V, S * D * 2)
    for j in range(8):
        a('s_movk_i32 s%d, %d' % (S_T0, j * 1152))
        a('buffer_load_dwordx4 %s, v4, s[36:39], s%d offen' % (vr(VR + 4 * j, 4), S_T0))
    nh = 0
    if hook_after_issue: hook_after_issue(a); nh = 1
    a('s_mov_b32 s44, 0xffff0000')
    a('v_xor_b32 v9, v2, v3'); a('v_lshlrev_b32 v9, 4, v9'); a('v_lshl_add_u32 v9, v3, 7, v9')
    a('s_lshl_b32 s45, s%d, 13' % S_WAVE); a('v_add_u32 v9, s45, v9')
    a('v_lshlrev_b32 v10, 10, v3'); a('v_lshl_add_u32 v10, v2, 7, v10'); a('v_add_u32 v10, s45, v10')
    a('v_lshlrev_b32 v11, 12, v3'); a('v_lshl_add_u32 v11, v2, 4, v11')
    a('s_lshl_b32 s%d, s30, 18' % S_T0); a('s_lshl_b32 s%d, s29, 7' % S_T1); a('s_add_u32 s%d, s%d, s%d' % (S_T0, S_T0, S_T1)); a('s_add_u32 s46, s%d, %d' % (S_T0, WS_UT))
    T = 160
    TP, KP, KS, U = T, T + 8, T + 30, T + 46
    a('s_waitcnt vmcnt(%d)' % (8 + nh))
    if stampf: stampf(a, 2)
    for d in range(4):
        s0_, s1_, s2_, s3_ = SK + 4 * d, SK + 4 * d + 1, SK + 4 * d + 2, SK + 4 * d + 3
        a('v_lshlrev_b32 v%d, 16, v%d' % (TP + 0, s0_)); a('v_lshlrev_b32 v%d, 16, v%d' % (TP + 1, s2_))
        a('v_and_b32 v%d, s44, v%d' % (TP + 2, s0_)); a('v_and_b32 v%d, s44, v%d' % (TP + 3, s2_))
        a('v_lshlrev_b32 v%d, 16, v%d' % (TP + 4, s1_)); a('v_lshlrev_b32 v%d, 16, v%d' % (TP + 5, s3_))
        a('v_and_b32 v%d, s44, v%d' % (TP + 6, s1_)); a('v_and_b32 v%d, s44, v%d' % (TP + 7, s3_))
        for j in range(11):
            a('v_lshlrev_b32 v%d, 16, v%d' % (KP + 2 * j, KR + 4 * j + d)); a('v_and_b32 v%d, s44, v%d' % (KP + 2 * j + 1, KR + 4 * j + d))
        for i in range(8): a('v_pk_mul_f32 %s, %s, %s' % (vr(KS + 2 * i, 2), vr(KP + 2 * i, 2), vr(TP + 6, 2)))
        for i in range(8): a('v_pk_fma_f32 %s, %s, %s, %s' % (vr(KS + 2 * i, 2), vr(KP + 2 * i + 2, 2), vr(TP + 4, 2), vr(KS + 2 * i, 2)))
        for i in range(8): a('v_pk_fma_f32 %s, %s, %s, %s' % (vr(KS + 2 * i, 2), vr(KP + 2 * i + 4, 2), vr(TP + 2, 2), vr(KS + 2 * i, 2)))
        for i in range(8): a('v_pk_fma_f32 %s, %s, %s, %s' % (vr(KS + 2 * i, 2), vr(KP + 2 * i + 6, 2), vr(TP + 0, 2), vr(KS + 2 * i, 2)))
        if d == 0: a('s_waitcnt vmcnt(%d)' % nh)
        for i in range(8):
            a('v_lshlrev_b32 v%d, 16, v%d' % (KP + 2 * i, VR + 4 * i + d)); a('v_and_b32 v%d, s44, v%d' % (KP + 2 * i + 1, VR + 4 * i + d))
        for i in range(8): a('v_pk_mul_f32 %s, %s, %s' % (vr(KS + 2 * i, 2), vr(KS + 2 * i, 2), vr(KP + 2 * i, 2)))
        for hi in range(2):
            for i in range(4): a('v_cvt_pk_bf16_f32 v%d, v%d, v%d' % (U + 4 * hi + i, KS + 4 * i + hi, KS + 4 * i + 2 + hi))
            a('ds_write_b128 v9, %s offset:%d' % (vr(U + 4 * hi, 4), (2 * d + hi) * 1024))
    if stampf: stampf(a, 3)
    a('s_waitcnt lgkmcnt(0)')
    for cc in range(8):
        a('v_xor_b32 v12, %d, v2' % cc); a('v_lshl_add_u32 v12, v12, 4, v10')
        a('ds_read_b128 %s, v12' % vr(64 + 4 * cc, 4))
    for cc in range(8):
        a('s_waitcnt lgkmcnt(%d)' % (7 - cc))
        a('s_add_u32 s%d, s46, %d' % (S_T1, cc * 8 * 4096))
        a('buffer_store_dwordx4 %s, v11, s[64:67], s%d offen %s' % (vr(64 + 4 * cc, 4), S_T1, st_flags))
    if stampf: stampf(a, 4)

HP = 4160
CH_H = 4 * HP
CH_U = 4576
CH_SZ = CH_H + CH_U
Y4 = True
CONV_BASE = 36864
CONV_U = CONV_BASE
CONV_H = CONV_U + 4 * CH_U
LDS_CONV = CONV_H + 4 * CH_H
S_CH, S_P, S_LB, S_LU = 88, 89, 90, 94
V_H = 24
V_D = 40
def conv_issue(a):
    a('s_lshr_b32 s%d, s%d, 1' % (S_T0, S_WAVE)); a('s_and_b32 s%d, s%d, 1' % (S_P, S_WAVE))
    a('s_lshl_b32 s%d, s29, 2' % S_CH); a('s_add_u32 s%d, s%d, s%d' % (S_CH, S_CH, S_T0))
    a('s_mul_i32 s%d, s%d, %d' % (S_LB, S_T0, CH_H)); a('s_add_u32 s%d, s%d, %d' % (S_LB, S_LB, CONV_H))
    a('s_mul_i32 s%d, s%d, %d' % (S_LU, S_T0, CH_U)); a('s_add_u32 s%d, s%d, %d' % (S_LU, S_LU, CONV_U))
    a('s_lshl_b32 s%d, s%d, 12' % (S_T1, S_CH))
    srd(a, 32, P_H, 4096, 's%d' % S_T1)
    srd(a, 36, P_D, D * 2)
    a('v_lshlrev_b32 v41, 4, v0')
    a('s_lshl_b32 s%d, s%d, 11' % (S_T0, S_P)); a('v_add_u32 v42, s%d, v41' % S_T0)
    for k in range(2):
        if k: a('v_add_u32 v42, 1024, v42')
        a('buffer_load_dwordx4 %s, v42, s[32:35], 0 offen' % vr(V_H + 8 * k + 4, 4))
        a('v_subrev_u32 v43, 8, v42')
        a('buffer_load_dwordx2 %s, v43, s[32:35], 0 offen' % vr(V_H + 8 * k, 2))
    a('s_lshl_b32 s%d, s%d, 1' % (S_T0, S_CH)); a('v_mov_b32 v43, s%d' % S_T0)
    a('buffer_load_ushort v%d, v43, s[36:39], 0 offen' % V_D)

def conv_u_dma(a, ld_flags):
    a('v_lshlrev_b32 v41, 4, v0')
    a('s_lshl_b32 s%d, s%d, 12' % (S_T0, S_CH)); a('s_lshl_b32 s%d, s%d, 11' % (S_T1, S_P)); a('s_add_u32 s%d, s%d, s%d' % (S_T0, S_T0, S_T1)); a('s_add_u32 s%d, s%d, %d' % (S_T0, S_T0, WS_UT))
    a('s_add_u32 s%d, s%d, s%d' % (S_T1, S_T1, S_LU))
    for k in range(2):
        a('s_add_u32 m0, s%d, %d' % (S_T1, 480 + k * 1024))
        a('s_add_u32 s%d, s%d, %d' % (S_T2, S_T0, k * 1024))
        a('buffer_load_dwordx4 v41, s[64:67], s%d offen %s lds' % (S_T2, ld_flags))

def conv_copies(a, nyounger, waited=False):
    for k in range(4): a('v_mov_b32 v%d, 0' % (44 + k))
    a('v_lshlrev_b32 v41, 4, v0')
    a('s_mov_b64 s[52:53], exec')
    zl = a.newlabel('Lcz'); ze = a.newlabel('Lce')
    a('s_cmp_eq_u32 s%d, 0' % S_P); a('s_cbranch_scc0 %s' % zl)
    a('v_lshrrev_b32 v42, 2, v0'); a('v_mul_u32_u24 v42, %d, v42' % HP); a('v_and_b32 v43, 3, v0'); a('v_lshl_add_u32 v42, v43, 4, v42'); a('v_add_u32 v42, s%d, v42' % S_LB)
    a('s_mov_b64 exec, 0xffff')
    a('ds_write_b128 v42, v[44:47]')
    a('s_branch %s' % ze)
    a.label(zl)
    a('v_add_u32 v42, s%d, v41' % S_LU)
    a('s_mov_b64 exec, 0x3fffffff')
    a('ds_write_b128 v42, v[44:47]')
    a.label(ze)
    a('s_mov_b64 exec, s[52:53]')
    a('s_lshl_b32 s%d, s%d, 11' % (S_T0, S_P)); a('s_add_u32 s%d, s%d, s%d' % (S_T0, S_T0, S_LB)); a('v_add_u32 v42, s%d, v41' % S_T0)
    if not waited: a('s_waitcnt vmcnt(%d)' % (1 + nyounger))
    for k in range(2):
        pm2, pm1 = V_H + 8 * k, V_H + 8 * k + 1
        h = V_H + 8 * k + 4
        o = 64 + k * 1024
        c1, c2, c3 = 44 + 0, 48, 52
        a('ds_write_b128 v42, %s offset:%d' % (vr(h, 4), o))
        a('v_mov_b32 v48, v%d' % pm1); a('v_mov_b32 v49, v%d' % h); a('v_mov_b32 v50, v%d' % (h + 1)); a('v_mov_b32 v51, v%d' % (h + 2))
        a('ds_write_b128 v42, v[48:51] offset:%d' % (o + 2 * HP))
        a('v_alignbit_b32 v52, v%d, v%d, 16' % (pm1, pm2))
        a('v_alignbit_b32 v53, v%d, v%d, 16' % (h, pm1))
        a('v_alignbit_b32 v54, v%d, v%d, 16' % (h + 1, h))
        a('v_alignbit_b32 v55, v%d, v%d, 16' % (h + 2, h + 1))
        a('ds_write_b128 v42, v[52:55] offset:%d' % (o + 3 * HP))
        a('v_mov_b32 v56, v53'); a('v_mov_b32 v57, v54'); a('v_mov_b32 v58, v55')
        a('v_alignbit_b32 v59, v%d, v%d, 16' % (h + 3, h + 2))
        a('ds_write_b128 v42, v[56:59] offset:%d' % (o + HP))
    a('v_lshrrev_b32 v7, 4, v0'); a('v_bfe_u32 v8, v0, 2, 2'); a('v_and_b32 v9, 3, v0')
    a('v_mul_u32_u24 v10, %d, v8' % HP); a('v_lshl_add_u32 v10, v9, 3, v10'); a('v_lshlrev_b32 v11, 4, v7'); a('v_sub_u32 v10, v10, v11')
    a('s_lshl_b32 s%d, s%d, 8' % (S_T0, S_P)); a('s_add_u32 s%d, s%d, s%d' % (S_T0, S_T0, S_LB)); a('s_add_u32 s%d, s%d, %d' % (S_T0, S_T0, 64 + 32 - 8))
    a('v_add_u32 v10, s%d, v10' % S_T0)
    a('v_and_b32 v11, 15, v0'); a('v_lshlrev_b32 v11, 5, v11'); a('v_lshl_add_u32 v11, v7, 4, v11')
    a('s_lshl_b32 s%d, s%d, 8' % (S_T0, S_P)); a('s_sub_u32 s%d, s%d, s%d' % (S_T0, S_LU, S_T0))
    a('v_add_u32 v11, s%d, v11' % S_T0)

def conv_main(a, st_flags='', stampf=None):
    ACC = 64
    AF, BF = 96, 160
    lg = LG(a)
    def rdlist(cc):
        s_ = cc & 1
        out = []
        for pp in range(8):
            out.append(('ds_read_b128 %s, v11 offset:%d' % (vr(BF + 32 * s_ + 4 * pp, 4), 448 + 512 * pp - 64 * cc), [('B', cc, pp)]))
            for q in range(2):
                out.append(('ds_read_b64_tr_b16 %s, v10 offset:%d' % (vr(AF + 32 * s_ + 4 * pp + 2 * q, 2), 64 * cc + 512 * pp + (8 if q == 0 else 0)), [('A', cc, pp, q)]))
        return out
    if stampf: stampf(a, 3)
    for txt, tg in rdlist(0): lg.issue(txt, tg)
    first = set()
    for cc in range(4):
        s_ = cc & 1
        pend = rdlist(cc + 1) if cc < 3 else []
        pairs = sorted([(p, m_) for p in range(8) for m_ in range(8) if p + m_ <= 7], key=lambda x: (max(x), x[0]))
        n = 0
        for (p, m_) in pairs:
            lg.wait([('A', cc, p, 0), ('A', cc, p, 1), ('B', cc, m_)])
            T = p + m_
            a('v_mfma_f32_16x16x32_bf16 %s, %s, %s, %s' % (vr(ACC + 4 * T, 4), vr(AF + 32 * s_ + 4 * p, 4), vr(BF + 32 * s_ + 4 * m_, 4), vr(ACC + 4 * T, 4) if T in first else '0'))
            first.add(T)
            n += 1
            if n >= 8 and pend:
                txt, tg = pend.pop(0); lg.issue(txt, tg)
        while pend:
            txt, tg = pend.pop(0); lg.issue(txt, tg)
    if stampf: stampf(a, 4)
    a('v_lshlrev_b32 v2, 4, v0')
    a('s_lshl_b32 s%d, s%d, 12' % (S_T0, S_P)); a('s_add_u32 s%d, s%d, s%d' % (S_T0, S_T0, S_LB)); a('v_add_u32 v6, s%d, v2' % S_T0)
    a('s_xor_b32 s%d, s%d, 1' % (S_T1, S_P)); a('s_lshl_b32 s%d, s%d, 12' % (S_T1, S_T1)); a('s_add_u32 s%d, s%d, s%d' % (S_T1, S_T1, S_LB)); a('v_add_u32 v7, s%d, v2' % S_T1)
    a('v_and_b32 v8, 15, v0'); a('v_lshlrev_b32 v8, 5, v8'); a('v_lshrrev_b32 v9, 4, v0'); a('v_lshl_add_u32 v8, v9, 3, v8')
    a('s_lshl_b32 s%d, s%d, 11' % (S_T0, S_P)); a('s_add_u32 s%d, s%d, s%d' % (S_T0, S_T0, S_LU)); a('s_add_u32 s%d, s%d, %d' % (S_T0, S_T0, 480))
    a('v_add_u32 v8, s%d, v8' % S_T0); a('v_add_u32 v9, s%d, v2' % S_T0)
    for t in range(4): a('ds_read_b64 %s, v8 offset:%d' % (vr(112 + 2 * t, 2), t * 512))
    a('v_lshlrev_b32 v%d, 16, v%d' % (V_D, V_D))
    a('s_mov_b32 s45, 0xffff0000')
    a('s_barrier')
    if stampf: stampf(a, 5)
    l1 = a.newlabel('Lcx'); l2 = a.newlabel('Lcy')
    a('s_cmp_eq_u32 s%d, 0' % S_P); a('s_cbranch_scc0 %s' % l1)
    for t in range(4): a('ds_write_b128 v6, %s offset:%d' % (vr(ACC + 16 + 4 * t, 4), t * 1024))
    a('s_branch %s' % l2)
    a.label(l1)
    for t in range(4): a('ds_write_b128 v6, %s offset:%d' % (vr(ACC + 4 * t, 4), t * 1024))
    a('s_nop 1')
    for r in range(16): a('v_mov_b32 v%d, v%d' % (ACC + r, ACC + 16 + r))
    a.label(l2)
    a('s_waitcnt lgkmcnt(4)')
    for t in range(4):
        a('v_lshlrev_b32 v120, 16, v%d' % (112 + 2 * t)); a('v_and_b32 v121, s45, v%d' % (112 + 2 * t))
        a('v_lshlrev_b32 v122, 16, v%d' % (113 + 2 * t)); a('v_and_b32 v123, s45, v%d' % (113 + 2 * t))
        for r in range(4): a('v_fmac_f32 v%d, v%d, v%d' % (ACC + 4 * t + r, 120 + r, V_D))
    a('s_waitcnt lgkmcnt(0)')
    a('s_barrier')
    if stampf: stampf(a, 7)
    for t in range(4): a('ds_read_b128 %s, v7 offset:%d' % (vr(96 + 4 * t, 4), t * 1024))
    for t in range(4):
        a('s_waitcnt lgkmcnt(%d)' % (3 - t))
        for r in range(0, 4, 2): a('v_pk_add_f32 %s, %s, %s' % (vr(ACC + 4 * t + r, 2), vr(ACC + 4 * t + r, 2), vr(96 + 4 * t + r, 2)))
        a('v_cvt_pk_bf16_f32 v%d, v%d, v%d' % (124 + 2 * t, ACC + 4 * t, ACC + 4 * t + 1))
        a('v_cvt_pk_bf16_f32 v%d, v%d, v%d' % (125 + 2 * t, ACC + 4 * t + 2, ACC + 4 * t + 3))
        a('ds_write_b64 v8, %s offset:%d' % (vr(124 + 2 * t, 2), t * 512))
    if not Y4:
        a('s_lshl_b32 s%d, s%d, 12' % (S_T0, S_CH)); a('s_lshl_b32 s%d, s%d, 11' % (S_T1, S_P)); a('s_add_u32 s%d, s%d, s%d' % (S_T0, S_T0, S_T1)); a('s_add_u32 s%d, s%d, %d' % (S_T0, S_T0, WS_YT))
        a('s_waitcnt lgkmcnt(0)')
        for k in range(2): a('ds_read_b128 %s, v9 offset:%d' % (vr(132 + 4 * k, 4), k * 1024))
        for k in range(2):
            a('s_waitcnt lgkmcnt(%d)' % (1 - k))
            a('s_add_u32 s%d, s%d, %d' % (S_T1, S_T0, k * 1024))
            a('buffer_store_dwordx4 %s, v2, s[64:67], s%d offen %s' % (vr(132 + 4 * k, 4), S_T1, st_flags))
    else:
        a('s_waitcnt lgkmcnt(0)'); a('s_barrier')
        skip = a.newlabel('Ly4'); a('s_cmp_ge_u32 s%d, 4' % S_WAVE); a('s_cbranch_scc1 %s' % skip)
        a('s_mul_i32 s%d, s%d, %d' % (S_T0, S_WAVE, CH_U)); a('s_add_u32 s%d, s%d, %d' % (S_T0, S_T0, CONV_U + 480)); a('v_add_u32 v9, s%d, v2' % S_T0)
        for k in range(4): a('ds_read_b128 %s, v9 offset:%d' % (vr(132 + 4 * k, 4), k * 1024))
        a('s_and_b32 s%d, s%d, -4' % (S_T0, S_CH)); a('s_add_u32 s%d, s%d, s%d' % (S_T0, S_T0, S_WAVE)); a('s_lshl_b32 s%d, s%d, 12' % (S_T0, S_T0)); a('s_add_u32 s%d, s%d, %d' % (S_T0, S_T0, WS_YT))
        for k in range(4):
            a('s_waitcnt lgkmcnt(%d)' % (3 - k))
            a('s_add_u32 s%d, s%d, %d' % (S_T1, S_T0, k * 1024))
            a('buffer_store_dwordx4 %s, v2, s[64:67], s%d offen %s' % (vr(132 + 4 * k, 4), S_T1, st_flags))
        a.label(skip)

LDS_B3 = 8 * 17408
def b3_tile(a, ld_flags='', st_flags='', wait_y=None):
    S_LB = 44
    srd(a, 32, P_Q, S * D * 2); srd(a, 52, P_OUT, S * 1152 * 2)
    a('s_mul_i32 s%d, s%d, 17408' % (S_LB, S_WAVE))
    a('v_and_b32 v2, 7, v0'); a('v_lshrrev_b32 v3, 3, v0')
    a('s_lshl_b32 s%d, s29, 6' % S_T0); a('v_add_u32 v4, s%d, v3' % S_T0); a('v_mul_u32_u24 v4, 1152, v4'); a('v_lshl_add_u32 v4, v2, 4, v4')
    a('s_lshl_b32 s%d, s30, 7' % S_T0); a('v_add_u32 v4, s%d, v4' % S_T0)
    Q = 64
    for j in range(8):
        a('s_mov_b32 s%d, %d' % (S_T0, j * 8 * 1152))
        a('buffer_load_dwordx4 %s, v4, s[32:35], s%d offen' % (vr(Q + 4 * j, 4), S_T0))
    if wait_y: wait_y(a)
    a('v_lshrrev_b32 v5, 1, v2'); a('v_and_b32 v6, 3, v3'); a('v_xor_b32 v5, v5, v6'); a('v_lshlrev_b32 v5, 1, v5'); a('v_and_b32 v6, 1, v2'); a('v_or_b32 v5, v5, v6')
    a('v_lshlrev_b32 v6, 12, v3'); a('v_lshl_add_u32 v6, v5, 4, v6')
    a('s_lshl_b32 s%d, s30, 18' % S_T0); a('s_lshl_b32 s%d, s29, 7' % S_T1); a('s_add_u32 s%d, s%d, s%d' % (S_T0, S_T0, S_T1)); a('s_add_u32 s%d, s%d, %d' % (S_T0, S_T0, WS_YT))
    for j in range(8):
        a('s_add_u32 m0, s%d, %d' % (S_LB, j * 1024))
        a('s_add_u32 s%d, s%d, %d' % (S_T1, S_T0, j * 8 * 4096))
        a('buffer_load_dwordx4 v6, s[64:67], s%d offen %s lds' % (S_T1, ld_flags))
    a('v_lshrrev_b32 v7, 4, v0'); a('v_bfe_u32 v8, v0, 2, 2'); a('v_and_b32 v9, 3, v0')
    a('v_xor_b32 v10, v7, v8'); a('v_lshlrev_b32 v10, 5, v10'); a('v_lshl_add_u32 v10, v8, 7, v10'); a('v_lshl_add_u32 v10, v9, 3, v10'); a('v_add_u32 v10, s%d, v10' % S_LB)
    a('v_mul_u32_u24 v11, 144, v0'); a('s_add_u32 s%d, s%d, 8192' % (S_T0, S_LB)); a('v_add_u32 v11, s%d, v11' % S_T0)
    a('s_waitcnt vmcnt(0)')
    Y = 96
    for chq in range(16): a('ds_read_b64_tr_b16 %s, v10 offset:%d' % (vr(Y + 2 * chq, 2), chq * 512))
    for chq in range(16):
        a('s_waitcnt lgkmcnt(%d)' % min(15, 15 - chq) if chq else 's_waitcnt lgkmcnt(15)')
        a('ds_write_b64 v11, %s offset:%d' % (vr(Y + 2 * chq, 2), chq * 8))
    a('v_mul_u32_u24 v12, 144, v3'); a('v_lshl_add_u32 v12, v2, 4, v12'); a('v_add_u32 v12, s%d, v12' % S_T0)
    a('s_waitcnt lgkmcnt(0)')
    for j in range(8): a('ds_read_b128 %s, v12 offset:%d' % (vr(Y + 4 * j, 4), j * 8 * 144))
    a('s_mov_b32 s45, 0xffff0000')
    a('s_lshl_b32 s%d, s29, 6' % S_T0); a('v_add_u32 v4, s%d, v3' % S_T0); a('v_mul_u32_u24 v4, 2304, v4'); a('v_lshl_add_u32 v4, v2, 4, v4')
    a('s_lshl_b32 s%d, s30, 7' % S_T0); a('s_add_u32 s%d, s%d, 1152' % (S_T0, S_T0)); a('v_add_u32 v4, s%d, v4' % S_T0)
    for j in range(8):
        a('s_waitcnt lgkmcnt(%d)' % (7 - j))
        for d in range(4):
            q_, y_ = Q + 4 * j + d, Y + 4 * j + d
            a('v_lshlrev_b32 v140, 16, v%d' % q_); a('v_and_b32 v141, s45, v%d' % q_)
            a('v_lshlrev_b32 v142, 16, v%d' % y_); a('v_and_b32 v143, s45, v%d' % y_)
            a('v_mul_f32 v140, v140, v142'); a('v_mul_f32 v141, v141, v143')
            a('v_cvt_pk_bf16_f32 v%d, v140, v141' % q_)
        a('s_mov_b32 s%d, %d' % (S_T0, j * 8 * 2304))
        a('buffer_store_dwordx4 %s, v4, s[52:55], s%d offen %s' % (vr(Q + 4 * j, 4), S_T0, st_flags))
```

```python
from common import *
S_T0, S_T1, S_T2 = 41, 42, 43
S_TASK = 29

W2_PITCH = 1184
LDS_W2_RED = 0
LDS_W2_AF = 32768
LDS_W2_WO = 34816
LDS_W2 = LDS_W2_WO + 81920
PIDX = {pr: p for p, pr in enumerate(KV_PAIRS)}

def w2_prefetch(a):
    srd(a, 32, P_WO, D * D * 2)
    a('s_cmp_lt_u32 s%d, 32' % S_TASK)
    lm = a.newlabel('Lw2m'); le = a.newlabel('Lw2e')
    a('s_cbranch_scc0 %s' % lm)
    a('s_lshr_b32 s30, s%d, 2' % S_TASK); a('s_and_b32 s31, s%d, 3' % S_TASK)
    a('s_max_u32 s%d, s31, 1' % S_T0); a('s_sub_u32 s%d, s%d, 1' % (S_T0, S_T0)); a('s_lshl_b32 s%d, s%d, 4' % (S_T0, S_T0))
    a('s_mul_i32 s%d, s30, 72' % S_T1); a('s_add_u32 s%d, s%d, s%d' % (S_T0, S_T0, S_T1))
    a('s_mov_b32 s%d, 0' % S_T1)
    a('s_branch %s' % le)
    a.label(lm)
    a('s_sub_u32 s30, s%d, 32' % S_TASK); a('s_lshl_b32 s30, s30, 1'); a('s_mov_b32 s31, 4')
    a('s_mul_i32 s%d, s30, 72' % S_T0); a('s_add_u32 s%d, s%d, 48' % (S_T0, S_T0))
    a('s_mov_b32 s%d, 40' % S_T1)
    a.label(le)
    a('s_lshl_b32 s%d, s%d, 6' % (S_T2, S_WAVE))
    a('s_lshl_b32 s44, s%d, 10' % S_WAVE)
    for k in range(10):
        a('v_add_u32 v2, s%d, v0' % S_T2)
        if k: a('v_add_u32 v2, %d, v2' % (512 * k))
        a('v_mul_u32_u24 v3, 3543, v2')
        a('v_lshrrev_b32 v3, 18, v3')
        a('v_mul_u32_u24 v4, 74, v3')
        a('v_sub_u32 v4, v2, v4')
        a('v_min_u32 v4, 71, v4')
        a('v_cmp_le_u32 vcc, 32, v3')
        a('v_mov_b32 v5, s%d' % S_T1)
        a('v_cndmask_b32 v5, 0, v5, vcc')
        a('v_add3_u32 v3, v3, v5, s%d' % S_T0)
        a('v_mul_u32_u24 v3, 1152, v3')
        a('v_lshl_add_u32 v3, v4, 4, v3')
        a('s_add_u32 m0, s44, %d' % (LDS_W2_WO + k * 8192))
        a('s_nop 0')
        a('buffer_load_dwordx4 v3, s[32:35], 0 offen lds')
for q in range(5120): assert (q * 3543) >> 18 == q // 74, q

def w2_main(a, st_flags='', ld_flags='', wait_kv=None, tagged=False, spin_max=100000, stampf=None, poison=False):
    end = a.newlabel('Lw2end')
    a('v_lshlrev_b32 v2, 4, v0')
    a('v_and_b32 v6, 15, v0'); a('v_lshrrev_b32 v7, 4, v0')
    a('v_bfe_u32 v14, v0, 2, 2'); a('v_lshl_add_u32 v14, v7, 2, v14'); a('v_mul_u32_u24 v14, %d, v14' % W2_PITCH)
    a('v_and_b32 v9, 3, v0'); a('v_lshl_add_u32 v14, v9, 3, v14')
    a('s_lshl_b32 s%d, s%d, 5' % (S_T0, S_WAVE)); a('s_add_u32 s%d, s%d, %d' % (S_T0, S_T0, LDS_W2_WO)); a('v_add_u32 v14, s%d, v14' % S_T0)
    lm = a.newlabel('Lw2j'); le = a.newlabel('Lw2k')
    a('s_cmp_lt_u32 s31, 4'); a('s_cbranch_scc0 %s' % lm)
    a('s_lshl_b32 s%d, s30, 1' % S_T0); a('s_lshr_b32 s%d, s31, 1' % S_T1); a('s_add_u32 s%d, s%d, s%d' % (S_T0, S_T0, S_T1)); a('s_and_b32 s%d, s31, 1' % S_T1)
    a('s_branch %s' % le)
    a.label(lm)
    a('s_lshr_b32 s%d, s30, 2' % S_T0); a('s_add_u32 s%d, s%d, 16' % (S_T0, S_T0)); a('s_lshr_b32 s%d, s30, 1' % S_T1); a('s_and_b32 s%d, s%d, 1' % (S_T1, S_T1))
    a.label(le)
    a('s_lshl_b32 s%d, s%d, 10' % (S_T0, S_T0)); a('s_lshl_b32 s%d, s%d, 3' % (S_T1, S_T1)); a('s_add_u32 s%d, s%d, s%d' % (S_T0, S_T0, S_T1))
    a('s_mul_i32 s%d, s%d, %d' % (S_T1, S_WAVE, 18 * 1024)); a('s_add_u32 s%d, s%d, s%d' % (S_T0, S_T0, S_T1)); a('s_add_u32 s46, s%d, %d' % (S_T0, WS_W2T))
    a('s_lshl_b32 s%d, s30, 4' % S_T0); a('s_lshl_b32 s%d, s%d, 1' % (S_T1, S_WAVE)); a('s_add_u32 s%d, s%d, s%d' % (S_T0, S_T0, S_T1))
    a('s_mul_i32 s%d, s%d, %d' % (S_T0, S_T0, KVP_BLK)); a('s_add_u32 s47, s%d, %d' % (S_T0, WS_KVP))
    a('s_lshl_b32 s%d, s%d, 12' % (S_T0, S_WAVE)); a('v_add_u32 v9, s%d, v2' % S_T0)
    a('s_lshl_b32 s%d, s%d, 10' % (S_T0, S_WAVE)); a('v_add_u32 v10, s%d, v2' % S_T0)
    a('s_lshr_b32 s%d, s%d, 1' % (S_T0, S_WAVE)); a('s_lshl_b32 s%d, s%d, 10' % (S_T0, S_T0))
    a('s_and_b32 s%d, s%d, 1' % (S_T1, S_WAVE)); a('s_lshl_b32 s%d, s%d, 3' % (S_T1, S_T1)); a('s_add_u32 s%d, s%d, s%d' % (S_T0, S_T0, S_T1))
    a('v_add_u32 v11, s%d, v2' % S_T0)
    if poison:
        a('v_mov_b32 v20, -1'); a('v_mov_b32 v21, -1')
        for k in range(5):
            if k == 4:
                skp = a.newlabel('Lw2p'); a('s_cmp_ge_u32 s%d, 4' % S_WAVE); a('s_cbranch_scc1 %s' % skp)
            a('s_add_u32 s%d, s46, %d' % (S_T1, k * 8 * 18 * 1024))
            a('buffer_store_dwordx2 v[20:21], v2, s[64:67], s%d offen %s' % (S_T1, st_flags))
            if k == 4: a.label(skp)
    for var in range(5):
        nxt = a.newlabel('Lw2v')
        a('s_cmp_eq_u32 s31, %d' % var); a('s_cbranch_scc0 %s' % nxt)
        if var == 0: tiles = [(0, 0, 0), (0, 1, 0)]
        elif var == 1: tiles = [(0, 0, 1), (0, 1, 1), (0, 2, 1)]
        elif var == 2: tiles = [(0, 1, 2), (0, 2, 2), (0, 3, 2)]
        elif var == 3: tiles = [(0, 2, 3), (0, 3, 3), (0, 4, 3)]
        else: tiles = [(0, 3, 4), (0, 4, 4), (1, 3, 4), (1, 4, 4)]
        if var == 4:
            a('v_cmp_le_u32 vcc, 8, v6')
            a('v_subrev_u32 v8, 128, v2')
            a('v_cndmask_b32 v8, v2, v8, vcc')
        a_ = tiles[0][2]
        if var == 4:
            a('s_cmp_ge_u32 s%d, 2' % S_WAVE); a('s_cselect_b32 s%d, 8, 0' % S_T1)
            a('v_subrev_u32 v12, s%d, v6' % S_T1)
            a('v_cmp_gt_u32 vcc, 8, v12')
            a('v_mov_b32 v13, 54'); a('v_mov_b32 v15, 0x10000')
            a('v_cndmask_b32 v13, v15, v13, vcc')
        else:
            a('v_add_u32 v12, %d, v6' % (16 * a_))
            a('v_mul_u32_u24 v13, 3641, v12'); a('v_lshrrev_b32 v13, 16, v13'); a('v_mul_u32_u24 v13, 18, v13')
        bl = [t_[1] for t_ in tiles] + [0] * (4 - len(tiles))
        a('s_mov_b32 s%d, 0x%x' % (S_T1, sum(b << (8 * k) for k, b in enumerate(bl))))
        a('s_and_b32 s%d, s%d, 3' % (S_T2, S_WAVE)); a('s_lshl_b32 s%d, s%d, 3' % (S_T2, S_T2)); a('s_lshr_b32 s%d, s%d, s%d' % (S_T1, S_T1, S_T2)); a('s_and_b32 s%d, s%d, 0xff' % (S_T1, S_T1))
        a('s_lshl_b32 s%d, s%d, 4' % (S_T1, S_T1))
        a('v_lshlrev_b32 v12, 2, v7'); a('v_add_u32 v12, s%d, v12' % S_T1); a('v_sub_u32 v12, v12, v13')
        for r in range(4):
            a('v_add_u32 v13, %d, v12' % r)
            a('v_cmp_gt_u32 vcc, 18, v13')
            a('v_cndmask_b32 v%d, 0, 1.0, vcc' % (16 + r))
        a('s_cmp_lt_u32 s%d, %d' % (S_WAVE, len(tiles))); a('s_cselect_b32 s%d, 1.0, 0' % S_T1)
        for r in range(4): a('v_mul_f32 v%d, s%d, v%d' % (16 + r, S_T1, 16 + r))
        if wait_kv: wait_kv(a)
        lp = a.newlabel('Lwp'); lo_ = a.newlabel('Lwo')
        if tagged:
            a('s_mov_b32 s69, 0')
            for r in range(4): a('v_bfe_u32 v%d, s92, %d, 8' % (100 + r, 8 * r))
        a.label(lp)
        for q, (dh, b, a_) in enumerate(tiles):
            for rr in range(2):
                off = dh * 16 * KVP_BLK + rr * KVP_BLK + PIDX[(b, a_)] * 1024
                a('s_add_u32 s%d, s47, %d' % (S_T1, off))
                va = 8 if (var == 4 and dh == 1) else 2
                a('buffer_load_dwordx4 %s, v%d, s[64:67], s%d offen %s' % (vr(64 + 8 * q + 4 * rr, 4), va, S_T1, ld_flags))
        if tagged:
            a('s_add_u32 s69, s69, 1')
            n = 2 * len(tiles)
            for c in range(n):
                a('s_waitcnt vmcnt(%d)' % (n - 1 - c))
                for r in range(4): a('v_xor_b32 v%d, v%d, v%d' % (104 + r, 64 + 4 * c + r, 100 + r))
                if c == 0:
                    a('v_or3_b32 v108, v104, v105, v106'); a('v_or_b32 v108, v108, v107')
                else:
                    a('v_or3_b32 v108, v108, v104, v105'); a('v_or3_b32 v108, v108, v106, v107')
            a('v_and_b32 v108, 0xff, v108')
            a('v_cmp_ne_u32 vcc, 0, v108')
            a('s_cmp_ge_u32 s69, %d' % spin_max); a('s_cbranch_scc1 %s' % lo_)
            a('s_cmp_lg_u64 vcc, 0'); a('s_cbranch_scc1 %s' % lp)
            a.label(lo_)
            if stampf:
                stampf(a, 4); a('s_mov_b32 s85, s69')
        for q in range(len(tiles)):
            if not tagged: a('s_waitcnt vmcnt(%d)' % (2 * (len(tiles) - 1 - q)))
            for k in range(0, 4, 2): a('v_pk_add_f32 %s, %s, %s' % (vr(64 + 8 * q + k, 2), vr(64 + 8 * q + k, 2), vr(64 + 8 * q + 4 + k, 2)))
            a('ds_write_b128 v9, %s offset:%d' % (vr(64 + 8 * q, 4), LDS_W2_RED + q * 1024))
        a('s_branch %s' % end)
        a.label(nxt)
    a.label(end)
    a('s_waitcnt lgkmcnt(0)')
    a('s_barrier')
    if stampf: stampf(a, 5)
    skip = a.newlabel('Lw2skip')
    a('s_cmp_ge_u32 s%d, 4' % S_WAVE); a('s_cbranch_scc1 %s' % skip)
    for w in range(8): a('ds_read_b128 %s, v10 offset:%d' % (vr(64 + 4 * w, 4), LDS_W2_RED + w * 4096))
    for w in range(1, 8):
        a('s_waitcnt lgkmcnt(%d)' % (7 - w))
        for k in range(0, 4, 2): a('v_pk_add_f32 %s, %s, %s' % (vr(64 + k, 2), vr(64 + k, 2), vr(64 + 4 * w + k, 2)))
    for r in range(4):
        a('v_cmp_neq_f32 vcc, 0, v%d' % (16 + r))
        a('v_cndmask_b32 v%d, 0, v%d, vcc' % (64 + r, 64 + r))
    a('v_cvt_pk_bf16_f32 v68, v64, v65'); a('v_cvt_pk_bf16_f32 v69, v66, v67')
    a('ds_write_b64 v11, v[68:69] offset:%d' % LDS_W2_AF)
    a.label(skip)
    a('s_waitcnt vmcnt(0) lgkmcnt(0)')
    a('s_barrier')
    if stampf: stampf(a, 7)
    a('ds_read_b128 v[64:67], v2 offset:%d' % LDS_W2_AF)
    a('ds_read_b128 v[68:71], v2 offset:%d' % (LDS_W2_AF + 1024))
    for k in range(5):
        for u in range(2):
            for h in range(2):
                a('ds_read_b64_tr_b16 %s, v14 offset:%d' % (vr(72 + 8 * k + 4 * u + 2 * h, 2), (u * 32 + h * 16) * W2_PITCH + 256 * k))
    for k in range(5):
        if k == 4:
            skip = a.newlabel('Lw2t'); a('s_cmp_ge_u32 s%d, 4' % S_WAVE); a('s_cbranch_scc1 %s' % skip)
        a('s_waitcnt lgkmcnt(%d)' % min(15, 4 * (4 - k) + 2))
        a('v_mfma_f32_16x16x32_bf16 %s, v[64:67], %s, 0' % (vr(120 + 4 * k, 4), vr(72 + 8 * k, 4)))
        a('s_waitcnt lgkmcnt(%d)' % min(15, 4 * (4 - k)))
        a('v_mfma_f32_16x16x32_bf16 %s, v[68:71], %s, %s' % (vr(120 + 4 * k, 4), vr(76 + 8 * k, 4), vr(120 + 4 * k, 4)))
        if k == 4: a.label(skip)
    for k in range(5):
        if k == 4:
            skip = a.newlabel('Lw2s'); a('s_cmp_ge_u32 s%d, 4' % S_WAVE); a('s_cbranch_scc1 %s' % skip)
        a('v_cvt_pk_bf16_f32 v%d, v%d, v%d' % (140 + 2 * k, 120 + 4 * k, 121 + 4 * k)); a('v_cvt_pk_bf16_f32 v%d, v%d, v%d' % (141 + 2 * k, 122 + 4 * k, 123 + 4 * k))
        a('s_add_u32 s%d, s46, %d' % (S_T1, k * 8 * 18 * 1024))
        a('buffer_store_dwordx2 %s, v2, s[64:67], s%d offen %s' % (vr(140 + 2 * k, 2), S_T1, st_flags))
        if k == 4: a.label(skip)

OUT_ROT = True
OUT_STG = 30720
OUT_NSLOT = 5
OUT_DUM = OUT_STG * OUT_NSLOT
LDS_OUT = OUT_DUM + 1024
def out_setup(a):
    for k in range(4):
        a('s_add_u32 s%d, s%d, %d' % (S_T0, S_WAVE, 8 * k))
        a('s_min_u32 s%d, s%d, 29' % (S_T0, S_T0))
        a('s_mul_i32 s%d, s%d, 6554' % (S_T1, S_T0)); a('s_lshr_b32 s%d, s%d, 16' % (S_T1, S_T1))
        a('s_mul_i32 s%d, s%d, 10' % (S_T2, S_T1)); a('s_sub_u32 s%d, s%d, s%d' % (S_T2, S_T0, S_T2))
        a('s_lshl_b32 s44, s29, 2'); a('s_add_u32 s44, s44, s%d' % S_T2); a('s_mul_i32 s44, s44, 18432'); a('s_add_u32 s44, s44, %d' % WS_PN)
        a('s_mul_i32 s45, s30, 6'); a('s_add_u32 s45, s45, s%d' % S_T2); a('s_mul_i32 s45, s45, 18432'); a('s_add_u32 s45, s45, %d' % (WS_W2T - 4 * 18432))
        a('s_cmp_lt_u32 s%d, 4' % S_T2); a('s_cselect_b32 s44, s44, s45')
        a('s_lshl_b32 s%d, s%d, 10' % (S_T1, S_T1)); a('s_add_u32 s%d, s44, s%d' % (60 + k, S_T1))
    a('v_lshlrev_b32 v2, 4, v0')
    a('s_lshl_b32 s44, s%d, 10' % S_WAVE)
    a('s_cmp_ge_u32 s%d, 6' % S_WAVE); a('s_cselect_b32 s45, 1, 0')
    a('s_and_b32 s%d, s%d, 3' % (S_T0, S_WAVE)); a('s_lshl_b32 s%d, s%d, 10' % (S_T0, S_T0)); a('v_add_u32 v10, s%d, v2' % S_T0)
    a('s_lshr_b32 s%d, s%d, 2' % (S_T0, S_WAVE)); a('s_mul_i32 s%d, s%d, 3072' % (S_T0, S_T0)); a('s_add_u32 s%d, s%d, 4096' % (S_T0, S_T0)); a('v_add_u32 v11, s%d, v2' % S_T0)
    srd(a, 52, P_OUT, S * 1152 * 2)
    a('v_and_b32 v3, 15, v0'); a('v_lshrrev_b32 v4, 4, v0')
    a('s_and_b32 s%d, s%d, 3' % (S_T0, S_WAVE)); a('s_lshl_b32 s%d, s%d, 4' % (S_T0, S_T0)); a('v_add_u32 v3, s%d, v3' % S_T0)
    a('v_mul_u32_u24 v3, %d, v3' % OUT_PITCH); a('v_lshl_add_u32 v3, v4, 3, v3')
    a('s_lshr_b32 s%d, s%d, 2' % (S_T0, S_WAVE)); a('s_mul_i32 s%d, s%d, 96' % (S_T0, S_T0)); a('v_add_u32 v14, s%d, v3' % S_T0)
    for k in range(2):
        a('s_lshl_b32 s%d, s%d, 6' % (S_T0, S_WAVE)); a('s_add_u32 s%d, s%d, %d' % (S_T0, S_T0, 512 * k))
        a('v_add_u32 v5, s%d, v0' % S_T0)
        a('v_mul_u32_u24 v6, 5462, v5'); a('v_lshrrev_b32 v6, 16, v6')
        a('v_mul_u32_u24 v7, 12, v6'); a('v_sub_u32 v7, v5, v7')
        a('v_mul_u32_u24 v8, %d, v6' % OUT_PITCH); a('v_lshl_add_u32 v%d, v7, 4, v8' % (16 + 2 * k))
        a('s_lshl_b32 s%d, s29, 6' % S_T0); a('v_add_u32 v6, s%d, v6' % S_T0)
        a('v_mul_u32_u24 v6, 2304, v6'); a('v_lshl_add_u32 v%d, v7, 4, v6' % (17 + 2 * k))
    a('s_mul_i32 s46, s30, 192')
    a('s_and_b32 s47, s29, 3'); a('s_add_u32 s47, s47, s30'); a('s_cmp_ge_u32 s47, 6'); a('s_cselect_b32 s48, 6, 0'); a('s_sub_u32 s47, s47, s48')
    if not OUT_ROT: a('s_mov_b32 s47, 0')
    a('s_mul_i32 s47, s47, 3072')

def out_dma(a, st, ld_flags):
    slot = (st % OUT_NSLOT) * OUT_STG
    for k in range(4):
        if k < 3:
            a('s_add_u32 m0, s44, %d' % (slot + k * 8192))
        else:
            a('s_add_u32 m0, s44, %d' % (slot + k * 8192))
            a('s_cmp_eq_u32 s45, 0'); a('s_cselect_b32 m0, m0, %d' % OUT_DUM)
        a('s_add_u32 s%d, s%d, s47' % (S_T0, 60 + k))
        a('buffer_load_dwordx4 v2, s[64:67], s%d offen %s lds' % (S_T0, ld_flags))
    a('s_add_u32 s47, s47, 3072'); a('s_cmp_eq_u32 s47, %d' % (6 * 3072)); a('s_cselect_b32 s47, 0, s47')

OUT_FLAGW = OUT_DUM + 1024
def out_main(a, ld_flags='', wait_in=None, stampf=None, verify=None):
    NST = 6
    ACC = 64
    if wait_in: wait_in(a)
    if verify:
        a('s_mov_b32 s49, 0')
        a.label(verify)
        a('v_mov_b32 v20, 0'); a('v_mov_b32 v21, %d' % OUT_FLAGW)
        a('ds_write_b32 v21, v20'); a('s_waitcnt lgkmcnt(0)')
    out_dma(a, 0, ld_flags); a('s_barrier')
    out_dma(a, 1, ld_flags); a('s_barrier')
    out_dma(a, 2, ld_flags)
    if stampf: stampf(a, 1)
    issued = 3
    lg = LG(a)
    F = 80
    for st in range(NST):
        a('s_waitcnt vmcnt(%d)' % (4 * (issued - 1 - st)))
        a('s_barrier')
        if stampf and st in (0, 1, 3, 5): stampf(a, {0: 2, 1: 3, 3: 4, 5: 5}[st]); lg.done = lg.n
        slot = (st % OUT_NSLOT) * OUT_STG
        a('v_add_u32 v12, %d, v10' % slot); a('v_add_u32 v13, %d, v11' % slot)
        def rd(kk):
            s_ = F + 16 * (kk % 2)
            lg.issue('ds_read_b128 %s, v12 offset:%d' % (vr(s_, 4), kk * 10240), [('b', st, kk)])
            for t in range(3): lg.issue('ds_read_b128 %s, v13 offset:%d' % (vr(s_ + 4 + 4 * t, 4), kk * 10240 + t * 1024), [('a', st, kk, t)])
        rd(0); rd(1)
        if issued < NST:
            out_dma(a, issued, ld_flags); issued += 1
        for kk in range(3):
            s_ = F + 16 * (kk % 2)
            for t in range(3):
                lg.wait([('b', st, kk), ('a', st, kk, t)])
                a('v_mfma_f32_16x16x32_bf16 %s, %s, %s, %s' % (vr(ACC + 4 * t, 4), vr(s_ + 4 + 4 * t, 4), vr(s_, 4), vr(ACC + 4 * t, 4) if (st or kk) else '0'))
                if verify:
                    if t == 0: a('v_max3_u32 v20, v20, v%d, v%d' % (s_, s_ + 2))
                    a('v_max3_u32 v20, v20, v%d, v%d' % (s_ + 4 + 4 * t, s_ + 6 + 4 * t))
            if kk == 0: rd(2)
        lg.waitall()
    if verify:
        l = a.newlabel('Lnp')
        a('v_cmp_eq_u32 vcc, -1, v20'); a('s_cmp_eq_u64 vcc, 0'); a('s_cbranch_scc1 %s' % l)
        a('v_mov_b32 v20, 1'); a('ds_write_b32 v21, v20')
        a.label(l)

OUT_PITCH = 208
def out_epilogue(a, st_flags='', verify=None, retry_max=2000):
    ACC = 64
    for t in range(3):
        a('v_cvt_pk_bf16_f32 v%d, v%d, v%d' % (80 + 2 * t, ACC + 4 * t, ACC + 4 * t + 1))
        a('v_cvt_pk_bf16_f32 v%d, v%d, v%d' % (81 + 2 * t, ACC + 4 * t + 2, ACC + 4 * t + 3))
    for t in range(3): a('ds_write_b64 v14, %s offset:%d' % (vr(80 + 2 * t, 2), 2 * OUT_STG + 32 * t))
    a('s_waitcnt lgkmcnt(0)')
    a('s_barrier')
    if verify: a('ds_read_b32 v22, v21')
    a('ds_read_b128 v[88:91], v16 offset:%d' % (2 * OUT_STG))
    a('ds_read_b128 v[92:95], v18 offset:%d' % (2 * OUT_STG))
    if verify:
        ok = a.newlabel('Lok')
        a('s_waitcnt lgkmcnt(2)')
        a('v_readfirstlane_b32 s48, v22')
        a('s_cmp_eq_u32 s48, 0'); a('s_cbranch_scc1 %s' % ok)
        a('s_add_u32 s49, s49, 1'); a('s_cmp_ge_u32 s49, %d' % retry_max); a('s_cbranch_scc1 %s' % ok)
        a('s_waitcnt lgkmcnt(0)'); a('s_barrier')
        a('s_branch %s' % verify)
        a.label(ok)
    skip = a.newlabel('Lout'); a('s_cmp_ge_u32 s%d, 4' % S_WAVE); a('s_cbranch_scc1 %s' % skip)
    a('s_waitcnt lgkmcnt(0)')
    a('buffer_store_dwordx4 v[92:95], v19, s[52:55], s46 offen %s' % st_flags)
    a.label(skip)
    a('s_waitcnt lgkmcnt(0)')
    a('buffer_store_dwordx4 v[88:91], v17, s[52:55], s46 offen %s' % st_flags)
for q in range(768): assert (q * 5462) >> 16 == q // 12
for f in range(30): assert (f * 6554) >> 16 == f // 10


O2_P = 64
O2_R = 136
O2_ACC = 24
O2_A = 40
O2_S = 168
LDS_OUT2 = 108 * 1024 + 4 * 1024
def out2_setup(a):
    a('v_lshlrev_b32 v2, 4, v0')
    a('s_lshl_b32 s44, s%d, 10' % S_WAVE)
    a('s_mul_i32 s45, s29, %d' % (4 * 18432)); a('s_add_u32 s45, s45, s44'); a('s_add_u32 s45, s45, %d' % WS_PN)
    a('s_and_b32 s%d, s%d, 3' % (S_T0, S_WAVE)); a('s_mul_i32 s%d, s%d, 18432' % (S_T1, S_T0)); a('v_add_u32 v10, s%d, v2' % S_T1)
    a('s_lshl_b32 s%d, s29, 6' % S_T1); a('s_lshl_b32 s%d, s%d, 4' % (S_T0, S_T0)); a('s_add_u32 s%d, s%d, s%d' % (S_T0, S_T0, S_T1))
    a('v_and_b32 v3, 15, v0'); a('v_add_u32 v3, s%d, v3' % S_T0); a('v_lshlrev_b32 v12, 4, v3'); a('v_add_u32 v12, %d, v12' % WS_RD)
    a('s_mul_i32 s46, s30, %d' % (6 * 18432)); a('s_add_u32 s46, s46, %d' % WS_W2T)
    a('s_lshr_b32 s%d, s%d, 2' % (S_T0, S_WAVE)); a('s_mul_i32 s%d, s%d, 3072' % (S_T0, S_T0)); a('v_add_u32 v11, s%d, v2' % S_T0)
    srd(a, 52, P_OUT, S * 1152 * 2)
    a('v_and_b32 v3, 15, v0'); a('v_lshrrev_b32 v4, 4, v0')
    a('s_and_b32 s%d, s%d, 3' % (S_T0, S_WAVE)); a('s_lshl_b32 s%d, s%d, 4' % (S_T0, S_T0)); a('v_add_u32 v3, s%d, v3' % S_T0)
    a('v_mul_u32_u24 v3, %d, v3' % OUT_PITCH); a('v_lshl_add_u32 v3, v4, 3, v3')
    a('s_lshr_b32 s%d, s%d, 2' % (S_T0, S_WAVE)); a('s_mul_i32 s%d, s%d, 96' % (S_T0, S_T0)); a('v_add_u32 v14, s%d, v3' % S_T0)
    for k in range(2):
        a('s_lshl_b32 s%d, s%d, 6' % (S_T0, S_WAVE)); a('s_add_u32 s%d, s%d, %d' % (S_T0, S_T0, 512 * k))
        a('v_add_u32 v5, s%d, v0' % S_T0)
        a('v_mul_u32_u24 v6, 5462, v5'); a('v_lshrrev_b32 v6, 16, v6')
        a('v_mul_u32_u24 v7, 12, v6'); a('v_sub_u32 v7, v5, v7')
        a('v_mul_u32_u24 v8, %d, v6' % OUT_PITCH); a('v_lshl_add_u32 v%d, v7, 4, v8' % (16 + 2 * k))
        a('s_lshl_b32 s%d, s29, 6' % S_T0); a('v_add_u32 v6, s%d, v6' % S_T0)
        a('v_mul_u32_u24 v6, 2304, v6'); a('v_lshl_add_u32 v%d, v7, 4, v6' % (17 + 2 * k))
    a('s_mul_i32 s47, s30, 192')
    for r in range(4): a('v_bfe_u32 v%d, s92, %d, 8' % (20 + r, 8 * r))

def out2_w2_dma(a, ld_flags):
    for k in range(14):
        a('s_add_u32 s%d, s%d, %d' % (S_T0, S_WAVE, 8 * k))
        if k == 13: a('s_min_u32 s%d, s%d, 107' % (S_T0, S_T0))
        a('s_mul_i32 s%d, s%d, 10923' % (S_T1, S_T0)); a('s_lshr_b32 s%d, s%d, 16' % (S_T1, S_T1))
        a('s_mul_i32 s%d, s%d, 6' % (S_T2, S_T1)); a('s_sub_u32 s%d, s%d, s%d' % (S_T2, S_T0, S_T2))
        a('s_mul_i32 s%d, s%d, 18' % (S_T2, S_T2)); a('s_add_u32 s%d, s%d, s%d' % (S_T2, S_T2, S_T1)); a('s_lshl_b32 s%d, s%d, 10' % (S_T2, S_T2))
        a('s_add_u32 s%d, s%d, s46' % (S_T2, S_T2))
        a('s_add_u32 m0, s44, %d' % (k * 8192))
        a('s_nop 0')
        a('buffer_load_dwordx4 v2, s[64:67], s%d offen %s lds' % (S_T2, ld_flags))
for f in range(112): assert (f * 10923) >> 16 == f // 6

def out2_pre(a, ld_flags, wait_pq, spin_max, stampf=None):
    wait_pq(a)
    for k in range(9):
        a('s_add_u32 m0, s44, %d' % (k * 8192))
        a('s_add_u32 s%d, s45, %d' % (S_T0, k * 8192))
        a('buffer_load_dwordx4 v2, s[64:67], s%d offen %s lds' % (S_T0, ld_flags))
    lp = a.newlabel('Lrp'); lo_ = a.newlabel('Lro')
    a('s_mov_b32 s69, 0')
    a.label(lp)
    for h in range(8):
        a('s_mov_b32 s%d, %d' % (S_T0, h * 32768))
        a('buffer_load_dwordx4 %s, v12, s[64:67], s%d offen %s' % (vr(O2_R + 4 * h, 4), S_T0, ld_flags))
    a('s_add_u32 s69, s69, 1')
    for h in range(8):
        a('s_waitcnt vmcnt(%d)' % (7 - h))
        for r in range(4): a('v_xor_b32 v%d, v%d, v%d' % (4 + r, O2_R + 4 * h + r, 20 + r))
        if h == 0:
            a('v_or3_b32 v8, v4, v5, v6'); a('v_or_b32 v8, v8, v7')
        else:
            a('v_or3_b32 v8, v8, v4, v5'); a('v_or3_b32 v8, v8, v6, v7')
    a('v_and_b32 v8, 0xff, v8')
    a('v_cmp_ne_u32 vcc, 0, v8')
    a('s_cmp_ge_u32 s69, %d' % spin_max); a('s_cbranch_scc1 %s' % lo_)
    a('s_cmp_lg_u64 vcc, 0'); a('s_cbranch_scc1 %s' % lp)
    a.label(lo_)
    if stampf: stampf(a, 5)
    a('s_barrier')
    for j in range(18): a('ds_read_b128 %s, v10 offset:%d' % (vr(O2_P + 4 * j, 4), j * 1024))
    a('s_mov_b64 s[48:49], 0xffff'); a('s_mov_b32 s50, -1'); a('s_mov_b32 s51, 0')
    def R(h): return O2_R + h
    sc = {}
    n = O2_S
    for hg in range(8):
        h0, h1, h2, h3 = (R(4 * hg + i) for i in range(4))
        a('v_cndmask_b32 v%d, v%d, v%d, s[48:49]' % (n + 0, h1, h0))
        a('v_cndmask_b32 v%d, v%d, v%d, s[48:49]' % (n + 1, h2, h1))
        a('v_cndmask_b32 v%d, v%d, v%d, s[50:51]' % (n + 2, h3, h2))
        a('v_cndmask_b32 v%d, v%d, v%d, s[48:49]' % (n + 3, h3, h2))
        sc[(hg, 0)] = [h0, h0, n + 0, h1]
        sc[(hg, 1)] = [n + 1, n + 1, n + 2, n + 3]
        n += 4
    mg = {}
    for G in range(4):
        a('v_cndmask_b32 v%d, v%d, v%d, s[50:51]' % (n, R(4 * (2 * G + 1) + 3), R(4 * (2 * G) + 3)))
        mg[G] = n; n += 1
    assert n <= 204
    a('s_waitcnt lgkmcnt(0)')
    a('s_barrier')
    return sc, mg

def out2_scale(a, sc, mg):
    a('s_mov_b32 s58, 0xffff0000')
    T = 206
    for j in range(18):
        if j < 16:
            G = j >> 2; nw = (j >> 1) & 1; s4 = sc[(2 * G + nw, j & 1)]
        else:
            G0 = 2 * (j - 16); s4 = [mg[G0], mg[G0], mg[G0 + 1], mg[G0 + 1]]
        for d in range(4):
            p = O2_P + 4 * j + d; t = T + 2 * d
            a('v_lshlrev_b32 v%d, 16, v%d' % (t, p)); a('v_and_b32 v%d, s58, v%d' % (t + 1, p))
        for d in range(4):
            t = T + 2 * d; sreg = s4[d]
            if sreg % 2 == 0: a('v_pk_mul_f32 %s, %s, %s op_sel_hi:[1,0]' % (vr(t, 2), vr(t, 2), vr(sreg, 2)))
            else: a('v_pk_mul_f32 %s, %s, %s op_sel:[0,1] op_sel_hi:[1,1]' % (vr(t, 2), vr(t, 2), vr(sreg - 1, 2)))
        for d in range(4):
            p = O2_P + 4 * j + d; t = T + 2 * d
            a('v_cvt_pk_bf16_f32 v%d, v%d, v%d' % (p, t, t + 1))

def out2_main(a):
    lg = LG(a)
    for c in range(3):
        a('s_waitcnt vmcnt(%d)' % (9, 5, 0)[c])
        a('s_barrier')
        def rd(j):
            s_ = O2_A + 12 * (j % 2)
            for t in range(3): lg.issue('ds_read_b128 %s, v%d offset:%d' % (vr(s_ + 4 * t, 4), 11 if j < 9 else 9, (j if j < 9 else j - 9) * 6144 + t * 1024), [('a', j, t)])
        if c == 0: a('v_add_u32 v9, %d, v11' % (9 * 6144))
        j0 = 6 * c
        rd(j0)
        for j in range(j0, j0 + 6):
            if j + 1 < j0 + 6: rd(j + 1)
            s_ = O2_A + 12 * (j % 2)
            for t in range(3):
                lg.wait([('a', j, t)])
                a('v_mfma_f32_16x16x32_bf16 %s, %s, %s, %s' % (vr(O2_ACC + 4 * t, 4), vr(s_ + 4 * t, 4), vr(O2_P + 4 * j, 4), vr(O2_ACC + 4 * t, 4) if j else '0'))

O2_STG = 110592 + 1024
def out2_epilogue(a, st_flags=''):
    for t in range(3):
        a('v_cvt_pk_bf16_f32 v%d, v%d, v%d' % (80 + 2 * t, O2_ACC + 4 * t, O2_ACC + 4 * t + 1))
        a('v_cvt_pk_bf16_f32 v%d, v%d, v%d' % (81 + 2 * t, O2_ACC + 4 * t + 2, O2_ACC + 4 * t + 3))
    for r in (14, 16, 18): a('v_add_u32 v%d, %d, v%d' % (r, O2_STG + 4096, r))
    for t in range(3): a('ds_write_b64 v14, %s offset:%d' % (vr(80 + 2 * t, 2), 32 * t))
    a('s_waitcnt lgkmcnt(0)')
    a('s_barrier')
    a('ds_read_b128 v[88:91], v16')
    skip = a.newlabel('Lout'); a('s_cmp_ge_u32 s%d, 4' % S_WAVE); a('s_cbranch_scc1 %s' % skip)
    a('ds_read_b128 v[92:95], v18')
    a('s_waitcnt lgkmcnt(0)')
    a('buffer_store_dwordx4 v[92:95], v19, s[52:55], s47 offen %s' % st_flags)
    a.label(skip)
    a('s_waitcnt lgkmcnt(0)')
    a('buffer_store_dwordx4 v[88:91], v17, s[52:55], s47 offen %s' % st_flags)
LDS_OUT2 = O2_STG + 4096 + 64 * OUT_PITCH


O3_R = 136
O3_S = 168
def out3_rden_issue(a, ld_flags):
    for h in range(8):
        a('s_mov_b32 s%d, %d' % (S_T0, h * 32768))
        a('buffer_load_dwordx4 %s, v23, s[64:67], s%d offen %s' % (vr(O3_R + 4 * h, 4), S_T0, ld_flags))
def out3_setup(a):
    out_setup(a)
    a('s_and_b32 s%d, s%d, 3' % (S_T0, S_WAVE)); a('s_lshl_b32 s%d, s%d, 4' % (S_T0, S_T0)); a('s_lshl_b32 s%d, s29, 6' % S_T1); a('s_add_u32 s%d, s%d, s%d' % (S_T0, S_T0, S_T1))
    a('v_and_b32 v23, 15, v0'); a('v_add_u32 v23, s%d, v23' % S_T0); a('v_lshlrev_b32 v23, 4, v23'); a('v_add_u32 v23, %d, v23' % WS_RD)
    for r in range(4): a('v_bfe_u32 v%d, s92, %d, 8' % (24 + r, 8 * r))
def out3_rden_check(a, ld_flags, spin_max):
    lp = a.newlabel('Lrp'); lo_ = a.newlabel('Lro'); lc = a.newlabel('Lrc')
    a('s_mov_b32 s69, 0')
    a('s_branch %s' % lc)
    a.label(lp)
    out3_rden_issue(a, ld_flags)
    a.label(lc)
    a('s_add_u32 s69, s69, 1')
    for h in range(8):
        a('s_waitcnt vmcnt(%d)' % (7 - h))
        for r in range(4): a('v_xor_b32 v%d, v%d, v%d' % (4 + r, O3_R + 4 * h + r, 24 + r))
        if h == 0:
            a('v_or3_b32 v8, v4, v5, v6'); a('v_or_b32 v8, v8, v7')
        else:
            a('v_or3_b32 v8, v8, v4, v5'); a('v_or3_b32 v8, v8, v6, v7')
    a('v_and_b32 v8, 0xff, v8')
    a('v_cmp_ne_u32 vcc, 0, v8')
    a('s_cmp_ge_u32 s69, %d' % spin_max); a('s_cbranch_scc1 %s' % lo_)
    a('s_cmp_lg_u64 vcc, 0'); a('s_cbranch_scc1 %s' % lp)
    a.label(lo_)
    a('s_mov_b64 s[48:49], 0xffff'); a('s_mov_b32 s50, -1'); a('s_mov_b32 s51, 0')
    def R(h): return O3_R + h
    sc = {}; n = O3_S
    for hg in range(8):
        h0, h1, h2, h3 = (R(4 * hg + i) for i in range(4))
        a('v_cndmask_b32 v%d, v%d, v%d, s[48:49]' % (n + 0, h1, h0))
        a('v_cndmask_b32 v%d, v%d, v%d, s[48:49]' % (n + 1, h2, h1))
        a('v_cndmask_b32 v%d, v%d, v%d, s[50:51]' % (n + 2, h3, h2))
        a('v_cndmask_b32 v%d, v%d, v%d, s[48:49]' % (n + 3, h3, h2))
        sc[(hg, 0)] = [h0, h0, n + 0, h1]; sc[(hg, 1)] = [n + 1, n + 1, n + 2, n + 3]
        n += 4
    mg = {}
    for G in range(4):
        a('v_cndmask_b32 v%d, v%d, v%d, s[50:51]' % (n, R(4 * (2 * G + 1) + 3), R(4 * (2 * G) + 3)))
        mg[G] = n; n += 1
    assert n <= 204
    return sc, mg

def out3_main(a, sc, mg, ld_flags, wait_in, verify, stampf=None):
    NST = 6; ACC = 64
    wait_in(a)
    a('s_mov_b32 s49, 0')
    a.label(verify)
    a('v_mov_b32 v20, 0'); a('v_mov_b32 v21, %d' % OUT_FLAGW)
    a('ds_write_b32 v21, v20'); a('s_waitcnt lgkmcnt(0)')
    a('s_mov_b32 s58, 0xffff0000')
    out_dma(a, 0, ld_flags); a('s_barrier')
    out_dma(a, 1, ld_flags); a('s_barrier')
    out_dma(a, 2, ld_flags)
    if stampf: stampf(a, 1)
    issued = 3
    lg = LG(a)
    F = 80; T = 206; PS = 112
    for st in range(NST):
        a('s_waitcnt vmcnt(%d)' % (4 * (issued - 1 - st)))
        a('s_barrier')
        if stampf and st in (0, 1, 3, 5): stampf(a, {0: 2, 1: 3, 3: 4, 5: 5}[st]); lg.done = lg.n
        slot = (st % OUT_NSLOT) * OUT_STG
        a('v_add_u32 v12, %d, v10' % slot); a('v_add_u32 v13, %d, v11' % slot)
        def rd(kk):
            s_ = F + 16 * (kk % 2)
            lg.issue('ds_read_b128 %s, v12 offset:%d' % (vr(s_, 4), kk * 10240), [('b', st, kk)])
            for t in range(3): lg.issue('ds_read_b128 %s, v13 offset:%d' % (vr(s_ + 4 + 4 * t, 4), kk * 10240 + t * 1024), [('a', st, kk, t)])
        def scale(kk):
            j = 3 * st + kk; s_ = F + 16 * (kk % 2); ps = PS + 4 * (kk % 2)
            if j < 16:
                G = j >> 2; nw = (j >> 1) & 1; s4 = sc[(2 * G + nw, j & 1)]
            else:
                G0 = 2 * (j - 16); s4 = [mg[G0], mg[G0], mg[G0 + 1], mg[G0 + 1]]
            lg.wait([('b', st, kk)])
            for d in range(4):
                t = T + 2 * d
                a('v_lshlrev_b32 v%d, 16, v%d' % (t, s_ + d)); a('v_and_b32 v%d, s58, v%d' % (t + 1, s_ + d))
            for d in range(4):
                t = T + 2 * d; sreg = s4[d]
                a('v_mul_f32 v%d, v%d, v%d' % (t, t, sreg)); a('v_mul_f32 v%d, v%d, v%d' % (t + 1, t + 1, sreg))
            for d in range(4):
                t = T + 2 * d
                a('v_cvt_pk_bf16_f32 v%d, v%d, v%d' % (ps + d, t, t + 1))
        rd(0); rd(1)
        if issued < NST:
            out_dma(a, issued, ld_flags); issued += 1
        scale(0)
        for kk in range(3):
            s_ = F + 16 * (kk % 2); ps = PS + 4 * (kk % 2)
            for t in range(3):
                lg.wait([('a', st, kk, t)])
                a('v_mfma_f32_16x16x32_bf16 %s, %s, %s, %s' % (vr(ACC + 4 * t, 4), vr(s_ + 4 + 4 * t, 4), vr(ps, 4), vr(ACC + 4 * t, 4) if (st or kk) else '0'))
                a('v_max3_u32 v20, v20, v%d, v%d' % (s_ + 4 + 4 * t, s_ + 6 + 4 * t))
                if t == 0 and kk < 2:
                    if kk == 0:
                        scale(1)
                    else:
                        pass
            if kk == 0:
                rd(2)
            if kk == 1:
                scale(2)
        lg.waitall()
    l = a.newlabel('Lnp')
    a('v_cmp_eq_u32 vcc, -1, v20'); a('s_cmp_eq_u64 vcc, 0'); a('s_cbranch_scc1 %s' % l)
    a('v_mov_b32 v20, 1'); a('ds_write_b32 v21, v20')
    a.label(l)


O4_W = 0
O4_P = 114688
O4_FLAG = 0
def out4_setup(a):
    a('v_lshlrev_b32 v2, 4, v0')
    a('s_lshl_b32 s44, s%d, 10' % S_WAVE)
    a('s_mul_i32 s46, s30, %d' % (6 * 18432)); a('s_add_u32 s46, s46, %d' % WS_W2T)
    a('s_mul_i32 s45, s29, %d' % (4 * 18432)); a('s_add_u32 s45, s45, %d' % WS_PN)
    a('s_and_b32 s%d, s%d, 3' % (S_T0, S_WAVE)); a('s_mul_i32 s47, s%d, 18432' % S_T0); a('s_lshr_b32 s%d, s%d, 2' % (S_T2, S_WAVE)); a('s_lshl_b32 s%d, s%d, 10' % (S_T2, S_T2))
    a('s_add_u32 s47, s47, s%d' % S_T2); a('s_add_u32 s47, s47, s45')
    a('s_lshl_b32 s%d, s%d, 10' % (S_T0, S_T0)); a('s_add_u32 s%d, s%d, %d' % (S_T0, S_T0, O4_P)); a('v_add_u32 v10, s%d, v2' % S_T0)
    a('s_lshr_b32 s%d, s%d, 2' % (S_T0, S_WAVE)); a('s_mul_i32 s%d, s%d, %d' % (S_T0, S_T0, 3 * 18432)); a('v_add_u32 v11, s%d, v2' % S_T0)
    srd(a, 52, P_OUT, S * 1152 * 2)
    a('v_and_b32 v3, 15, v0'); a('v_lshrrev_b32 v4, 4, v0')
    a('s_and_b32 s%d, s%d, 3' % (S_T0, S_WAVE)); a('s_lshl_b32 s%d, s%d, 4' % (S_T0, S_T0)); a('v_add_u32 v3, s%d, v3' % S_T0)
    a('v_mul_u32_u24 v3, %d, v3' % OUT_PITCH); a('v_lshl_add_u32 v3, v4, 3, v3')
    a('s_lshr_b32 s%d, s%d, 2' % (S_T0, S_WAVE)); a('s_mul_i32 s%d, s%d, 96' % (S_T0, S_T0)); a('v_add_u32 v14, s%d, v3' % S_T0)
    for k in range(2):
        a('s_lshl_b32 s%d, s%d, 6' % (S_T0, S_WAVE)); a('s_add_u32 s%d, s%d, %d' % (S_T0, S_T0, 512 * k))
        a('v_add_u32 v5, s%d, v0' % S_T0)
        a('v_mul_u32_u24 v6, 5462, v5'); a('v_lshrrev_b32 v6, 16, v6')
        a('v_mul_u32_u24 v7, 12, v6'); a('v_sub_u32 v7, v5, v7')
        a('v_mul_u32_u24 v8, %d, v6' % OUT_PITCH); a('v_lshl_add_u32 v%d, v7, 4, v8' % (16 + 2 * k))
        a('s_lshl_b32 s%d, s29, 6' % S_T0); a('v_add_u32 v6, s%d, v6' % S_T0)
        a('v_mul_u32_u24 v6, 2304, v6'); a('v_lshl_add_u32 v%d, v7, 4, v6' % (17 + 2 * k))
    a('s_mul_i32 s57, s30, 192')

O4_FLAGW = 113664
O4_ROT = True
def out4_w2_dma(a, ld_flags, before_low=None):
    skip = a.newlabel('Lw7'); low = a.newlabel('Lwlow')
    a('s_cmp_eq_u32 s%d, 7' % S_WAVE); a('s_cbranch_scc1 %s' % skip)
    a('s_and_b32 s51, s29, 3'); a('s_mul_i32 s51, s51, 27' if O4_ROT else 's_mul_i32 s51, s51, 0')
    a('s_cmp_lt_u32 s%d, 4' % S_WAVE); a('s_cbranch_scc1 %s' % low)
    def run(n, step, dummy_from=None):
        for k in range(n):
            if dummy_from is not None and k == n - 1:
                a('s_cmp_ge_u32 s%d, 2' % S_WAVE); a('s_cselect_b32 s50, 108, s48'); a('s_lshl_b32 m0, s50, 10')
            else:
                a('s_lshl_b32 m0, s48, 10')
            a('s_lshl_b32 s%d, s48, 10' % S_T0); a('s_add_u32 s%d, s%d, s46' % (S_T0, S_T0))
            a('buffer_load_dwordx4 v2, s[64:67], s%d offen %s lds' % (S_T0, ld_flags))
            if k < n - 1:
                a('s_add_u32 s48, s48, %d' % step); a('s_cmp_ge_u32 s48, 108'); a('s_cselect_b32 s50, 108, 0'); a('s_sub_u32 s48, s48, s50')
    a('s_sub_u32 s48, s%d, 4' % S_WAVE); a('s_add_u32 s48, s48, s51')
    run(18, 3)
    a('s_branch %s' % skip)
    a.label(low)
    if before_low: before_low(a)
    a('s_add_u32 s48, s%d, 54' % S_WAVE); a('s_add_u32 s48, s48, s51'); a('s_cmp_ge_u32 s48, 108'); a('s_cselect_b32 s50, 108, 0'); a('s_sub_u32 s48, s48, s50')
    run(14, 4, dummy_from=True)
    a.label(skip)

def out4_pn_dma7(a, chunks, ld_flags):
    for c in chunks:
        for jj in range(6):
            for e in range(4):
                a('s_mov_b32 m0, %d' % (O4_P + (c & 1) * 24576 + jj * 4096 + e * 1024))
                a('s_add_u32 s%d, s45, %d' % (S_T0, e * 18432 + (6 * c + jj) * 1024))
                a('buffer_load_dwordx4 v2, s[64:67], s%d offen %s lds' % (S_T0, ld_flags))

def out4_main(a, ld_flags, wait_w2, poll_pn, verify, stampf=None, before_low=None):
    ACC = 64
    wait_w2(a)
    a('s_mov_b32 s49, 0')
    a.label(verify)
    a('v_mov_b32 v20, 0'); a('v_mov_b32 v21, %d' % O4_FLAGW)
    a('ds_write_b32 v21, v20')
    out4_w2_dma(a, ld_flags, before_low)
    l7 = a.newlabel('Lo7'); l7e = a.newlabel('Lo7e')
    a('s_cmp_eq_u32 s%d, 7' % S_WAVE); a('s_cbranch_scc0 %s' % l7)
    poll_pn(a)
    out4_pn_dma7(a, (0, 1), ld_flags)
    a('v_lshrrev_b32 v4, 4, v0'); a('v_mul_u32_u24 v4, 18432, v4'); a('v_and_b32 v5, 15, v0'); a('v_lshl_add_u32 v4, v5, 7, v4')
    for k in range(3):
        a('s_add_u32 s%d, s45, %d' % (S_T0, 12 * 1024 + k * 2048))
        a('buffer_load_dword v238, v4, s[64:67], s%d offen %s' % (S_T0, ld_flags))
    a('s_waitcnt vmcnt(27)')
    a('s_branch %s' % l7e)
    a.label(l7)
    a('s_waitcnt vmcnt(0)')
    a.label(l7e)
    lg = LG(a)
    F = 80
    for c in range(3):
        if c == 1:
            l = a.newlabel('Lc1'); a('s_cmp_eq_u32 s%d, 7' % S_WAVE); a('s_cbranch_scc0 %s' % l)
            a('s_waitcnt vmcnt(3)')
            a.label(l)
        if c == 2: a('s_waitcnt vmcnt(0)')
        a('s_barrier')
        if stampf: stampf(a, 2 + c); lg.done = lg.n
        if c == 1:
            for k in range(3):
                a('s_add_u32 m0, s44, %d' % (O4_P + k * 8192))
                a('s_add_u32 s%d, s47, %d' % (S_T0, (12 + 2 * k) * 1024))
                a('buffer_load_dwordx4 v2, s[64:67], s%d offen %s lds' % (S_T0, ld_flags))
        def rd(jj):
            j = 6 * c + jj; s_ = F + 16 * (jj % 2)
            lg.issue('ds_read_b128 %s, v10 offset:%d' % (vr(s_, 4), (c & 1) * 24576 + jj * 4096), [('b', c, jj)])
            for t in range(3): lg.issue('ds_read_b128 %s, v11 offset:%d' % (vr(s_ + 4 + 4 * t, 4), t * 18432 + j * 1024), [('a', c, jj, t)])
        rd(0); rd(1)
        for jj in range(6):
            s_ = F + 16 * (jj % 2)
            for t in range(3):
                lg.wait([('b', c, jj), ('a', c, jj, t)])
                a('v_mfma_f32_16x16x32_bf16 %s, %s, %s, %s' % (vr(ACC + 4 * t, 4), vr(s_ + 4 + 4 * t, 4), vr(s_, 4), vr(ACC + 4 * t, 4) if (c or jj) else '0'))
                a('v_max3_u32 v20, v20, v%d, v%d' % (s_ + 4 + 4 * t, s_ + 6 + 4 * t))
            if jj + 2 < 6: rd(jj + 2)
        lg.waitall()
    l = a.newlabel('Lnp')
    a('v_cmp_eq_u32 vcc, -1, v20'); a('s_cmp_eq_u64 vcc, 0'); a('s_cbranch_scc1 %s' % l)
    a('v_mov_b32 v20, 1'); a('ds_write_b32 v21, v20')
    a.label(l)

def out4_epilogue(a, st_flags, verify, retry_max=2000):
    ACC = 64
    STG = O4_P + 24576
    for t in range(3):
        a('v_cvt_pk_bf16_f32 v%d, v%d, v%d' % (80 + 2 * t, ACC + 4 * t, ACC + 4 * t + 1))
        a('v_cvt_pk_bf16_f32 v%d, v%d, v%d' % (81 + 2 * t, ACC + 4 * t + 2, ACC + 4 * t + 3))
    for r in (14, 16, 18): a('v_add_u32 v%d, %d, v%d' % (r + 14, STG, r))
    for t in range(3): a('ds_write_b64 v28, %s offset:%d' % (vr(80 + 2 * t, 2), 32 * t))
    a('s_waitcnt lgkmcnt(0)')
    a('s_barrier')
    a('ds_read_b32 v22, v21')
    a('ds_read_b128 v[88:91], v30')
    a('ds_read_b128 v[92:95], v32')
    ok = a.newlabel('Lok')
    a('s_waitcnt lgkmcnt(2)')
    a('v_readfirstlane_b32 s48, v22')
    a('s_cmp_eq_u32 s48, 0'); a('s_cbranch_scc1 %s' % ok)
    a('s_add_u32 s49, s49, 1'); a('s_cmp_ge_u32 s49, %d' % retry_max); a('s_cbranch_scc1 %s' % ok)
    a('s_waitcnt lgkmcnt(0)'); a('s_barrier')
    a('s_branch %s' % verify)
    a.label(ok)
    skip = a.newlabel('Lout'); a('s_cmp_ge_u32 s%d, 4' % S_WAVE); a('s_cbranch_scc1 %s' % skip)
    a('s_waitcnt lgkmcnt(0)')
    a('buffer_store_dwordx4 v[92:95], v19, s[52:55], s57 offen %s' % st_flags)
    a.label(skip)
    a('s_waitcnt lgkmcnt(0)')
    a('buffer_store_dwordx4 v[88:91], v17, s[52:55], s57 offen %s' % st_flags)
```

```python
import sys
from common import *
import common, gemm1, w2out, bpart

S_NONCE = 70
S_X, S_SLOT = 71, 72
F_U, F_KV, F_PN, F_W2, F_Y = 0, 64, 192, 256, 320
ST = 'sc1'; LD = 'sc1'
SPIN_MAX = 100000
PREFETCH = True
ROT = True
OUTV2 = False
OUTV4 = False
OUTV3 = False
PV = True
ENTRYPF = True
PVQ = False
HINT_EARLY = True
OUTLD = 'sc1'
OUTST = 'sc1'
MAINONLY = NOQ = NOB = False
IDLEPF = False
ROTMODE = 'full'
CODE_END = 'Lcode_end'
SRD_F = 64

def nonce_publish(a):
    l = a.newlabel('Lnpub')
    a('s_or_b32 s68, s2, s%d' % S_WAVE); a('s_cmp_eq_u32 s68, 0'); a('s_cbranch_scc0 %s' % l)
    srd(a, 60, P_DBG, 256)
    a('s_memrealtime s[68:69]'); a('v_mov_b32 v240, 0'); a('s_waitcnt lgkmcnt(0)')
    a('s_or_b32 s68, s68, 1')
    a('v_mov_b32 v241, s68')
    a('s_mov_b64 s[68:69], exec'); a('s_mov_b64 exec, 1')
    a('buffer_store_dword v241, v240, s[60:63], 0 offen sc1')
    a('s_mov_b64 exec, s[68:69]')
    a.label(l)

def nonce_issue(a):
    l = a.newlabel('Lni')
    a('s_cmp_eq_u32 s%d, 0' % S_WAVE); a('s_cbranch_scc0 %s' % l)
    srd(a, 60, P_DBG, 256)
    a('v_mov_b32 v240, 0')
    a('buffer_load_dword v239, v240, s[60:63], 0 offen sc1')
    a.label(l)

def nonce_finish(a):
    l = a.newlabel('Lnf'); p = a.newlabel('Lnq')
    a('s_cmp_eq_u32 s%d, 0' % S_WAVE); a('s_cbranch_scc0 %s' % l)
    srd(a, 60, P_DBG, 256)
    a('s_mov_b32 s69, 0'); a('v_mov_b32 v240, 0')
    a('s_waitcnt vmcnt(0)')
    a('v_readfirstlane_b32 s%d, v239' % S_NONCE)
    a('s_cmp_lg_u32 s%d, 0' % S_NONCE); a('s_cbranch_scc1 %s' % l)
    a.label(p)
    a('buffer_load_dword v239, v240, s[60:63], 0 offen sc1')
    a('s_add_u32 s69, s69, 1')
    a('s_waitcnt vmcnt(0)')
    a('v_readfirstlane_b32 s%d, v239' % S_NONCE)
    a('s_cmp_ge_u32 s69, %d' % SPIN_MAX); a('s_cbranch_scc1 %s' % l)
    a('s_cmp_eq_u32 s%d, 0' % S_NONCE)
    a('s_cbranch_scc1 %s' % p)
    a.label(l)

def nonce_issue_all(a):
    srd(a, 60, P_DBG, 256)
    a('v_mov_b32 v240, 0')
    a('buffer_load_dword v239, v240, s[60:63], 0 offen sc1')

def nonce_finish_all(a):
    l = a.newlabel('Lnf'); p = a.newlabel('Lnq')
    a('s_waitcnt vmcnt(0)')
    a('v_readfirstlane_b32 s%d, v239' % S_NONCE)
    a('s_cmp_lg_u32 s%d, 0' % S_NONCE); a('s_cbranch_scc1 %s' % l)
    srd(a, 60, P_DBG, 256)
    a('s_mov_b32 s69, 0'); a('v_mov_b32 v240, 0')
    a.label(p)
    a('buffer_load_dword v239, v240, s[60:63], 0 offen sc1')
    a('s_add_u32 s69, s69, 1')
    a('s_waitcnt vmcnt(0)')
    a('v_readfirstlane_b32 s%d, v239' % S_NONCE)
    a('s_cmp_ge_u32 s69, %d' % SPIN_MAX); a('s_cbranch_scc1 %s' % l)
    a('s_cmp_eq_u32 s%d, 0' % S_NONCE)
    a('s_cbranch_scc1 %s' % p)
    a.label(l)

def tag_ready(a):
    l = a.newlabel('Ltr')
    a('v_readfirstlane_b32 s%d, v239' % S_NONCE)
    a('s_cmp_lg_u32 s%d, 0' % S_NONCE); a('s_cbranch_scc1 %s' % l)
    nonce_issue_all(a); nonce_finish_all(a)
    a.label(l)
    a('s_mul_i32 s92, s%d, 0x9E3779B1' % S_NONCE)

def hint(a, idx_sgpr_expr):
    l = a.newlabel('Lhint')
    a('s_cmp_eq_u32 s%d, 0' % S_WAVE); a('s_cbranch_scc0 %s' % l)
    idx_sgpr_expr(a)
    a('s_lshl_b32 s68, s68, 7'); a('s_add_u32 s68, s68, %d' % WS_FLAG)
    a('v_mov_b32 v240, 0'); a('v_mov_b32 v241, s%d' % S_NONCE)
    a('s_mov_b64 exec, 1')
    a('buffer_store_dword v241, v240, s[%d:%d], s68 offen sc1' % (SRD_F, SRD_F + 3))
    a('s_mov_b64 exec, -1')
    a.label(l)

def wave_wait_flags(a, lane_idx):
    l = a.newlabel('Lwf'); p = a.newlabel('Lwp')
    lane_idx(a)
    a('v_lshlrev_b32 v242, 7, v242'); a('v_add_u32 v242, %d, v242' % WS_FLAG)
    a('s_mov_b32 s69, 0')
    a.label(p)
    a('buffer_load_dword v243, v242, s[%d:%d], 0 offen sc1' % (SRD_F, SRD_F + 3))
    a('s_add_u32 s69, s69, 1')
    a('s_waitcnt vmcnt(0)')
    a('v_cmp_ne_u32 vcc, s%d, v243' % S_NONCE)
    a('s_cmp_ge_u32 s69, %d' % SPIN_MAX); a('s_cbranch_scc1 %s' % l)
    a('s_cmp_lg_u64 vcc, 0')
    a('s_cbranch_scc1 %s' % p)
    a.label(l)

PF = 238
def prefetch0(a):
    l_d = a.newlabel('Lpfd'); l_e = a.newlabel('Lpfe')
    a('s_and_b32 s56, s%d, 15' % S_SLOT); a('s_cmp_eq_u32 s56, 0'); a('s_cbranch_scc1 %s' % l_d)
    a('v_mov_b32 v3, 0'); a('buffer_load_dword v%d, v3, s[32:35], 0 offen' % PF)
    a('s_branch %s' % l_e)
    a.label(l_d)
    a('s_getpc_b64 s[56:57]')
    pcl = a.newlabel('Lpc'); a.label(pcl)
    a('s_lshl_b32 s59, s%d, 13' % S_WAVE)
    a('v_lshlrev_b32 v2, 7, v0'); a('v_add_u32 v2, s59, v2')
    a('v_min_u32 v2, %s - %s, v2' % (CODE_END, pcl))
    a('v_mov_b32 v5, s57'); a('v_add_co_u32 v4, vcc, s56, v2'); a('v_addc_co_u32 v5, vcc, 0, v5, vcc')
    a('global_load_dword v%d, v[4:5], off' % PF)
    a.label(l_e)
for q in range(7680): assert (q * 34953) >> 19 == q // 15
for q in range(15): assert (q * 13108) >> 16 == q // 5

def prefetch1(a, iskv):
    nonce_issue_all(a)

def idle_prefetch(a):
    a('s_sub_u32 s56, s73, 36'); a('s_lshl_b32 s56, s56, 3'); a('s_add_u32 s56, s56, s%d' % S_WAVE)
    a('v_and_b32 v3, 7, v0'); a('v_lshlrev_b32 v3, 21, v3')
    a('v_min_u32 v4, %d, v3' % (WS_END - 4))
    a('buffer_load_dword v%d, v4, s[%d:%d], 0 offen' % (PF, SRD_F, SRD_F + 3))
    srd(a, 60, P_OUT, S * 1152 * 2)
    a('v_min_u32 v4, %d, v3' % (S * 1152 * 2 - 4))
    a('buffer_load_dword v%d, v4, s[60:63], 0 offen' % PF)
    a('v_lshlrev_b32 v3, 7, v0')
    for ptr, nb, n in ((P_H, D * S * 2, 288), (P_WO, D * D * 2, 81), (P_Q, S * D * 2, 288)):
        srd(a, 60, ptr, nb)
        for k in range((n + 223) // 224):
            a('s_add_u32 s57, s56, %d' % (224 * k)); a('s_lshl_b32 s57, s57, 13')
            a('buffer_load_dword v%d, v3, s[60:63], s57 offen' % PF)

def publish(a, idx_sgpr_expr, lgkm=False):
    a('s_waitcnt vmcnt(0) lgkmcnt(0)' if lgkm else 's_waitcnt vmcnt(0)')
    a('s_barrier')
    l = a.newlabel('Lpub')
    a('s_cmp_eq_u32 s%d, 0' % S_WAVE); a('s_cbranch_scc0 %s' % l)
    idx_sgpr_expr(a)
    a('s_lshl_b32 s68, s68, 7'); a('s_add_u32 s68, s68, %d' % WS_FLAG)
    a('v_mov_b32 v240, 0'); a('v_mov_b32 v241, s%d' % S_NONCE)
    a('s_mov_b64 s[74:75], exec'); a('s_mov_b64 exec, 1')
    a('buffer_store_dword v241, v240, s[%d:%d], s68 offen sc1' % (SRD_F, SRD_F + 3))
    a('s_mov_b64 exec, s[74:75]')
    a.label(l)

def wait_flags(a, lane_idx, wave=0):
    l = a.newlabel('Lwf'); p = a.newlabel('Lwp')
    a('s_cmp_eq_u32 s%d, %d' % (S_WAVE, wave)); a('s_cbranch_scc0 %s' % l)
    lane_idx(a)
    a('v_lshlrev_b32 v242, 7, v242'); a('v_add_u32 v242, %d, v242' % WS_FLAG)
    a('s_mov_b32 s69, 0')
    a.label(p)
    a('buffer_load_dword v243, v242, s[%d:%d], 0 offen sc1' % (SRD_F, SRD_F + 3))
    a('s_add_u32 s69, s69, 1')
    a('s_waitcnt vmcnt(0)')
    a('v_cmp_ne_u32 vcc, s%d, v243' % S_NONCE)
    a('s_cmp_ge_u32 s69, %d' % SPIN_MAX); a('s_cbranch_scc1 %s' % l)
    a('s_cmp_lg_u64 vcc, 0')
    a('s_cbranch_scc1 %s' % p)
    a.label(l)
    a('s_barrier')

def rot_override(a):
    if not ROT or ROTMODE == 'none': a('s_mov_b32 s41, 0')
    elif ROTMODE == 'r3':
        a('s_and_b32 s41, s29, 3'); a('s_and_b32 s42, s30, 3'); a('s_add_u32 s41, s41, s42')
        a('s_cmp_ge_u32 s41, 3'); a('s_cselect_b32 s42, 3, 0'); a('s_sub_u32 s41, s41, s42')
        a('s_cmp_ge_u32 s41, 3'); a('s_cselect_b32 s42, 3, 0'); a('s_sub_u32 s41, s41, s42'); a('s_mul_i32 s41, s41, 3')
    elif ROTMODE == 'r2':
        a('s_and_b32 s41, s29, 1'); a('s_lshl_b32 s41, s41, 2')
    elif ROTMODE == 'rt':
        a('s_and_b32 s41, s29, 3'); a('s_lshl_b32 s41, s41, 1')

def k_persist(name):
    a = Asm()
    a('s_cmp_ge_u32 s2, 256'); a('s_cbranch_scc1 %s_end' % name)
    a('s_load_dwordx16 s[4:19], s[0:1], 0')
    a('s_load_dwordx8 s[20:27], s[0:1], 64')
    a('v_lshrrev_b32 v1, 6, v0')
    a('v_and_b32 v0, 63, v0')
    a('s_and_b32 s%d, s2, 7' % S_X); a('s_lshr_b32 s%d, s2, 3' % S_SLOT)
    a('v_readfirstlane_b32 s%d, v1' % S_WAVE)
    a('s_mov_b32 s96, 0')
    if ENTRYPF:
        lpf = a.newlabel('Lentrypf')
        a('s_and_b32 s56, s%d, 7' % S_SLOT); a('s_cmp_eq_u32 s56, 0'); a('s_cbranch_scc0 %s' % lpf)
        a('s_getpc_b64 s[56:57]')
        pcl = a.newlabel('Lpc'); a.label(pcl)
        a('s_lshl_b32 s59, s%d, 13' % S_WAVE)
        a('v_lshlrev_b32 v2, 7, v0'); a('v_add_u32 v2, s59, v2')
        a('v_min_u32 v2, %s - %s, v2' % (CODE_END, pcl))
        a('v_mov_b32 v5, s57'); a('v_add_co_u32 v4, vcc, s56, v2'); a('v_addc_co_u32 v5, vcc, 0, v5, vcc')
        a('global_load_dword v%d, v[4:5], off' % PF)
        a.label(lpf)
    def kernarg_ready():
        a('s_waitcnt lgkmcnt(0)')
        stamp_init(a); stamp(a, 0)
        srd(a, SRD_F, P_WS, WS_END)
    L_Q, L_B, L_OUT, L_B3, L_END = [name + s_ for s_ in ('_q', '_b', '_out', '_b3', '_fin')]
    a('s_cmp_ge_u32 s%d, 24' % S_SLOT); a('s_cbranch_scc1 %s' % L_B)
    a('s_cmp_ge_u32 s%d, 16' % S_SLOT); a('s_cbranch_scc1 %s' % L_Q)
    EX = 3 if PREFETCH else 0
    a('s_and_b32 s41, s%d, 3' % S_X); a('s_lshl_b32 s41, s41, 2'); a('s_and_b32 s29, s%d, 3' % S_SLOT); a('s_add_u32 s29, s29, s41')
    a('s_lshr_b32 s41, s%d, 2' % S_X); a('s_lshl_b32 s41, s41, 2'); a('s_lshr_b32 s30, s%d, 2' % S_SLOT); a('s_add_u32 s30, s30, s41')
    a('s_and_b32 s41, s29, 3'); a('s_lshl_b32 s41, s41, 1'); a('s_and_b32 s42, s30, 3'); a('s_mul_i32 s42, s42, 3'); a('s_add_u32 s41, s41, s42')
    a('s_cmp_ge_u32 s41, 9'); a('s_cselect_b32 s42, 9, 0'); a('s_sub_u32 s41, s41, s42')
    rot_override(a)
    gemm1.gemm1_rot(a, 41)
    gemm1.gemm1_lanes(a, False)
    kernarg_ready()
    gemm1.gemm1_srds(a)
    L_KVNEXT = name + '_kvnext'; L_CONVMAIN = name + '_convmain'
    def idx_kv(a): a('s_lshl_b32 s68, s30, 4'); a('s_add_u32 s68, s68, s91'); a('s_add_u32 s68, s68, %d' % F_KV)
    def u_flag_lane(a):
        a('v_and_b32 v242, 31, v0'); a('s_bfe_u32 s68, s93, 0x10004'); a('s_lshl_b32 s68, s68, 5'); a('s_add_u32 s68, s68, %d' % F_U); a('v_add_u32 v242, s68, v242')
    def kv_shadow(a):
        def c0():
            a('s_lshl_b32 s73, s%d, 3' % S_SLOT); a('s_add_u32 s73, s73, s%d' % S_X)
            a('s_mov_b32 s91, s29')
            tag_ready(a)
        def c1():
            a('s_min_u32 s93, s73, 115'); a('s_add_u32 s93, s93, 28'); a('s_mov_b32 s29, s93')
            u_flag_lane(a)
            a('v_lshlrev_b32 v242, 7, v242'); a('v_add_u32 v242, %d, v242' % WS_FLAG)
            a('buffer_load_dword v243, v242, s[%d:%d], 0 offen sc1' % (SRD_F, SRD_F + 3))
        def c2():
            bpart.conv_issue(a)
            a('s_mov_b32 s29, s91')
        def c3():
            gemm1.kv_epi_setup(a)
        return [c0, c1, c2, c3]
    gemm1.gemm1_main(a, False, hook0=None if ENTRYPF else prefetch0, n0=0 if ENTRYPF else 1, hook1=lambda a: prefetch1(a, True), n1=1, hook_after_issue=nonce_publish, hook2=kv_shadow)
    stamp(a, 1)
    if MAINONLY: a('s_branch %s' % L_END)
    if getattr(common, 'DIAG_LOOP', False): common.stamp_raw(a, 6)
    lno = name + '_kvnoconv'; learly = a.newlabel('Learly'); llate = a.newlabel('Llate'); ljoin = a.newlabel('Ljoin'); lgo = a.newlabel('Lgo')
    a('s_cmp_ge_u32 s73, 116'); a('s_cbranch_scc1 %s' % lno)
    a('s_waitcnt vmcnt(5)')
    a('v_cmp_ne_u32 vcc, s%d, v243' % S_NONCE)
    a('s_cmp_eq_u64 vcc, 0'); a('s_cselect_b32 s95, 1, 0'); a('s_cbranch_scc0 %s' % llate)
    bpart.conv_u_dma(a, LD)
    a('s_branch %s' % lgo)
    a.label(llate)
    a('buffer_load_dword v243, v242, s[%d:%d], 0 offen sc1' % (SRD_F, SRD_F + 3))
    a.label(lgo)
    gemm1.kv_epilogue2(a, st_flags=ST, stampf=(lambda a, i: common.stamp_raw(a, i)) if getattr(common, 'DIAG2', False) else None, after_barrier=(lambda a: hint(a, idx_kv)) if HINT_EARLY else None)
    if not HINT_EARLY: hint(a, idx_kv)
    if getattr(common, 'DIAG2', False): common.stamp_raw(a, 5)
    a('s_cmp_eq_u32 s95, 1'); a('s_cbranch_scc1 %s' % learly)
    lf2 = a.newlabel('Lf2')
    a('s_waitcnt vmcnt(2)')
    a('v_cmp_ne_u32 vcc, s%d, v243' % S_NONCE)
    a('s_cmp_eq_u64 vcc, 0'); a('s_cbranch_scc1 %s' % lf2)
    wave_wait_flags(a, u_flag_lane)
    a.label(lf2)
    bpart.conv_u_dma(a, LD)
    bpart.conv_copies(a, 0, waited=True)
    a('s_waitcnt vmcnt(0) lgkmcnt(0)')
    a('s_branch %s' % ljoin)
    a.label(learly)
    a('s_waitcnt vmcnt(4)')
    bpart.conv_copies(a, 0, waited=True)
    a('s_waitcnt vmcnt(2) lgkmcnt(0)')
    a.label(ljoin)
    a('s_barrier')
    if getattr(common, 'DIAG2', False): common.stamp_raw(a, 8)
    stamp(a, 2)
    a('s_branch %s' % L_CONVMAIN)
    a.label(lno)
    gemm1.kv_epilogue2(a, st_flags=ST, after_barrier=(lambda a: hint(a, idx_kv)) if HINT_EARLY else None)
    if not HINT_EARLY: hint(a, idx_kv)
    a('s_barrier')
    stamp(a, 2)
    a.label(L_KVNEXT)
    a('s_cmp_ge_u32 s73, 64'); a('s_cbranch_scc1 %s' % L_B3)
    a('s_mov_b32 s59, s%d' % S_SLOT)
    a('s_branch %s' % L_OUT)
    a.label(L_Q)
    if NOQ: a('s_endpgm')
    a('s_and_b32 s41, s%d, 3' % S_X); a('s_lshl_b32 s41, s41, 2'); a('s_and_b32 s29, s%d, 3' % S_SLOT); a('s_add_u32 s29, s29, s41')
    a('s_lshr_b32 s41, s%d, 2' % S_X); a('s_lshl_b32 s41, s41, 1'); a('s_bfe_u32 s30, s%d, 0x10002' % S_SLOT); a('s_add_u32 s30, s30, s41')
    a('s_and_b32 s41, s29, 3'); a('s_lshl_b32 s41, s41, 1'); a('s_and_b32 s42, s30, 1'); a('s_lshl_b32 s42, s42, 2'); a('s_add_u32 s41, s41, s42'); a('s_add_u32 s41, s41, 1')
    a('s_cmp_ge_u32 s41, 9'); a('s_cselect_b32 s42, 9, 0'); a('s_sub_u32 s41, s41, s42')
    rot_override(a)
    gemm1.gemm1_rot(a, 41)
    gemm1.gemm1_lanes(a, True)
    kernarg_ready()
    gemm1.gemm1_srds(a)
    if PV and PVQ and not OUTV3: gemm1.gemm1_main(a, True, hook0=prefetch0, n0=1, hook1=lambda a: prefetch1(a, False), n1=1, hook_after_issue=lambda a: gemm1.q_poison(a, ST), n_after=6)
    elif PREFETCH: gemm1.gemm1_main(a, True, hook0=None if ENTRYPF else prefetch0, n0=0 if ENTRYPF else 1, hook1=lambda a: prefetch1(a, False), n1=1)
    else: gemm1.gemm1_main(a, True)
    stamp(a, 1)
    if MAINONLY: a('s_branch %s' % L_END)
    if getattr(common, 'DIAG_LOOP', False): common.stamp_raw(a, 6)
    tag_ready(a)
    def idx_pn(a): a('s_lshl_b32 s68, s29, 2'); a('s_add_u32 s68, s68, s30'); a('s_add_u32 s68, s68, %d' % F_PN)
    def wz(a):
        def li(a):
            a('v_and_b32 v242, 31, v0'); a('s_lshl_b32 s68, s30, 5'); a('s_add_u32 s68, s68, %d' % F_KV); a('v_add_u32 v242, s68, v242')
        stamp(a, 2)
        wait_flags(a, li)
        stamp(a, 3)
    if OUTV2 or OUTV3:
        gemm1.q_epilogue2(a, ST, LD, lambda a: publish(a, idx_pn), wz, SPIN_MAX, stampf=(lambda a, i: common.stamp_raw(a, i)) if getattr(common, 'DIAG3', False) else None)
    else:
        gemm1.q_epilogue(a, st_flags=ST, ld_flags=LD, wait_z=wz, tagged=True, spin_max=SPIN_MAX)
        if PV and PVQ: a('s_barrier'); hint(a, idx_pn)
        else: publish(a, idx_pn)
    stamp(a, 4)
    a('s_sub_u32 s59, s%d, 8' % S_SLOT)
    a('s_branch %s' % L_OUT)
    a.label(L_B)
    if NOB: a('s_endpgm')
    a('s_sub_u32 s73, s%d, 24' % S_SLOT); a('s_lshl_b32 s73, s73, 3'); a('s_add_u32 s73, s73, s%d' % S_X)
    kernarg_ready()
    L_NOB1 = name + '_nob1'; L_B1SKIP = name + '_b1skip'; L_B1JOIN = name + '_b1join'
    a('s_lshl_b32 s41, s%d, 6' % S_WAVE); a('s_add_u32 s41, s41, s73')
    a('s_cmp_ge_u32 s41, 288'); a('s_cbranch_scc1 %s' % L_B1SKIP)
    a('s_and_b32 s29, s41, 31'); a('s_lshr_b32 s30, s41, 5')
    bpart.b1_tile(a, st_flags=ST, hook_after_issue=nonce_issue_all, stampf=(lambda a, i: common.stamp_raw(a, i)) if getattr(common, 'DIAG4', False) else None)
    a('s_waitcnt vmcnt(8)')
    a('s_branch %s' % L_B1JOIN)
    a.label(L_B1SKIP)
    if IDLEPF: idle_prefetch(a)
    nonce_issue_all(a)
    a('s_waitcnt vmcnt(0)')
    a.label(L_B1JOIN)
    tag_ready(a)
    def idx_u(a): a('s_add_u32 s68, s73, %d' % F_U)
    a('s_cmp_ge_u32 s73, 36'); a('s_cbranch_scc1 %s' % L_NOB1)
    publish(a, idx_u)
    stamp(a, 1)
    a('s_mov_b32 s29, s73')
    w2out.w2_prefetch(a)
    def wkv(a):
        def li(a):
            a('v_and_b32 v242, 15, v0'); a('v_bfe_u32 v241, v0, 4, 1')
            a('s_cmp_eq_u32 s31, 4'); a('s_cselect_b32 s68, 16, 0')
            a('v_mul_u32_u24 v241, s68, v241'); a('v_add_u32 v242, v242, v241')
            a('s_lshl_b32 s68, s30, 4'); a('s_add_u32 s68, s68, %d' % F_KV); a('v_add_u32 v242, s68, v242')
        stamp(a, 2)
        wait_flags(a, li)
        stamp(a, 3)
    w2out.w2_main(a, st_flags=ST, ld_flags=LD, wait_kv=wkv, tagged=True, spin_max=SPIN_MAX, stampf=(lambda a, i: common.stamp_raw(a, i)) if getattr(common, 'DIAG3', False) else None, poison=PV)
    if getattr(common, 'DIAG3', False): common.stamp_raw(a, 8)
    def idx_w2(a): a('s_add_u32 s68, s73, %d' % F_W2)
    if PV: a('s_barrier'); hint(a, idx_w2)
    else: publish(a, idx_w2)
    stamp(a, 6)
    if getattr(common, 'DIAG3', False): common.stamp_raw(a, 6)
    a('s_sub_u32 s59, s%d, 8' % S_SLOT)
    a('s_branch %s' % L_OUT)
    a.label(L_NOB1)
    a('s_sub_u32 s93, s73, 36'); a('s_mov_b32 s29, s93')
    bpart.conv_issue(a)
    a('s_waitcnt vmcnt(0)')
    a('s_barrier')
    hint(a, idx_u)
    bpart.conv_copies(a, 0, waited=True)
    stamp(a, 4)
    wave_wait_flags(a, u_flag_lane)
    stamp(a, 5)
    bpart.conv_u_dma(a, LD)
    a('s_waitcnt vmcnt(0) lgkmcnt(0)'); a('s_barrier')
    a.label(L_CONVMAIN)
    bpart.conv_main(a, st_flags=ST, stampf=(lambda a, i: common.stamp_raw(a, i)) if getattr(common, 'DIAG6', False) else None)
    if getattr(common, 'DIAG6', False): common.stamp_raw(a, 8)
    def idx_y(a): a('s_add_u32 s68, s93, %d' % F_Y)
    def y_flag_own(a):
        a('s_waitcnt vmcnt(0)')
        a('s_lshl_b32 s68, s93, 2'); a('s_add_u32 s68, s68, s%d' % S_WAVE); a('s_add_u32 s68, s68, %d' % F_Y)
        a('s_lshl_b32 s68, s68, 7'); a('s_add_u32 s68, s68, %d' % WS_FLAG)
        a('v_mov_b32 v240, 0'); a('v_mov_b32 v241, s%d' % S_NONCE)
        a('s_mov_b64 exec, 1')
        a('buffer_store_dword v241, v240, s[%d:%d], s68 offen sc1' % (SRD_F, SRD_F + 3))
        a('s_mov_b64 exec, -1')
    ldef = a.newlabel('Ldefer')
    a('s_cmp_ge_u32 s%d, 8' % S_SLOT); a('s_cselect_b32 s41, 1, 0'); a('s_cmp_lt_u32 s%d, 16' % S_SLOT); a('s_cselect_b32 s41, s41, 0')
    a('s_cmp_eq_u32 s41, 0'); a('s_cbranch_scc1 %s' % ldef)
    lyf = a.newlabel('Lyf'); a('s_cmp_ge_u32 s%d, 4' % S_WAVE); a('s_cbranch_scc1 %s' % lyf)
    y_flag_own(a)
    a.label(lyf)
    stamp(a, 6)
    a('s_branch %s' % L_B3)
    a.label(ldef)
    a('s_mov_b32 s96, 1')
    stamp(a, 6)
    a('s_sub_u32 s59, s%d, 8' % S_SLOT)
    a('s_cmp_lt_u32 s%d, 16' % S_SLOT); a('s_cselect_b32 s59, s%d, s59' % S_SLOT)
    a.label(L_OUT)
    a('s_lshl_b32 s29, s%d, 2' % S_X); a('s_and_b32 s41, s59, 3'); a('s_add_u32 s29, s29, s41'); a('s_lshr_b32 s30, s59, 2')
    a('s_barrier')
    if OUTV2:
        w2out.out2_setup(a)
        def wpq(a):
            def li(a):
                a('s_lshr_b32 s68, s29, 1'); a('s_lshl_b32 s68, s68, 2'); a('s_add_u32 s68, s68, %d' % F_PN)
                a('v_and_b32 v242, 3, v0'); a('v_add_u32 v242, s68, v242')
            wait_flags(a, li)
            stamp(a, 5)
        def w2_lane(a):
            a('v_min_u32 v242, 35, v0'); a('v_add_u32 v242, %d, v242' % F_W2)
        sc, mg = w2out.out2_pre(a, LD, wpq, SPIN_MAX)
        stamp(a, 7)
        w2out.out2_scale(a, sc, mg)
        wait_flags(a, w2_lane)
        stamp(a, 8)
        w2out.out2_w2_dma(a, LD)
        w2out.out2_main(a)
        stamp(a, 9)
        w2out.out2_epilogue(a)
        a('s_branch %s' % L_END)
    elif OUTV4:
        w2out.out4_setup(a)
        def ww2(a):
            def li(a): a('v_min_u32 v242, 35, v0'); a('v_add_u32 v242, %d, v242' % F_W2)
            stamp(a, 5)
            wait_flags(a, li, wave=7)
            stamp(a, 7)
        def wpn(a):
            def li(a):
                a('s_lshr_b32 s68, s29, 1'); a('s_lshl_b32 s68, s68, 2'); a('s_add_u32 s68, s68, %d' % F_PN)
                a('v_and_b32 v242, 3, v0'); a('v_add_u32 v242, s68, v242')
            wave_wait_flags(a, li)
        def ylow(a):
            lnp = a.newlabel('Lnopend')
            a('s_cmp_eq_u32 s96, 0'); a('s_cbranch_scc1 %s' % lnp)
            y_flag_own(a); a('s_mov_b32 s96, 0')
            a.label(lnp)
        w2out.out4_main(a, OUTLD, ww2, wpn, name + '_outretry', stampf=(lambda a, i: common.stamp_raw(a, i)) if getattr(common, 'DIAG5', False) else None, before_low=ylow)
        stamp(a, 9)
        w2out.out4_epilogue(a, OUTST, name + '_outretry')
        a('s_branch %s' % L_END)
    elif OUTV3:
        w2out.OUT_ROT = False
        w2out.out3_setup(a)
        w2out.out3_rden_issue(a, LD)
        sc, mg = w2out.out3_rden_check(a, LD, SPIN_MAX)
        def wo3(a):
            def li(a):
                a('s_lshr_b32 s68, s29, 1'); a('s_lshl_b32 s68, s68, 2'); a('s_add_u32 s68, s68, %d' % F_PN)
                a('v_add_u32 v242, s68, v0')
                a('v_add_u32 v241, %d, v0' % (F_W2 - 4))
                a('v_cmp_le_u32 vcc, 4, v0'); a('v_cndmask_b32 v242, v242, v241, vcc')
                a('v_mov_b32 v241, s68')
                a('v_cmp_le_u32 vcc, 40, v0'); a('v_cndmask_b32 v242, v242, v241, vcc')
            stamp(a, 7)
            wait_flags(a, li)
            stamp(a, 8)
        w2out.out3_main(a, sc, mg, OUTLD, wo3, name + '_outretry', stampf=(lambda a, i: common.stamp_raw(a, i)) if getattr(common, 'DIAG5', False) else None)
        stamp(a, 9)
        w2out.out_epilogue(a, st_flags=OUTST, verify=name + '_outretry')
        a('s_branch %s' % L_END)
    else:
        w2out.out_setup(a)
        lnp = a.newlabel('Lnopend')
        a('s_cmp_eq_u32 s96, 0'); a('s_cbranch_scc1 %s' % lnp)
        a('s_cmp_ge_u32 s%d, 4' % S_WAVE); a('s_cbranch_scc1 %s' % lnp)
        y_flag_own(a)
        a.label(lnp)
        def wo_(a):
            def li(a):
                a('s_lshr_b32 s68, s29, 1'); a('s_lshl_b32 s68, s68, 2'); a('s_add_u32 s68, s68, %d' % F_PN)
                a('v_add_u32 v242, s68, v0')
                a('v_add_u32 v241, %d, v0' % (F_W2 - 4))
                a('v_cmp_le_u32 vcc, 4, v0'); a('v_cndmask_b32 v242, v242, v241, vcc')
                a('v_mov_b32 v241, s68')
                a('v_cmp_le_u32 vcc, 40, v0'); a('v_cndmask_b32 v242, v242, v241, vcc')
            stamp(a, 7)
            wait_flags(a, li, wave=7)
            stamp(a, 8)
        w2out.out_main(a, ld_flags=OUTLD, wait_in=wo_, stampf=(lambda a, i: common.stamp_raw(a, i)) if getattr(common, 'DIAG5', False) else None, verify=(name + '_outretry') if PV else None)
        stamp(a, 9)
        w2out.out_epilogue(a, st_flags=OUTST, verify=(name + '_outretry') if PV else None)
        a('s_branch %s' % L_END)
    a.label(L_B3)
    L_B3SKIP = name + '_b3skip'
    a('s_sub_u32 s58, s73, 64')
    a('s_lshl_b32 s41, s%d, 6' % S_WAVE); a('s_add_u32 s41, s41, s58')
    a('s_and_b32 s29, s41, 31'); a('s_lshr_b32 s30, s41, 5')
    a('s_barrier')
    a('s_cmp_ge_u32 s41, 288'); a('s_cbranch_scc1 %s' % L_END)
    def wy(a):
        def li(a):
            a('s_lshl_b32 s68, s30, 6'); a('s_add_u32 s68, s68, %d' % F_Y); a('v_add_u32 v242, s68, v0')
        stamp(a, 7)
        wave_wait_flags(a, li)
        stamp(a, 8)
    bpart.b3_tile(a, ld_flags=LD, st_flags=OUTST, wait_y=wy)
    a.label(L_END)
    if common.STAMPS:
        a('s_waitcnt vmcnt(0)'); stamp(a, 10); stamp_flush(a, 0)
    a.label(name + '_end'); a('s_endpgm')
    a.label(CODE_END)
    return a

NAME = 'concat_heads__linear_attn_block__ssm_conv_h3__prompt_kernel'
def build():
    lds = max(gemm1.LDS_GEMM1, w2out.LDS_W2, w2out.LDS_OUT, w2out.LDS_OUT2, bpart.LDS_CONV, bpart.LDS_B3, bpart.LDS_B1)
    assert lds <= 163840
    a = k_persist(NAME)
    lines = fix_hazards(a.lines, verbose=True)
    hdr = '; concat_heads / linear attention block + H3 ssm conv : single persistent kernel (generated by gen/persist.py)\n'
    hdr += '; @launch grid=(256,1,1) block=(512,1,1) lds=%d\n' % lds
    return hdr + '.amdgcn_target "amdgcn-amd-amdhsa--gfx950"\n.text\n' + kernel_header(NAME) + '\n'.join(lines) + '\n' + kernel_desc(NAME)
if __name__ == '__main__':
    if 'nopf' in sys.argv: PREFETCH = False
    if 'norot' in sys.argv: ROT = False
    if 'v2' in sys.argv: OUTV2 = True
    if 'v4' in sys.argv: OUTV4 = True
    if 'noentrypf' in sys.argv: ENTRYPF = False
    if 'latehint' in sys.argv: HINT_EARLY = False
    if 'pvq' in sys.argv: PVQ = True
    if 'v3' in sys.argv: OUTV3 = True
    if 'nopv' in sys.argv: PV = False
    if 'outplain' in sys.argv: OUTLD = ''
    if 'outsc0' in sys.argv: OUTLD = 'sc0'
    if 'osc1' in sys.argv: OUTST = 'sc1'
    if 'ont' in sys.argv: OUTST = 'nt'
    if 'osc01' in sys.argv: OUTST = 'sc0 sc1'
    if 'mainonly' in sys.argv: MAINONLY = True
    if 'noq' in sys.argv: NOQ = True
    if 'nob' in sys.argv: NOB = True
    if 'noidle' in sys.argv: IDLEPF = False
    if 'idle' in sys.argv: IDLEPF = True
    for m_ in ('r3', 'r2', 'rt', 'none'):
        if m_ in sys.argv: ROTMODE = m_
    if 'diag' in sys.argv: common.DIAG_LOOP = True
    if 'diag2' in sys.argv: common.DIAG2 = True
    if 'diag3' in sys.argv: common.DIAG3 = True
    if 'diag4' in sys.argv: common.DIAG4 = True
    if 'diag5' in sys.argv: common.DIAG5 = True
    if 'diag6' in sys.argv: common.DIAG6 = True
    if len(sys.argv) > 2 and sys.argv[2] in ('rt', 'cyc'):
        common.STAMPS = True
        if sys.argv[2] == 'cyc': common.STAMP_OP = 's_memtime'
    open(sys.argv[1], 'w').write(build())
```
